```python
import torch

def _softmax(x, axis=-1):
    return torch.softmax(x, dim=axis)
def _gelu(x):
    return torch.nn.functional.gelu(x, approximate="tanh")
def _silu(x):
    return torch.nn.functional.silu(x)
def _sigmoid(x):
    return torch.sigmoid(x)
def _layernorm(x, axis=-1, eps=1e-5):
    m = x.mean(dim=axis, keepdim=True)
    v = x.var(dim=axis, keepdim=True, unbiased=False)
    return (x - m) / torch.sqrt(v + eps)
def _scatter_add(tgt, idx, src, axis=0):
    return tgt.clone().index_add_(axis, idx, src)
def _segment_sum(src, seg, n):
    out = torch.zeros((n,) + src.shape[1:], dtype=src.dtype)
    return out.index_add_(0, seg, src)
def _pad(x, pw):
    flat = tuple(v for pair in reversed(pw) for v in pair)
    return torch.nn.functional.pad(x, flat)

kernel_name = 'sequential_preLN__linear_kernel_hedgehog__moe_arch_mod__prompt'

def setup_inputs():

    _w = (lambda a: (lambda t: t.to(torch.bfloat16) if t.is_floating_point() else t)(torch.as_tensor(a)))
    def _A_setup():
        B, S, D, H = 1, 2048, 576, 32
        Dh = D // H
        return {
            "x": _w((lambda *s: torch.randn(*s, dtype=torch.bfloat16) * 0.05)(B, S, D)),
            "wqkv": _w((lambda *s: torch.randn(*s, dtype=torch.bfloat16) * 0.2)(D, 3 * D)),
            "w_phi": _w((lambda *s: torch.randn(*s, dtype=torch.bfloat16) * 0.2)(H, Dh, Dh) * (Dh ** -0.5)),
            "wo": _w((lambda *s: torch.randn(*s, dtype=torch.bfloat16) * 0.05)(D, D)),
        }
    _A_in = _A_setup()

    def _B_setup():
        B, S, D, F, C = 1, 2048, 576, 4608, 8
        return {
            "x": _w((lambda *s: torch.randn(*s, dtype=torch.bfloat16) * 0.05)(B, S, D)),
            "w_r": _w((lambda *s: torch.randn(*s, dtype=torch.bfloat16) * 0.05)(D)),
            "w_gate": _w((lambda *s: torch.randn(*s, dtype=torch.bfloat16) * 0.05)(D, F)),
            "w_up": _w((lambda *s: torch.randn(*s, dtype=torch.bfloat16) * 0.05)(D, F)),
            "w_down": _w((lambda *s: torch.randn(*s, dtype=torch.bfloat16) * 0.05)(F, D)),
        }
    _B_in = _B_setup()

    return {
        "A_x": _A_in["x"],
        "A_wqkv": _A_in["wqkv"],
        "A_w_phi": _A_in["w_phi"],
        "A_wo": _A_in["wo"],
        "B_x": _B_in["x"],
        "B_w_r": _B_in["w_r"],
        "B_w_gate": _B_in["w_gate"],
        "B_w_up": _B_in["w_up"],
        "B_w_down": _B_in["w_down"],
    }

def reference(A_x, A_wqkv, A_w_phi, A_wo, B_x, B_w_r, B_w_gate, B_w_up, B_w_down):
    def _A_ref(x, wqkv, w_phi, wo):
        B, S, D = x.shape
        H = 32; Dh = D // H
        qkv = (lambda x, *d: x.permute(*d))((x @ wqkv).reshape(B, S, 3, H, Dh), 2, 0, 3, 1, 4)
        q, k, v = qkv[0], qkv[1], qkv[2]
        pq = torch.einsum("bhsd,hdf->bhsf", q, w_phi)
        pk = torch.einsum("bhsd,hdf->bhsf", k, w_phi)
        phi_q = torch.concatenate([_softmax(pq, axis=-1), _softmax(-pq, axis=-1)], axis=-1)
        phi_k = torch.concatenate([_softmax(pk, axis=-1), _softmax(-pk, axis=-1)], axis=-1)
        kv = torch.einsum("bhsf,bhsd->bhfd", phi_k, v)
        z  = torch.einsum("bhsf->bhf", phi_k)
        num = torch.einsum("bhqf,bhfd->bhqd", phi_q, kv)
        den = torch.einsum("bhqf,bhf->bhq", phi_q, z)[..., None] + 1e-6
        o = num / den
        return (lambda x, *d: x.permute(*d))(o, 0, 2, 1, 3).reshape(B, S, D) @ wo

    def _B_ref(x, w_r, w_gate, w_up, w_down):
        B, S, D = x.shape
        C = 8
        r = x @ w_r
        idx = torch.argsort(-r, axis=-1)[:, :C]
        idx_e = (lambda x, n, axis: torch.repeat_interleave(x, n, dim=axis))(idx.reshape(B, C, 1), D, axis=2)
        x_sel = (lambda x, i, axis: torch.take_along_dim(x, i, dim=axis))(x, idx_e, axis=1)
        g = _silu(x_sel @ w_gate)
        u = x_sel @ w_up
        y = (g * u) @ w_down
        r_sel = _sigmoid((lambda x, i, axis: torch.take_along_dim(x, i, dim=axis))(r, idx, axis=1))
        y = y * r_sel.reshape(B, C, 1)
        b_off = (torch.arange(B) * S).reshape(B, 1)
        flat_idx = (idx + b_off).reshape(B * C)
        zero = (x * 0.0).reshape(B * S, D)
        upd = _scatter_add(zero, flat_idx, y.reshape(B * C, D), axis=0)
        return x + upd.reshape(B, S, D)

    x = A_x
    h = x + _A_ref(_layernorm(x, axis=-1), A_wqkv, A_w_phi, A_wo)
    h2 = h + _B_ref(_layernorm(h, axis=-1), B_w_r, B_w_gate, B_w_up, B_w_down)
    return h2
```

```python
import re

REG_RE = re.compile(r'^(-|\|)?(abs\()?([vas])(\d+|\[(\d+):(\d+)\])\)?\|?$')

def parse_regs(tok):
    tok = tok.strip()
    if tok in ('vcc',): return [('s', 'vcc_lo'), ('s', 'vcc_hi')]
    if tok in ('vcc_lo', 'vcc_hi'): return [('s', tok)]
    if tok == 'exec': return [('s', 'exec_lo'), ('s', 'exec_hi')]
    if tok in ('exec_lo', 'exec_hi'): return [('s', tok)]
    if tok == 'm0': return [('s', 'm0')]
    if tok == 'scc': return [('s', 'scc')]
    m = REG_RE.match(tok)
    if not m: return []
    kind = m.group(3)
    if m.group(5) is not None:
        return [(kind, i) for i in range(int(m.group(5)), int(m.group(6)) + 1)]
    return [(kind, int(m.group(4)))]

TRANS = ('v_exp_f32', 'v_log_f32', 'v_rcp_f32', 'v_rsq_f32', 'v_sqrt_f32', 'v_sin_f32', 'v_cos_f32', 'v_rcp_iflag_f32')

class Ins:
    __slots__ = ('text', 'op', 'cls', 'wr', 'rd', 'srcc', 'passes', 'dpp', 'states')

def split_ops(s):
    out = []; depth = 0; cur = ''
    for ch in s:
        if ch == '[': depth += 1
        if ch == ']': depth -= 1
        if ch == ',' and depth == 0:
            out.append(cur.strip()); cur = ''
        else: cur += ch
    if cur.strip(): out.append(cur.strip())
    return out

def analyze(text):
    t = text.split(';')[0].strip()
    I = Ins(); I.text = text; I.wr = []; I.rd = []; I.srcc = []; I.passes = 0; I.dpp = False; I.states = 1
    parts = t.split(None, 1)
    op = parts[0]; I.op = op
    rest = parts[1] if len(parts) > 1 else ''
    ops = split_ops(rest)
    clean = []
    for k, o in enumerate(ops):
        toks = o.split()
        if toks: clean.append(toks[0])
        for extra in toks[1:]:
            if extra.startswith(('row_', 'quad_perm', 'wave_', 'dpp')): I.dpp = True
    if '_dpp' in op or 'quad_perm' in rest or 'row_' in rest: I.dpp = True
    ops = clean
    R = lambda lst: [r for o in lst for r in parse_regs(o)]
    if op == 's_nop':
        I.cls = 'nop'; I.states = int(ops[0], 0) + 1; return I
    if op.startswith('v_mfma'):
        I.cls = 'mfma'; I.wr = R(ops[:1]); I.rd = R(ops[1:3]); I.srcc = R(ops[3:4])
        I.passes = 8 if '32x32' in op else 4
        return I
    if op.startswith(('buffer_', 'global_')):
        I.cls = 'vmem'
        lds = ' lds' in (' ' + rest + ' ') or rest.endswith('lds') or 'load_lds' in op
        if op in ('buffer_inv', 'buffer_wbl2'): return I
        if 'store' in op or ('atomic' in op and 'sc0' not in rest):
            I.rd = R(ops)
        elif lds:
            I.rd = R(ops) + [('s', 'm0')]
        else:
            I.wr = R(ops[:1]); I.rd = R(ops[1:])
            if 'd16' in op: I.rd += R(ops[:1])
        return I
    if op.startswith('ds_'):
        I.cls = 'ds'
        if op.startswith(('ds_write', 'ds_add', 'ds_max', 'ds_min', 'ds_or')) and 'rtn' not in op: I.rd = R(ops)
        else:
            I.wr = R(ops[:1]); I.rd = R(ops[1:])
            if 'd16' in op: I.rd += R(ops[:1])
        return I
    if op.startswith('s_'):
        I.cls = 'salu'
        if op.startswith(('s_waitcnt', 's_barrier', 's_endpgm', 's_sleep', 's_branch', 's_cbranch', 's_setprio')):
            if op.startswith('s_cbranch_vcc'): I.rd = parse_regs('vcc')
            if op.startswith('s_cbranch_exec'): I.rd = parse_regs('exec')
            if op.startswith('s_cbranch_scc'): I.rd = [('s', 'scc')]
            return I
        if op.startswith('s_cmp') or op.startswith('s_bitcmp'):
            I.rd = R(ops); I.wr = [('s', 'scc')]; return I
        if op.startswith(('s_load', 's_buffer_load')):
            I.cls = 'smem'; I.wr = R(ops[:1]); I.rd = R(ops[1:]); return I
        if op in ('s_memtime', 's_memrealtime', 's_getpc_b64'):
            I.wr = R(ops[:1]); return I
        I.wr = R(ops[:1]); I.rd = R(ops[1:])
        if 'saveexec' in op: I.wr += parse_regs('exec'); I.rd += parse_regs('exec')
        return I
    if op.startswith('v_'):
        I.cls = 'valu'
        base = op.replace('_e32', '').replace('_e64', '').replace('_dpp', '').replace('_sdwa', '')
        if base in TRANS: I.cls = 'trans'
        if base.startswith('v_dot'): I.cls = 'dot'
        if base.startswith('v_cmpx'):
            I.wr = R(ops[:1]) + parse_regs('exec'); I.rd = R(ops[1:]); return I
        if base.startswith('v_cmp'):
            I.wr = R(ops[:1]); I.rd = R(ops[1:]); return I
        if base.startswith('v_permlane') and 'swap' in base:
            I.wr = R(ops[:2]); I.rd = R(ops[:2]); I.cls = 'permlane'; return I
        if base in ('v_readlane_b32', 'v_readfirstlane_b32'):
            I.wr = R(ops[:1]); I.rd = R(ops[1:]); I.cls = 'readlane'; return I
        if base == 'v_writelane_b32':
            I.wr = R(ops[:1]); I.rd = R(ops); return I
        if base.endswith('_co_u32') and base.startswith(('v_add', 'v_sub')):
            I.wr = R(ops[:2]); I.rd = R(ops[2:]); return I
        I.wr = R(ops[:1]); I.rd = R(ops[1:])
        if base.startswith(('v_fmac', 'v_dot2c', 'v_pk_fmac')) or I.dpp or 'UNUSED_PRESERVE' in rest: I.rd += R(ops[:1])
        if base == 'v_cndmask_b32' and len(ops) == 3: I.rd += parse_regs('vcc')
        return I
    raise ValueError('unknown op ' + text)

class Asm:
    def __init__(self):
        self.lines = []
        self.hist = []
        self.pos = 0
        self.vm = []
        self.lg = []
        self.nops = 0
        self.uid = 0
        self.seen = set()
    def raw(self, s): self.lines.append(s)
    def comment(self, s): self.lines.append('    ; ' + s)
    def label(self, name):
        self.lines.append(name + ':')
    def newlabel(self, p='L'):
        self.uid += 1; return f'{p}_{self.uid}'
    def _need(self, I):
        need = 0
        is_valu = lambda c: c in ('valu', 'trans', 'permlane', 'readlane', 'dot')
        rdset = set(I.rd); wrset = set(I.wr); cset = set(I.srcc)
        for (P, endpos) in self.hist:
            dist = self.pos - endpos
            req = 0
            pw = set(P.wr)
            if is_valu(P.cls):
                vw = {r for r in pw if r[0] in 'va'}
                sw = {r for r in pw if r[0] == 's'}
                if I.cls == 'mfma' and vw & (rdset | cset): req = max(req, 2)
                if I.cls == 'permlane' and vw & rdset: req = max(req, 2)
                if is_valu(I.cls) and I.dpp and vw & rdset: req = max(req, 2)
                if I.cls == 'readlane' and vw & rdset: req = max(req, 1)
                if P.cls == 'trans' and is_valu(I.cls) and vw & rdset: req = max(req, 1)
                if P.cls == 'trans' and I.cls in ('vmem', 'ds') and vw & rdset: req = max(req, 1)
                if sw:
                    if I.cls == 'vmem' and sw & rdset: req = max(req, 5)
                    if is_valu(I.cls) and sw & rdset:
                        req = max(req, 4 if I.cls == 'readlane' or I.op.startswith('v_writelane') else 2)
                    if ('s', 'exec_lo') in sw:
                        if I.cls == 'mfma': req = max(req, 4)
                        if I.dpp: req = max(req, 5)
                        if I.cls in ('readlane', 'permlane'): req = max(req, 4)
            if P.cls == 'dot':
                if I.op != P.op and pw & (rdset | wrset | cset): req = max(req, 3)
                elif I.op == P.op and pw & (rdset - wrset): req = max(req, 3)
            if P.cls == 'mfma':
                p4 = P.passes == 4
                if I.cls == 'mfma':
                    if pw & rdset: req = max(req, 8 if p4 else 12)
                    if pw & cset and (set(P.wr) != cset or P.passes != I.passes): req = max(req, 6 if p4 else 10)
                elif is_valu(I.cls):
                    if pw & (rdset | wrset): req = max(req, 8 if p4 else 12)
                    if set(P.srcc) & wrset: req = max(req, 3 if p4 else 7)
                elif I.cls in ('vmem', 'ds'):
                    if pw & (rdset | wrset): req = max(req, 8 if p4 else 12)
            if P.cls == 'vmem' and ('store' in P.op) and ('x3' in P.op or 'x4' in P.op):
                if is_valu(I.cls) and set(P.rd) & wrset: req = max(req, 2)
                elif set(r for r in P.rd if r[0] in 'va') & wrset: req = max(req, 1)
            if P.cls == 'salu' and ('s', 'm0') in pw:
                if I.cls == 'vmem' and ('s', 'm0') in rdset: req = max(req, 1)
            need = max(need, req - dist)
        return need
    def emit(self, text, tag=None):
        I = analyze(text)
        if I.cls != 'nop':
            n = self._need(I)
            while n > 0:
                k = min(n, 16)
                self.lines.append(f'    s_nop {k-1}'); self.pos += k; n -= k; self.nops += 1
        self.lines.append('    ' + text)
        self.pos += I.states
        self.hist.append((I, self.pos))
        self.hist = [(p, e) for (p, e) in self.hist if self.pos - e < 24]
        if I.cls == 'vmem' and I.op not in ('buffer_inv',):
            self.vm.append(tag)
            assert len(self.vm) <= 63, 'too many outstanding vmem ops'
        if I.cls == 'ds':
            self.lg.append(tag)
            assert len(self.lg) <= 15, 'too many outstanding lds ops'
        self.seen.add(tag)
        return I
    def __call__(self, text, tag=None): return self.emit(text, tag)
    def wait_vm(self, tags=None):
        if tags is None: n = 0
        else:
            if not isinstance(tags, (list, set)): tags = [tags]
            idx = [i for i, t in enumerate(self.vm) if t in tags]
            if not idx:
                assert all(t in self.seen for t in tags), ('never issued', tags)
                return
            n = len(self.vm) - 1 - max(idx)
        assert n <= 63, n
        self.emit(f's_waitcnt vmcnt({n})')
        self.vm = self.vm[len(self.vm) - n:] if n else []
    def wait_lg(self, tags=None):
        if tags is None: n = 0
        else:
            if not isinstance(tags, (list, set)): tags = [tags]
            idx = [i for i, t in enumerate(self.lg) if t in tags]
            if not idx:
                assert all(t in self.seen for t in tags), ('never issued', tags)
                return
            n = len(self.lg) - 1 - max(idx)
        assert n <= 15, n
        self.emit(f's_waitcnt lgkmcnt({n})')
        self.lg = self.lg[len(self.lg) - n:] if n else []
    def flush_hazards(self):
        self.emit('s_nop 15');
    def text(self): return '\n'.join(self.lines) + '\n'

def v(i, n=1): return f'v{i}' if n == 1 else f'v[{i}:{i+n-1}]'
def a(i, n=1): return f'a{i}' if n == 1 else f'a[{i}:{i+n-1}]'
def s(i, n=1): return f's{i}' if n == 1 else f's[{i}:{i+n-1}]'
```

```python
import os
from asmlib import *
from layout import *

LOG2E = 0x3FB8AA3B
STF = os.environ.get('K0ST', 'sc1')
FLF = os.environ.get('K0FILL', 'sc1')
BIG = 0x40000000

def srd(A, d, lo, hi, size):
    A(f's_mov_b32 s{d}, s{lo}'); A(f's_mov_b32 s{d+1}, s{hi}')
    A(f's_mov_b32 s{d+2}, {size}'); A(f's_mov_b32 s{d+3}, 0x20000')

def gen_k0(code_sym, code_kb):
    A = Asm()
    NX, NW, NO = 64, 144, 36
    NWG = NX + NW + NO + 1
    A('s_cmp_ge_u32 s2, %d' % NWG)
    A('s_cbranch_scc1 K0_END')
    A('s_load_dwordx4 s[4:7], s[0:1], 0')
    A('s_load_dwordx4 s[8:11], s[0:1], 16')
    A('s_load_dwordx2 s[12:13], s[0:1], 40')
    A('s_load_dwordx2 s[14:15], s[0:1], 88')
    A('v_lshrrev_b32 v1, 6, v0')
    A('v_and_b32 v0, 63, v0')
    A('v_readfirstlane_b32 s3, v1')
    A('s_lshl_b32 s16, s2, 2')
    A('s_add_u32 s16, s16, s3')
    A('v_lshlrev_b32 v2, 4, v0')
    A('s_waitcnt lgkmcnt(0)')
    srd(A, 20, 14, 15, FILL_OFF)
    srd(A, 32, 14, 15, FILL_END)
    A('s_cmp_lt_u32 s2, %d' % NX)
    A('s_cbranch_scc1 K0_X')
    A('s_cmp_lt_u32 s2, %d' % (NX + NW))
    A('s_cbranch_scc1 K0_W')
    A('s_cmp_lt_u32 s2, %d' % (NX + NW + NO))
    A('s_cbranch_scc1 K0_O')
    A('s_branch K0_M')

    def fills():
        A('s_mul_i32 s17, s16, 7168')
        A('s_add_u32 s17, s17, %d' % FILL_OFF)
        A('v_mov_b32 v4, -1'); A('v_mov_b32 v5, -1'); A('v_mov_b32 v6, -1'); A('v_mov_b32 v7, -1')
        A('v_add_u32 v3, s17, v2')
        for i in range(4):
            A(f'buffer_store_dwordx4 v[4:7], v3, s[32:35], 0 offen offset:{i*1024} {FLF}', 'fill')
        A('s_mov_b32 s18, 4096')
        for i in range(3):
            A(f'buffer_store_dwordx4 v[4:7], v3, s[32:35], s18 offen offset:{i*1024} {FLF}', 'fill')
        A('s_lshr_b32 s17, s2, 3'); A('s_lshl_b32 s17, s17, 2'); A('s_add_u32 s17, s17, s3')
        A(f's_min_u32 s17, s17, {code_kb-1}')
        A('s_getpc_b64 s[18:19]')
        lab = A.newlabel('K0_PC'); A.label(lab)
        A(f's_add_u32 s18, s18, {code_sym}-{lab}')
        A('s_addc_u32 s19, s19, 0')
        A('s_lshl_b32 s17, s17, 10')
        A('v_add_u32 v3, s17, v2')
        A('global_load_dwordx4 v[8:11], v3, s[18:19]', 'pf')

    A.label('K0_X')
    A.vm = []
    srd(A, 24, 4, 5, 2048*1152)
    A('s_lshl_b32 s17, s16, 3')
    A('v_lshrrev_b32 v12, 3, v0')
    A('v_add_u32 v12, s17, v12')
    A('v_and_b32 v13, 7, v0')
    A('v_mul_u32_u24 v14, 1152, v12')
    A('v_lshl_add_u32 v14, v13, 4, v14')
    X = 16
    for i in range(9):
        A(f'buffer_load_dwordx4 v[{X+4*i}:{X+4*i+3}], v14, s[24:27], 0 offen offset:{i*128}', 'x')
    fills()
    A('v_lshrrev_b32 v15, 4, v12')
    A('v_mul_u32_u24 v15, 18432, v15')
    A('v_and_b32 v12, 15, v12')
    A('v_lshl_add_u32 v15, v12, 4, v15')
    A('v_lshrrev_b32 v12, 2, v13')
    A('v_lshl_add_u32 v15, v12, 10, v15')
    A('v_and_b32 v12, 3, v13')
    A('v_lshl_add_u32 v15, v12, 8, v15')
    A('s_mov_b32 s17, 0x3f803f80')
    for r in range(56, 64): A(f'v_mov_b32 v{r}, 0')
    A.wait_vm('x')
    for k in range(36):
        A(f'v_dot2c_f32_bf16 v{56+(k&3)}, s17, v{X+k}')
        A(f'v_dot2c_f32_bf16 v{60+(k&3)}, v{X+k}, v{X+k}')
    A('v_add_f32 v56, v56, v57'); A('v_add_f32 v58, v58, v59'); A('v_add_f32 v60, v60, v61'); A('v_add_f32 v62, v62, v63')
    A('v_add_f32 v56, v56, v58'); A('v_add_f32 v60, v60, v62')
    for mod in ('quad_perm:[1,0,3,2]', 'quad_perm:[2,3,0,1]', 'row_half_mirror'):
        A(f'v_add_f32_dpp v56, v56, v56 {mod} row_mask:0xf bank_mask:0xf')
        A(f'v_add_f32_dpp v60, v60, v60 {mod} row_mask:0xf bank_mask:0xf')
    A('s_mov_b32 s17, 0x%08x' % 0x3AE38E39)
    A('v_mul_f32 v56, s17, v56')
    A('v_mul_f32 v60, s17, v60')
    A('v_fma_f32 v60, -v56, v56, v60')
    A('v_add_f32 v60, 0x3727c5ac, v60')
    A('v_rsq_f32 v60, v60')
    A('v_mul_f32 v56, v56, v60')
    A('v_sub_f32 v56, 0, v56')
    for i in range(9):
        for k in range(4):
            r = X + 4*i + k
            A(f'v_lshlrev_b32 v57, 16, v{r}')
            A(f'v_and_b32 v58, 0xffff0000, v{r}')
            A('v_fma_f32 v57, v57, v60, v56')
            A('v_fma_f32 v58, v58, v60, v56')
            A(f'v_cvt_pk_bf16_f32 v{r}, v57, v58')
        off = (i & 1) * 2048
        A(f'buffer_store_dwordx4 v[{X+4*i}:{X+4*i+3}], v15, s[20:23], 0 offen offset:{off} {STF}', 'st')
        if i & 1: A('v_add_u32 v15, 4096, v15')
    A('s_endpgm')

    A.label('K0_W')
    A.vm = []
    srd(A, 24, 6, 7, 576*3456)
    srd(A, 28, 8, 9, 32*648)
    A(f's_sub_u32 s17, s16, {NX*4}')
    A('s_mul_hi_u32 s36, s17, 0x%x' % ((1 << 32)//36 + 1))
    A('s_mul_i32 s37, s36, 36')
    A('s_sub_u32 s37, s17, s37')
    A('v_and_b32 v12, 15, v0')
    A('v_lshrrev_b32 v13, 4, v0')
    A('s_lshl_b32 s38, s37, 4')
    A('v_add_u32 v14, s38, v12')
    A('v_mul_u32_u24 v14, 3456, v14')
    A('v_lshl_add_u32 v14, v13, 4, v14')
    A('s_mul_i32 s38, s36, 72')
    A('v_add_u32 v14, s38, v14')
    AF = 16
    for sec in range(3):
        for hd in range(2):
            r = AF + (sec*2+hd)*4
            A(f'buffer_load_dwordx4 v[{r}:{r+3}], v14, s[24:27], 0 offen offset:{sec*1152+hd*36}', 'a')
    A('v_mul_u32_u24 v15, 288, v13')
    A('v_lshl_add_u32 v15, v12, 1, v15')
    A('s_mul_i32 s38, s36, 1296')
    A('v_add_u32 v15, s38, v15')
    A('v_mov_b32 v41, %d' % BIG)
    A('v_cmp_gt_u32 vcc, 9, v12')
    A('v_cndmask_b32 v15, v41, v15, vcc')
    A('v_cmp_gt_u32 vcc, 3, v13')
    A('v_cndmask_b32 v15, v41, v15, vcc')
    A('v_cmp_gt_u32 vcc, 2, v13')
    A('v_cndmask_b32 v40, v41, v15, vcc')
    BF = 44
    for hd in range(2):
        for p in range(2):
            for jj in range(8):
                r = 96 + (hd*2+p)*8 + jj
                va = 'v15' if jj < 2 else 'v40'
                A(f'buffer_load_ushort v{r}, {va}, s[28:31], 0 offen offset:{(hd*324+jj*18+9*p)*2}', 'b')
    fills()
    A('v_lshlrev_b32 v42, 3, v13')
    A('v_sub_u32 v42, v12, v42')
    A('v_mov_b32 v43, 100')
    A('v_cmp_gt_u32 vcc, 9, v12')
    A('v_cndmask_b32 v42, v43, v42, vcc')
    A('v_mov_b32 v68, 0x3f80'); A('v_mov_b32 v69, 0x3f800000'); A('v_mov_b32 v70, 0')
    for p in range(2):
        if p == 1: A('v_add_u32 v42, 9, v42')
        for m in range(4):
            r = 60 + p*4 + m
            A(f'v_cmp_eq_u32 vcc, {2*m}, v42')
            A(f'v_cndmask_b32 v{r}, v70, v68, vcc')
            A(f'v_cmp_eq_u32 vcc, {2*m+1}, v42')
            A(f'v_cndmask_b32 v{r}, v{r}, v69, vcc')
    A('s_lshr_b32 s38, s37, 1')
    A('s_mul_i32 s39, s38, 5120')
    A('s_lshl_b32 s40, s38, 11')
    A('s_add_u32 s40, s40, %d' % (92160 - 5*1024))
    A('s_mul_i32 s41, s36, %d' % WP_J)
    A('s_add_u32 s41, s41, %d' % WP_OFF)
    A('s_and_b32 s42, s37, 1')
    A('s_lshl_b32 s42, s42, 9')
    A('s_add_u32 s41, s41, s42')
    A('v_lshrrev_b32 v74, 1, v13')
    A('v_lshlrev_b32 v74, 8, v74')
    A('v_and_b32 v75, 1, v13')
    A('v_lshl_add_u32 v74, v75, 3, v74')
    A('v_add_u32 v74, s41, v74')
    for sec, base, r in ((1, 0, 71), (2, 9, 72), (0, 18, 73)):
        A(f'v_add_u32 v75, {base}, v12')
        A('v_lshrrev_b32 v76, 2, v75')
        A('v_and_b32 v75, 3, v75')
        A('v_lshlrev_b32 v75, 4, v75')
        A('v_lshl_add_u32 v75, v76, 10, v75')
        A('v_mov_b32 v77, s39'); A('v_mov_b32 v78, s40')
        A('v_cmp_gt_u32 vcc, 5, v76')
        A('v_cndmask_b32 v77, v78, v77, vcc')
        A('v_add3_u32 v75, v75, v77, v74')
        A('v_cmp_gt_u32 vcc, 9, v12')
        A(f'v_cndmask_b32 v{r}, v41, v75, vcc')
    A.wait_vm(['a', 'b'])
    for q in range(16):
        A(f'v_lshl_or_b32 v{BF+q}, v{96+2*q+1}, 16, v{96+2*q}')
    A('s_mov_b32 s38, 0x%08x' % LOG2E)
    D = 80
    for sec in range(3):
        for hd in range(2):
            for p in range(2):
                d = D + ((sec*2+hd)*2+p)*4
                af = AF + (sec*2+hd)*4
                bf = (60 + p*4) if sec == 2 else BF + (hd*2+p)*4
                A(f'v_mfma_f32_16x16x32_bf16 v[{d}:{d+3}], v[{af}:{af+3}], v[{bf}:{bf+3}], 0')
    for sec in range(3):
        ar = {1: 71, 2: 72, 0: 73}[sec]
        for hd in range(2):
            for p in range(2):
                d = D + ((sec*2+hd)*2+p)*4
                if sec != 2:
                    for b in range(4): A(f'v_mul_f32 v{d+b}, s38, v{d+b}')
                A(f'v_cvt_pk_bf16_f32 v{d}, v{d}, v{d+1}')
                A(f'v_cvt_pk_bf16_f32 v{d+1}, v{d+2}, v{d+3}')
                A(f'buffer_store_dwordx2 v[{d}:{d+1}], v{ar}, s[20:23], 0 offen offset:{64*(2*hd+p)} {STF}', 'st')
    A('s_endpgm')

    A.label('K0_O')
    A.vm = []
    srd(A, 24, 10, 11, 576*1152)
    A(f's_sub_u32 s17, s16, {(NX+NW)*4}')
    A('s_mul_hi_u32 s36, s17, 0x%x' % ((1 << 32)//9 + 1))
    A('s_mul_i32 s37, s36, 9')
    A('s_sub_u32 s37, s17, s37')
    A('s_mov_b32 s44, s17')
    A('s_lshr_b32 s38, s36, 2')
    A('s_and_b32 s39, s36, 3')
    A('v_and_b32 v12, 15, v0'); A('v_lshrrev_b32 v13, 4, v0')
    A('v_lshrrev_b32 v14, 1, v13')
    A('s_lshl_b32 s40, s39, 3')
    A('v_add_u32 v14, s40, v14')
    A('v_mul_u32_u24 v14, 18, v14')
    A('v_and_b32 v15, 1, v13')
    A('v_mad_u32_u24 v14, v15, 9, v14')
    A('v_mul_u32_u24 v14, 1152, v14')
    A('s_mul_i32 s40, s38, 288'); A('s_lshl_b32 s41, s37, 5'); A('s_add_u32 s40, s40, s41')
    A('v_lshl_add_u32 v14, v12, 1, v14')
    A('v_add_u32 v14, s40, v14')
    O = 16
    for u in range(4):
        for jj in range(8):
            A(f's_mov_b32 s{42+(jj&1)}, {(36*u+jj)*1152}')
            A(f'buffer_load_ushort v{40+8*u+jj}, v14, s[24:27], s{42+(jj&1)} offen', 'o')
    for i in range(4):
        A(f's_mov_b32 s{42+(i&1)}, {(36*i+8)*1152}')
        A(f'buffer_load_ushort v{O+16+i}, v14, s[24:27], s{42+(i&1)} offen', 'o')
    fills()
    A('s_mul_i32 s40, s44, 5120'); A('s_add_u32 s40, s40, %d' % WOP_OFF)
    A('v_add_u32 v14, s40, v2')
    A.wait_vm('o')
    for q in range(16):
        A(f'v_lshl_or_b32 v{O+q}, v{40+2*q+1}, 16, v{40+2*q}')
    for u in range(4):
        A(f'buffer_store_dwordx4 v[{O+4*u}:{O+4*u+3}], v14, s[20:23], 0 offen offset:{u*1024} {STF}', 'st')
    A('v_add_u32 v14, 4096, v14')
    A(f'buffer_store_dwordx4 v[{O+16}:{O+19}], v14, s[20:23], 0 offen {STF}', 'st')
    A('s_endpgm')

    A.label('K0_M')
    A.vm = []
    srd(A, 24, 12, 13, 1152)
    A('v_lshlrev_b32 v12, 2, v0')
    for i in range(5):
        A(f'buffer_load_dword v{16+i}, v12, s[24:27], 0 offen offset:{i*256}', 'm')
    fills()
    L = 'K0_END'
    A('s_cmp_lg_u32 s3, 0'); A(f's_cbranch_scc1 {L}')
    A('s_mov_b32 s17, 0x3f803f80')
    A('v_mov_b32 v24, 0')
    A.wait_vm('m')
    for i in range(5): A(f'v_dot2c_f32_bf16 v24, s17, v{16+i}')
    for mod in ('quad_perm:[1,0,3,2]', 'quad_perm:[2,3,0,1]', 'row_half_mirror', 'row_mirror'):
        A(f'v_add_f32_dpp v24, v24, v24 {mod} row_mask:0xf bank_mask:0xf')
    A('v_mov_b32 v25, v24'); A('v_permlane16_swap_b32 v24, v25'); A('v_add_f32 v24, v24, v25')
    A('v_mov_b32 v25, v24'); A('v_permlane32_swap_b32 v24, v25'); A('v_add_f32 v24, v24, v25')
    A('s_mov_b32 s17, 0x%08x' % 0x3AE38E39)
    A('v_mul_f32 v24, s17, v24')
    A('v_lshlrev_b32 v12, 3, v0')
    A('v_add_u32 v12, %d, v12' % WRC_OFF)
    for i in range(5):
        A(f'v_lshlrev_b32 v26, 16, v{16+i}'); A(f'v_and_b32 v27, 0xffff0000, v{16+i}')
        A('v_sub_f32 v26, v26, v24'); A('v_sub_f32 v27, v27, v24')
        A(f'buffer_store_dwordx2 v[26:27], v12, s[20:23], 0 offen offset:{i*512} {STF}', 'st')
        A('s_nop 1')
    A.label('K0_END')
    A('s_endpgm')
    return A.text(), NWG
```

```python
import os
from asmlib import *
from layout import *
from k0 import srd, BIG

SPIN = 3000
LOG2E = 0x3FB8AA3B

L_W    = 0
L_IMG  = 0
L_RED  = 0
L_GU   = 73728
L_DN   = 0
L_R2   = 36864
L_KVT  = 147456
L_ZERO = L_KVT + 48*96
L_STAT = L_ZERO + 64
L_WMAX = L_STAT + 2048
L_RANK = L_WMAX + 64
L_AIMG = L_RANK + 128
L_FIN  = L_AIMG + 512
LDS_BYTES = 163840
assert L_FIN + 1024 <= LDS_BYTES

NV = 112
ACC = 16
def acc(T, tt): return ACC + (T*2+tt)*4
WF = 72
NCT_H = 6

class K1:
    def __init__(self, stop=None, prof=False):
        self.A = Asm(); self.stop = stop; self.prof = prof; self.stamps = []
        self.PF = int(os.environ.get('PF', 5))
        self.nbar = 0

    def stamp(self, name):
        if not self.prof: return
        if name in os.environ.get('NOSTAMP', '').split(','): return
        if name in self.stamps: i = self.stamps.index(name)
        else:
            i = len(self.stamps); assert i < 19
            self.stamps.append(name)
        op = 's_memtime' if os.environ.get('CYC') else 's_memrealtime'
        self.A(f'{op} s[{64+2*i}:{65+2*i}]')
    def poll_begin(self):
        A = self.A
        L = A.newlabel('POLL')
        A(f's_mov_b32 s62, {SPIN}')
        A.label(L)
        return L
    def poll_end(self, L):
        A = self.A
        D = A.newlabel('PDONE')
        A(f's_cbranch_vccz {D}')
        A('s_sub_u32 s62, s62, 1')
        A(f's_cbranch_scc1 {D}')
        A('s_sleep 1')
        A(f's_branch {L}')
        A.label(D)
    def waitall_vm(self):
        self.A('s_waitcnt vmcnt(0)'); self.A.vm = []
    def bar(self):
        self.A('s_barrier'); self.nbar += 1
    def barrier(self):
        self.A.wait_lg(); self.bar()
    def xsum_g(self, regs, tmp):
        A = self.A
        for swap in ('v_permlane16_swap_b32', 'v_permlane32_swap_b32'):
            for i, r in enumerate(regs): A(f'v_mov_b32 v{tmp+i}, v{r}')
            for i, r in enumerate(regs): A(f'{swap} v{r}, v{tmp+i}')
            for i, r in enumerate(regs): A(f'v_add_f32 v{r}, v{r}, v{tmp+i}')

    def prologue(self):
        A = self.A
        A('s_cmp_ge_u32 s2, 256'); A('s_cbranch_scc1 K1_END')
        A('s_load_dwordx2 s[4:5], s[0:1], 0')
        A('s_load_dwordx4 s[8:11], s[0:1], 48')
        A('s_load_dwordx4 s[12:15], s[0:1], 64')
        A('s_load_dwordx2 s[6:7], s[0:1], 88')
        A('v_mov_b32 v4, v0')
        A('v_lshrrev_b32 v1, 6, v0')
        A('v_and_b32 v0, 63, v0')
        A('v_readfirstlane_b32 s3, v1')
        A('v_lshlrev_b32 v1, 4, v0')
        A('s_and_b32 s44, s2, 7'); A('s_lshr_b32 s45, s2, 3')
        A('s_lshr_b32 s40, s44, 1'); A('s_lshl_b32 s40, s40, 2'); A('s_lshr_b32 s46, s45, 3'); A('s_add_u32 s40, s40, s46')
        A('s_and_b32 s41, s44, 1'); A('s_lshl_b32 s41, s41, 3'); A('s_and_b32 s46, s45, 7'); A('s_add_u32 s41, s41, s46')
        A('s_lshl_b32 s42, s44, 3'); A('s_lshr_b32 s46, s45, 2'); A('s_add_u32 s42, s42, s46')
        A('s_and_b32 s43, s45, 3')
        A('s_and_b32 s55, s3, 3')
        A('v_and_b32 v2, 15, v0')
        A('v_lshrrev_b32 v3, 4, v0')
        A('s_waitcnt lgkmcnt(0)')
        srd(A, 16, 6, 7, WS_USED)

    def other_srds(self):
        A = self.A
        srd(A, 20, 4, 5, 2048*1152)
        srd(A, 24, 14, 15, 2048*1152)
        srd(A, 28, 8, 9, 576*9216)
        srd(A, 32, 10, 11, 576*9216)
        srd(A, 36, 12, 13, 4608*1152)

    steps_for_chunk = [[0,1,2],[3,4,5],[6,7,8],[9,10,11],[12,13,14,15],[16,17]]

    def c_gemm1(self):
        A = self.A
        A('s_lshl_b32 s46, s40, 3'); A('s_lshl_b32 s47, s55, 1'); A('s_add_u32 s46, s46, s47')
        A('s_mul_i32 s46, s46, 18432')
        A('v_add_u32 v5, s46, v1')
        def xload1(s_, tt):
            A(f's_mov_b32 s49, {tt*18432 + (s_//4)*4096}')
            r = (tt*18+s_)*4
            A(f'buffer_load_dwordx4 a[{r}:{r+3}], v5, s[16:19], s49 offen offset:{(s_%4)*1024}', ('x', s_))
        todo = [(s_, tt) for s_ in range(18) for tt in range(2)]
        P = self.PF
        def issue_upto(step, maxn=None):
            n = 0
            while todo and todo[0][0] <= step and (maxn is None or n < maxn):
                xload1(*todo.pop(0)); n += 1
        issue_upto(P - 1)
        self.other_srds()
        A('v_add_u32 v6, 0x10000, v1')
        def wread(frag, dst, tag):
            if frag < 64: A(f'ds_read_b128 v[{dst}:{dst+3}], v1 offset:{frag*1024}', tag)
            else: A(f'ds_read_b128 v[{dst}:{dst+3}], v6 offset:{(frag-64)*1024}', tag)
        self.wread = wread
        chunk_of = {}
        for c, ss in enumerate(self.steps_for_chunk):
            for s_ in ss: chunk_of[s_] = c
        fill = self.c_setup_list()
        self.stamp('issued')
        self.bar()
        self.stamp('chunk0')
        for T in range(5): wread(T, WF + 4*T, ('r', 0, T))
        for s_ in range(18):
            buf = WF + (s_ & 1)*20; nbuf = WF + ((s_+1) & 1)*20
            for T in range(5):
                A.wait_lg(('r', s_, T))
                if T == 0: A.wait_vm(('x', s_))
                for tt in range(2):
                    d = acc(T, tt); x = (tt*18+s_)*4
                    c = '0' if s_ == 0 else f'v[{d}:{d+3}]'
                    A(f'v_mfma_f32_16x16x32_bf16 v[{d}:{d+3}], v[{buf+4*T}:{buf+4*T+3}], a[{x}:{x+3}], {c}')
                if s_ + 1 < 18:
                    if T == 0 and chunk_of[s_+1] != chunk_of[s_]: self.bar()
                    wread((s_+1)*5+T, nbuf + 4*T, ('r', s_+1, T))
                if T in (1, 3): issue_upto(s_ + P, 1)
                if T in (2, 4) and fill and s_ >= 1: A(fill.pop(0))
            issue_upto(s_ + P)
        for f in fill: A(f)

    def c_setup_list(self):
        f = []
        f += ['v_and_b32 v14, 1, v3', 'v_cmp_eq_u32 vcc, 0, v14', 'v_mov_b32 v15, 1.0', 's_nop 0', 'v_cndmask_b32 v7, 0, v15, vcc']
        f += ['s_lshl_b32 s46, s55, 5', 'v_add_u32 v8, s46, v2', 'v_mul_u32_u24 v8, 288, v8', 'v_lshl_add_u32 v8, v3, 6, v8']
        return f

    def c_setup2(self):
        A = self.A
        t0, t1, t2, t3, t4 = 100, 101, 102, 103, 104
        A(f'v_lshrrev_b32 v{t0}, 2, v2')
        A(f'v_and_b32 v{t1}, 3, v2')
        A(f'v_lshrrev_b32 v{t2}, 1, v{t0}')
        A(f'v_and_b32 v{t0}, 1, v{t0}')
        A(f'v_lshrrev_b32 v{t3}, 1, v3')
        A(f'v_cmp_eq_u32 s[52:53], v{t2}, v{t3}')
        A(f'v_mul_u32_u24 v{t2}, 24, v{t2}')
        A(f'v_and_b32 v{t3}, 1, v3'); A(f'v_mul_u32_u24 v{t3}, 48, v{t3}')
        A(f'v_add_u32 v{t3}, {L_KVT}, v{t3}')
        A(f'v_mov_b32 v{t4}, {L_ZERO}')
        for To in range(3):
            A(f'v_add_u32 v14, {4*To}, v{t1}')
            A(f'v_mad_u32_u24 v15, v{t0}, 12, v14')
            A('v_cmp_eq_u32 vcc, 9, v14'); A('v_cndmask_b32 v15, v15, v14, vcc')
            A(f'v_add_u32 v15, v{t2}, v15'); A('v_mul_u32_u24 v15, 96, v15'); A(f'v_add_u32 v15, v15, v{t3}')
            A('v_cmp_ge_u32 vcc, 9, v14'); A('s_and_b64 vcc, vcc, s[52:53]')
            A(f'v_cndmask_b32 v{9+To}, v{t4}, v15, vcc')
        A('s_lshl_b32 s46, s40, 3'); A('s_lshl_b32 s47, s55, 1'); A('s_add_u32 s46, s46, s47')
        A('s_lshl_b32 s46, s46, 4'); A('s_add_u32 s46, s46, s41')
        A('s_lshl_b32 s47, s46, 10'); A(f's_add_u32 s47, s47, {OPM_OFF}'); A('v_add_u32 v12, s47, v1')
        A('s_lshl_b32 s47, s46, 8'); A(f's_add_u32 s47, s47, {OPT_OFF}'); A('v_lshlrev_b32 v13, 2, v0'); A('v_add_u32 v13, s47, v13')

    def c_part2(self):
        A = self.A; wread = self.wread
        for T in range(2): wread(90 + T, WF + 4*T, ('r2', 0, T))
        for s_ in range(18):
            buf = WF + (s_ & 1)*8; nbuf = WF + ((s_+1) & 1)*8
            for T in range(2):
                A.wait_lg(('r2', s_, T))
                for tt in range(2):
                    d = acc(5+T, tt); x = (tt*18+s_)*4
                    c = '0' if s_ == 0 else f'v[{d}:{d+3}]'
                    A(f'v_mfma_f32_16x16x32_bf16 v[{d}:{d+3}], v[{buf+4*T}:{buf+4*T+3}], a[{x}:{x+3}], {c}')
                if s_ + 1 < 18: wread(90 + (s_+1)*2+T, nbuf + 4*T, ('r2', s_+1, T))

    def softmax9(self, r, out, t0):
        A = self.A
        ep = [t0 + 2*i for i in range(9)]; em = [t0 + 2*i + 1 for i in range(9)]
        mx, mn, t1, t2 = t0+18, t0+19, t0+20, t0+21
        assert t0 % 2 == 0
        A(f'v_max3_f32 v{mx}, v{r[0]}, v{r[1]}, v{r[2]}'); A(f'v_min3_f32 v{mn}, v{r[0]}, v{r[1]}, v{r[2]}')
        A(f'v_max3_f32 v{t1}, v{r[3]}, v{r[4]}, v{r[5]}'); A(f'v_min3_f32 v{t2}, v{r[3]}, v{r[4]}, v{r[5]}')
        A(f'v_max3_f32 v{mx}, v{mx}, v{r[6]}, v{r[7]}'); A(f'v_min3_f32 v{mn}, v{mn}, v{r[6]}, v{r[7]}')
        A(f'v_max3_f32 v{mx}, v{mx}, v{t1}, v{r[8]}'); A(f'v_min3_f32 v{mn}, v{mn}, v{t2}, v{r[8]}')
        A(f'v_mov_b32 v{t1}, v{mx}'); A(f'v_mov_b32 v{t2}, v{mn}')
        A(f'v_permlane16_swap_b32 v{mx}, v{t1}'); A(f'v_permlane16_swap_b32 v{mn}, v{t2}')
        A(f'v_max_f32 v{mx}, v{mx}, v{t1}'); A(f'v_min_f32 v{mn}, v{mn}, v{t2}')
        for i in range(9):
            A(f'v_sub_f32 v{ep[i]}, v{r[i]}, v{mx}'); A(f'v_sub_f32 v{em[i]}, v{mn}, v{r[i]}')
        for i in range(9):
            A(f'v_exp_f32 v{ep[i]}, v{ep[i]}'); A(f'v_exp_f32 v{em[i]}, v{em[i]}')
        A(f'v_pk_add_f32 v[{mx}:{mn}], v[{ep[0]}:{em[0]}], v[{ep[1]}:{em[1]}]')
        A(f'v_pk_add_f32 v[{t1}:{t2}], v[{ep[2]}:{em[2]}], v[{ep[3]}:{em[3]}]')
        for i in (4, 6):
            A(f'v_pk_add_f32 v[{mx}:{mn}], v[{mx}:{mn}], v[{ep[i]}:{em[i]}]')
            A(f'v_pk_add_f32 v[{t1}:{t2}], v[{t1}:{t2}], v[{ep[i+1]}:{em[i+1]}]')
        A(f'v_pk_add_f32 v[{mx}:{mn}], v[{mx}:{mn}], v[{ep[8]}:{em[8]}]')
        A(f'v_pk_add_f32 v[{mx}:{mn}], v[{mx}:{mn}], v[{t1}:{t2}]')
        A(f'v_mov_b32 v{t1}, v{mx}'); A(f'v_mov_b32 v{t2}, v{mn}')
        A(f'v_permlane16_swap_b32 v{mx}, v{t1}'); A(f'v_permlane16_swap_b32 v{mn}, v{t2}')
        A(f'v_pk_add_f32 v[{mx}:{mn}], v[{mx}:{mn}], v[{t1}:{t2}]')
        A(f'v_rcp_f32 v{mx}, v{mx}'); A(f'v_rcp_f32 v{mn}, v{mn}')
        for i in range(9):
            A(f'v_pk_mul_f32 v[{ep[i]}:{em[i]}], v[{ep[i]}:{em[i]}], v[{mx}:{mn}]')
        for k, e in enumerate((ep, em)):
            for m in range(4): A(f'v_cvt_pk_bf16_f32 v{out+5*k+m}, v{e[2*m]}, v{e[2*m+1]}')
            A(f'v_cvt_pk_bf16_f32 v{out+5*k+4}, v{e[8]}, 0')

    def kregs(self, tt, base):
        return [acc((base+i) >> 2, tt) + ((base+i) & 3) for i in range(9)]

    def c_program(self):
        A = self.A
        self.c_gemm1()
        self.stamp('gemm1')
        self.bar()
        B, TMP = 72, 88
        for tt in range(2):
            self.softmax9(self.kregs(tt, 0), B, TMP)
            vv = self.kregs(tt, 9)
            for m in range(4): A(f'v_cvt_pk_bf16_f32 v{B+10+m}, v{vv[2*m]}, v{vv[2*m+1]}')
            A(f'v_cvt_pk_bf16_f32 v{B+14}, v{vv[8]}, v7')
            A(f'v_mov_b32 v{B+15}, 0')
            for q in range(4):
                A(f'ds_write_b128 v8, v[{B+4*q}:{B+4*q+3}] offset:{L_IMG + tt*16*288 + 16*q}', 'img')
            if tt == 0: A.wait_lg()
        self.stamp('softk')
        self.barrier()
        self.c_part2()
        self.stamp('gemm2')
        self.c_setup2()
        for tt in range(2):
            P = 16 + 12*tt
            self.softmax9(self.kregs(tt, 18), P, 88)
            A(f'v_mov_b32 v{P+10}, 0'); A(f'v_mov_b32 v{P+11}, 0')
        self.stamp('softq')
        self.wo_loads(NCT_H, 9 - NCT_H)
        self.bar()
        self.stamp('h1')
        AF, D = 40, 76
        for To in range(3):
            for s2 in range(3):
                a_ = AF + (To*3+s2)*4
                A(f'ds_read_b128 v[{a_}:{a_+3}], v{9+To} offset:{16*s2}', ('s2', To))
        for tt in range(2):
            P = 16 + 12*tt; Dt = D + 12*tt
            for To in range(3):
                if tt == 0: A.wait_lg(('s2', To))
                for s2 in range(3):
                    a_ = AF + (To*3+s2)*4; d = Dt + 4*To
                    c = '0' if s2 == 0 else f'v[{d}:{d+3}]'
                    A(f'v_mfma_f32_16x16x32_bf16 v[{d}:{d+3}], v[{a_}:{a_+3}], v[{P+4*s2}:{P+4*s2+3}], {c}')
        for tt in range(2):
            Dt = D + 12*tt; O = 100 + 6*tt
            A(f'v_add_f32 v14, 0x358637bd, v{Dt+9}')
            A('v_rcp_f32 v14, v14')
            for i in range(9): A(f'v_mul_f32 v{Dt+i}, v{Dt+i}, v14')
            O = 40 + 8*tt
            for m in range(4): A(f'v_cvt_pk_bf16_f32 v{O+m}, v{Dt+2*m}, v{Dt+2*m+1}')
            A(f'v_cvt_pk_bf16_f32 v{O+4}, v{Dt+8}, 0')
            A(f's_mov_b32 s46, {tt*16384}'); A(f's_mov_b32 s47, {tt*4096}')
            A(f'buffer_store_dwordx4 v[{O}:{O+3}], v12, s[16:19], s46 offen sc1', 'op')
            A(f'buffer_store_dword v{O+4}, v13, s[16:19], s47 offen sc1', 'op')
        self.stamp('opub')

    def wo_loads(self, ct0, n, i0=0, i1=None, areg=14):
        A = self.A
        if i1 is None: i1 = n*5
        if i0 == 0:
            A('s_lshl_b32 s46, s43, 2'); A('s_add_u32 s46, s46, s55'); A('s_mul_i32 s46, s46, 9'); A(f's_add_u32 s46, s46, {ct0}')
            A('s_mul_i32 s46, s46, 5120'); A(f's_add_u32 s46, s46, {WOP_OFF}')
            A(f'v_add_u32 v{areg}, s46, v1')
        for i in range(i0, i1):
            if i % 4 == 0 or i == i0: A(f's_mov_b32 s47, {(i//4)*4096}')
            A(f'buffer_load_dwordx4 a[{4*i}:{4*i+3}], v{areg}, s[16:19], s47 offen offset:{(i%4)*1024}', 'wo')

    def h_program(self):
        A = self.A
        A(f's_mul_i32 s46, s41, {WP_J}'); A(f's_add_u32 s46, s46, {WP_OFF}')
        A('s_lshl_b32 s54, s55, 12'); A('s_add_u32 s46, s46, s54')
        A('v_add_u32 v5, s46, v1')
        def dma(c):
            A(f's_add_u32 m0, s54, {c*16384}')
            A(f's_mov_b32 s48, {c*16384}')
            for i in range(4):
                A(f'buffer_load_dwordx4 v5, s[16:19], s48 offen offset:{i*1024} lds', ('w', c))
        LA = int(os.environ.get('LA', 3))
        for c in range(LA): dma(c)
        self.other_srds()
        n16 = (L_AIMG - L_KVT)//16
        for r in range(8, 12): A(f'v_mov_b32 v{r}, 0')
        A('v_subrev_u32 v12, 256, v4')
        A('v_lshlrev_b32 v13, 4, v12'); A(f'v_add_u32 v13, {L_KVT}, v13')
        A('ds_write_b128 v13, v[8:11]', 'z')
        A(f'v_cmp_gt_u32 vcc, {n16-256}, v12')
        A('s_and_saveexec_b64 s[50:51], vcc')
        A('ds_write_b128 v13, v[8:11] offset:4096', 'z')
        A('s_mov_b64 exec, s[50:51]')
        A.wait_lg()
        self.stamp('issued')
        for c in range(6):
            A.wait_vm(('w', c)); self.bar()
            if c == 0: self.stamp('chunk0')
            if c + LA < 6: dma(c + LA)
        self.h_setup()
        self.stamp('gemm1')
        self.bar()
        dma(6); dma(7)
        W1 = int(os.environ.get('W1', 8))
        self.wo_loads(0, NCT_H, 0, W1, areg=25)
        A.wait_vm([('w', 6), ('w', 7)])
        self.stamp('softk')
        self.bar()
        AFr, BFr, D = 32, 80, 96
        for ks in range(4):
            rl = []
            for h in range(2):
                b = BFr + 4*ks + 2*h
                rl.append((f'ds_read_b64_tr_b16 v[{b}:{b+1}], v17 offset:{L_IMG + ks*9216 + h*4608}', ('kb', ks)))
            for T in range(3):
                for h in range(2):
                    a_ = AFr + (ks*3+T)*4 + 2*h
                    rl.append((f'ds_read_b64_tr_b16 v[{a_}:{a_+1}], v{14+T} offset:{L_IMG + ks*9216 + h*4608}', ('ka', ks)))
            for x in rl[:4]: A(*x)
            if ks >= 1: self._kvm(ks-1, AFr, BFr, D)
            for x in rl[4:]: A(*x)
        self._kvm(3, AFr, BFr, D)
        for T in range(3):
            A(f'buffer_store_dwordx4 v[{D+4*T}:{D+4*T+3}], v{19 if T == 2 else 18}, s[16:19], 0 offen offset:{64*T} sc1', 'kvp')
        self.stamp('gemm2')
        self.wo_loads(0, NCT_H, W1, None, areg=25)
        LD = 32
        L1 = [96, 100, 104, 108, 24-0, 28, 8, 14+0]
        L1 = [96, 100, 104, 108, 28, 8, 14, 16]
        L1 = [96, 100, 104, 108, 28, 8, 14, 26]
        L1 = [96, 100, 104, 108, 28, 8, 14, 24]
        L = self.poll_begin()
        for m in range(16):
            A(f's_mov_b32 s{46+(m&1)}, {m*KVP_ONE}')
            A(f'buffer_load_dwordx4 v[{LD+4*m}:{LD+4*m+3}], v20, s[16:19], s{46+(m&1)} offen sc1', 'kv')
        for m in range(8):
            A(f's_mov_b32 s{46+(m&1)}, {m*KVP_ONE}')
            A(f'buffer_load_dwordx4 v[{L1[m]}:{L1[m]+3}], v22, s[16:19], s{46+(m&1)} offen sc1', 'kv')
        self.waitall_vm()
        def padd(d, s_):
            for b in (0, 2): A(f'v_pk_add_f32 v[{d+b}:{d+b+1}], v[{d+b}:{d+b+1}], v[{s_+b}:{s_+b+1}]')
        for st in (1, 2, 4, 8):
            for m in range(0, 16, 2*st): padd(LD+4*m, LD+4*(m+st))
        for st in (1, 2, 4):
            for m in range(0, 8, 2*st): padd(L1[m], L1[m+st])
        E = L1[0]
        for b in range(4): A(f'v_add_f32_dpp v{E+b}, v{E+b}, v{E+b} quad_perm:[1,0,3,2] row_mask:0xf bank_mask:0xf')
        A(f'v_add_f32 v18, v{LD}, v{LD+1}'); A(f'v_add_f32 v19, v{LD+2}, v{LD+3}'); A('v_add_f32 v18, v18, v19')
        A(f'v_add_f32 v19, v{E}, v{E+1}'); A('v_add_f32 v18, v18, v19'); A(f'v_add_f32 v19, v{E+2}, v{E+3}'); A('v_add_f32 v18, v18, v19')
        A('v_cmp_u_f32 vcc, v18, v18')
        self.poll_end(L)
        A(f'v_cvt_pk_bf16_f32 v18, v{LD}, v{LD+1}'); A(f'v_cvt_pk_bf16_f32 v19, v{LD+2}, v{LD+3}')
        A('ds_write_b64 v21, v[18:19]', 'kvt')
        A(f'v_cvt_pk_bf16_f32 v26, v{E}, v{E+1}'); A(f'v_cvt_pk_bf16_f32 v27, v{E+2}, v{E+3}')
        A('v_cmp_gt_u32 vcc, 248, v12')
        A('s_and_saveexec_b64 s[50:51], vcc')
        A('ds_write_b64 v23, v[26:27]', 'kvt')
        A('s_mov_b64 exec, s[50:51]')
        A.wait_lg()
        self.stamp('softq')
        self.bar()
        self.stamp('h1')
        self.stamp('opub')

    def _kvm(self, ks, AFr, BFr, D):
        A = self.A
        A.wait_lg([('kb', ks), ('ka', ks)])
        for T in range(3):
            a_ = AFr + (ks*3+T)*4; b = BFr + 4*ks; d = D + 4*T
            c = '0' if ks == 0 else f'v[{d}:{d+3}]'
            A(f'v_mfma_f32_16x16x32_bf16 v[{d}:{d+3}], v[{a_}:{a_+3}], v[{b}:{b+3}], {c}')

    def h_setup(self):
        A = self.A
        A('v_lshrrev_b32 v9, 2, v0')
        A('v_mul_u32_u24 v9, 288, v9')
        A('s_lshr_b32 s46, s55, 1'); A('s_lshl_b32 s47, s46, 7')
        A('v_add_u32 v9, s47, v9')
        A('v_and_b32 v10, 3, v0')
        for T in range(3):
            A(f'v_add_u32 v11, {4*T}, v10'); A('v_lshlrev_b32 v24, 3, v11'); A('v_add_u32 v13, 24, v24')
            A('v_cmp_gt_u32 vcc, 5, v11'); A('v_cndmask_b32 v24, v13, v24, vcc')
            A(f'v_add_u32 v{14+T}, v9, v24')
        A('s_and_b32 s48, s55, 1'); A('s_lshl_b32 s47, s48, 2')
        A('v_add_u32 v11, s47, v10'); A('v_lshlrev_b32 v24, 3, v11')
        A('v_add_u32 v13, 80, v24'); A('v_add_u32 v24, 40, v24')
        A('v_cmp_gt_u32 vcc, 3, v11'); A('v_cndmask_b32 v24, v13, v24, vcc')
        A('v_mov_b32 v13, 40'); A('v_cmp_gt_u32 vcc, 6, v11'); A('v_cndmask_b32 v24, v13, v24, vcc')
        A('v_add_u32 v17, v9, v24')
        A('s_lshl_b32 s47, s48, 4')
        A('v_add_u32 v11, s47, v2')
        A('s_mul_i32 s48, s46, 24')
        A('v_add_u32 v24, s48, v11'); A('v_mul_u32_u24 v24, 10, v24'); A('v_add_u32 v24, v24, v3'); A('v_lshlrev_b32 v24, 4, v24')
        A('s_lshl_b32 s48, s41, 4'); A('s_add_u32 s48, s48, s40'); A(f's_mul_i32 s48, s48, {KVP_ONE}'); A(f's_add_u32 s48, s48, {KVP_OFF}')
        A('v_add_u32 v24, s48, v24')
        A(f'v_mov_b32 v13, {BIG}')
        A('v_subrev_u32 v19, 12, v11')
        A('v_cmp_gt_u32 s[52:53], 9, v19'); A('v_cmp_gt_u32 vcc, 10, v11'); A('s_or_b64 vcc, vcc, s[52:53]')
        A('v_cndmask_b32 v18, v13, v24, vcc')
        A('v_cmp_gt_u32 vcc, 2, v3'); A('v_cndmask_b32 v19, v13, v18, vcc')
        A(f's_mul_i32 s46, s41, {16*KVP_ONE}'); A(f's_add_u32 s46, s46, {KVP_OFF}')
        for rnd in range(2):
            ga, la = (20, 21) if rnd == 0 else (22, 23)
            if rnd == 0: A('v_mov_b32 v24, v12')
            else:
                A('v_lshrrev_b32 v24, 1, v12'); A('v_add_u32 v24, 256, v24'); A('v_min_u32 v24, 379, v24')
            A('v_mul_u32_u24 v8, 6554, v24'); A('v_lshrrev_b32 v8, 16, v8')
            A('v_mul_u32_u24 v9, 10, v8'); A('v_sub_u32 v9, v24, v9')
            A('v_cmp_le_u32 vcc, 19, v8'); A('v_cndmask_b32 v10, 0, 1, vcc')
            A('v_mul_u32_u24 v11, 19, v10'); A('v_sub_u32 v11, v8, v11')
            A('v_cmp_le_u32 vcc, 10, v11'); A('v_cndmask_b32 v13, 0, 2, vcc'); A('v_add_u32 v11, v11, v13')
            A('v_mad_u32_u24 v11, v10, 24, v11')
            A(f'v_mad_u32_u24 v{ga}, v11, 10, v9'); A(f'v_lshlrev_b32 v{ga}, 4, v{ga}')
            A(f'v_add_u32 v{ga}, s46, v{ga}')
            if rnd == 1:
                A('v_and_b32 v13, 1, v12'); A(f'v_mul_u32_u24 v13, {8*KVP_ONE}, v13'); A(f'v_add_u32 v{ga}, v{ga}, v13')
            A(f'v_mul_u32_u24 v{la}, 96, v11'); A(f'v_lshl_add_u32 v{la}, v9, 3, v{la}')
            A('v_cmp_le_u32 vcc, 5, v9'); A('v_cndmask_b32 v13, 0, 8, vcc'); A(f'v_add_u32 v{la}, v{la}, v13')
            A(f'v_add_u32 v{la}, {L_KVT}, v{la}')

    def dump(self, regs, slot):
        A = self.A
        A('s_lshl_b32 s60, s2, 3'); A('s_add_u32 s60, s60, s3'); A('s_mul_i32 s60, s60, 4096'); A(f's_add_u32 s60, s60, {DBG_OFF}')
        A('v_lshlrev_b32 v111, 2, v0'); A('v_add_u32 v111, s60, v111')
        for i, r in enumerate(regs):
            off = (slot+i)*256
            assert off < 4096
            if r[0] == 'a':
                A(f'v_accvgpr_read_b32 v110, {r}'); r = 'v110'
            A(f'buffer_store_dword {r}, v111, s[16:19], 0 offen offset:{off}')
            A('s_nop 1')

    def finish(self):
        A = self.A
        A.label('K1_FIN')
        if self.prof:
            self.stamp('end')
            A('s_waitcnt lgkmcnt(0)')
            A('s_lshl_b32 s60, s2, 3'); A('s_add_u32 s60, s60, s3'); A('s_lshl_b32 s60, s60, 7')
            A(f's_add_u32 s60, s60, {DBG_OFF + (8<<20)}')
            A('v_mov_b32 v110, s60')
            for i in range(len(self.stamps)):
                A(f'v_mov_b32 v111, s{64+2*i}')
                A(f'buffer_store_dword v111, v110, s[16:19], 0 offen offset:{4*i}')
        A.label('K1_END'); A('s_endpgm')
        return A.text()

def gen_k1(stop=None, prof=False):
    K = K1(stop, prof)
    global LAST; LAST = K
    A = K.A
    K.stamp('start')
    K.prologue()
    K.stamp('prolog')
    A('s_cmp_ge_u32 s3, 4'); A('s_cbranch_scc1 K1_H')
    vm0, lg0 = list(A.vm), list(A.lg)
    K.nbar = 0
    K.c_program()
    nb_c = K.nbar
    A('s_branch K1_JOIN')
    A.label('K1_H')
    A.vm, A.lg, A.hist = list(vm0), list(lg0), []
    K.nbar = 0
    K.h_program()
    assert K.nbar == nb_c, (K.nbar, nb_c)
    A.label('K1_JOIN')
    A('s_nop 7')
    A.vm = ['?']*0; A.lg = []
    if stop == 'o': return K.finish()
    import k1b
    k1b.rest(K)
    return K.finish()
```

```python
import os
from asmlib import *
from layout import *
from s0 import BIG
from k1 import *

def rest(K):
    A = K.A
    stop = K.stop
    NH, NC = NCT_H, 9 - NCT_H
    A('s_and_b32 s56, s3, 1'); A('s_lshr_b32 s57, s3, 1')
    A('s_lshl_b32 s58, s57, 1'); A('s_add_u32 s58, s58, 1'); A('s_cmp_eq_u32 s57, 0'); A('s_cselect_b32 s58, 0, s58')
    A('s_mul_i32 s59, s43, 144'); A('s_lshl_b32 s46, s58, 4'); A('s_add_u32 s59, s59, s46')
    A('s_lshl_b32 s46, s42, 5'); A('s_lshl_b32 s47, s56, 4'); A('s_add_u32 s46, s46, s47')
    A('v_add_u32 v5, s46, v2')
    A('v_mul_u32_u24 v6, 1152, v5')
    A('v_lshlrev_b32 v7, 2, v3'); A('v_add_u32 v7, s59, v7')
    A('v_lshl_add_u32 v6, v7, 1, v6')
    A(f'v_lshlrev_b32 v8, 2, v7'); A(f'v_add_u32 v8, {WRC_OFF}, v8')
    for i in range(3):
        A(f'buffer_load_dwordx2 a[{120+2*i}:{121+2*i}], v6, s[20:23], 0 offen offset:{32*i}', 'xr')
        A(f'buffer_load_dwordx4 a[{128+4*i}:{131+4*i}], v8, s[16:19], 0 offen offset:{64*i}', 'xr')
    NOGU = A.newlabel('NOGU')
    A('s_cmp_lt_u32 s3, 4'); A(f's_cbranch_scc1 {NOGU}')
    A('s_cmp_ge_u32 s2, 144'); A(f's_cbranch_scc1 {NOGU}')
    A('v_lshrrev_b32 v9, 2, v0'); A('v_mul_u32_u24 v9, 9216, v9')
    A('v_and_b32 v10, 3, v0'); A('v_lshl_add_u32 v9, v10, 4, v9')
    A('s_lshl_b32 s46, s2, 6'); A('v_add_u32 v9, s46, v9')
    A('s_lshr_b32 s46, s55, 1'); A('s_and_b32 s47, s55, 1')
    A('s_mul_i32 s48, s46, 36864'); A('s_mul_i32 s49, s47, 18432'); A('s_add_u32 s48, s48, s49'); A(f's_add_u32 s48, s48, {L_GU}')
    A(f's_mul_i32 s49, s47, {18*147456}')
    G2 = A.newlabel('GUUP'); G3 = A.newlabel('GUDONE')
    A('s_cmp_eq_u32 s46, 1'); A(f's_cbranch_scc1 {G2}')
    for srd_, lab in ((28, None), (32, G2)):
        if lab: A.label(lab)
        for i in range(18):
            A(f's_add_u32 m0, s48, {i*1024}')
            A(f's_add_u32 s50, s49, {i*147456}')
            A(f'buffer_load_dwordx4 v9, s[{srd_}:{srd_+3}], s50 offen nt lds')
        if lab is None: A(f's_branch {G3}')
    A.label(G3)
    A.label(NOGU)
    A.vm = []
    BQ, AC = 12, 52
    A('s_lshl_b32 s46, s42, 5'); A('s_lshl_b32 s47, s55, 2'); A('s_add_u32 s46, s46, s47')
    A('s_lshl_b32 s47, s46, 10'); A(f's_add_u32 s47, s47, {OPM_OFF}'); A('v_add_u32 v9, s47, v1')
    A('s_lshl_b32 s47, s46, 8'); A(f's_add_u32 s47, s47, {OPT_OFF}'); A('v_lshlrev_b32 v10, 2, v0'); A('v_add_u32 v10, s47, v10')
    K.stamp('s3pre')
    L = K.poll_begin()
    A('s_mov_b32 s46, 16384'); A('s_mov_b32 s47, 4096')
    for tt in range(2):
        for u in range(4):
            r = BQ + (tt*5+u)*4
            A(f'buffer_load_dwordx4 v[{r}:{r+3}], v9, s[16:19], {"s46" if tt else "0"} offen offset:{u*1024} sc1')
        for i in range(4):
            r = BQ + (tt*5+4)*4 + i
            A(f'buffer_load_dword v{r}, v10, s[16:19], {"s47" if tt else "0"} offen offset:{i*256} sc1')
    K.waitall_vm()
    A(f'v_max3_u32 v11, v{BQ}, v{BQ+1}, v{BQ+2}')
    for r in range(BQ+3, BQ+39, 2): A(f'v_max3_u32 v11, v11, v{r}, v{r+1}')
    A(f'v_max_u32 v11, v11, v{BQ+39}')
    A('v_cmp_eq_u32 vcc, -1, v11')
    K.poll_end(L)
    K.stamp('opoll')
    def mm(n):
        for u in range(5):
            for i in range(n):
                for tt in range(2):
                    d = AC + (i*2+tt)*4; a_ = (i*5+u)*4; b = BQ + (tt*5+u)*4
                    c = '0' if u == 0 else f'v[{d}:{d+3}]'
                    A(f'v_mfma_f32_16x16x32_bf16 v[{d}:{d+3}], a[{a_}:{a_+3}], v[{b}:{b+3}], {c}')
    A('s_mul_i32 s46, s55, 18432')
    A('v_add_u32 v11, s46, v1')
    CM = A.newlabel('S3C'); JM = A.newlabel('S3J')
    A('s_cmp_lt_u32 s3, 4'); A(f's_cbranch_scc1 {CM}')
    mm(NH)
    for i in range(NH):
        for tt in range(2):
            d = AC + (i*2+tt)*4
            A(f'ds_write_b128 v11, v[{d}:{d+3}] offset:{L_RED + (i*2+tt)*1024}', 'red')
    A.wait_lg()
    A(f's_branch {JM}')
    A.label(CM); A.hist = []
    mm(NC)
    for i in range(NC):
        for tt in range(2):
            d = AC + (i*2+tt)*4
            A(f'ds_write_b128 v11, v[{d}:{d+3}] offset:{L_RED + ((NH+i)*2+tt)*1024}', 'red')
    A.wait_lg()
    A.label(JM); A('s_nop 1')
    K.bar()
    K.stamp('s3mm')
    A('s_lshl_b32 s46, s58, 1'); A('s_add_u32 s46, s46, s56'); A('s_lshl_b32 s46, s46, 10')
    A('v_add_u32 v11, s46, v1')
    PR, HR = 12, 60
    S1, S2_, S3_ = 72, 73, 74
    def tile(i):
        for kq in range(4):
            r = PR + (i*4+kq)*4
            A(f'ds_read_b128 v[{r}:{r+3}], v11 offset:{L_RED + kq*18432 + i*2048}', ('pr', i))
    def proc(i):
        r = PR + i*16
        A.wait_lg(('pr', i))
        for b in (0, 2):
            A(f'v_pk_add_f32 v[{r+b}:{r+b+1}], v[{r+b}:{r+b+1}], v[{r+4+b}:{r+5+b}]')
            A(f'v_pk_add_f32 v[{r+8+b}:{r+9+b}], v[{r+8+b}:{r+9+b}], v[{r+12+b}:{r+13+b}]')
        A(f'v_accvgpr_read_b32 v76, a{120+2*i}'); A(f'v_accvgpr_read_b32 v77, a{121+2*i}')
        for b in (0, 2):
            A(f'v_pk_add_f32 v[{r+b}:{r+b+1}], v[{r+b}:{r+b+1}], v[{r+8+b}:{r+9+b}]')
        for b in range(4): A(f'v_accvgpr_read_b32 v{r+4+b}, a{128+4*i+b}')
        A('v_lshlrev_b32 v78, 16, v76'); A('v_and_b32 v79, 0xffff0000, v76')
        A('v_lshlrev_b32 v80, 16, v77'); A('v_and_b32 v81, 0xffff0000, v77')
        A(f'v_pk_add_f32 v[{r}:{r+1}], v[{r}:{r+1}], v[78:79]'); A(f'v_pk_add_f32 v[{r+2}:{r+3}], v[{r+2}:{r+3}], v[80:81]')
        A(f'v_cvt_pk_bf16_f32 v76, v{r}, v{r+1}'); A(f'v_cvt_pk_bf16_f32 v77, v{r+2}, v{r+3}')
        h = HR + 4*i
        A(f'v_lshlrev_b32 v{h}, 16, v76'); A(f'v_and_b32 v{h+1}, 0xffff0000, v76')
        A(f'v_lshlrev_b32 v{h+2}, 16, v77'); A(f'v_and_b32 v{h+3}, 0xffff0000, v77')
        for b in range(4):
            A(f'v_add_f32 v{S1}, v{S1}, v{h+b}')
            A(f'v_fmac_f32 v{S2_}, v{h+b}, v{h+b}')
            A(f'v_fmac_f32 v{S3_}, v{h+b}, v{r+4+b}')
    for r in (S1, S2_, S3_, 75): A(f'v_mov_b32 v{r}, 0')
    tile(0); tile(1)
    T2 = A.newlabel('NOT2')
    proc(0); proc(1)
    A('s_cmp_lg_u32 s57, 0'); A(f's_cbranch_scc1 {T2}')
    tile(2); proc(2)
    A.label(T2); A.hist = []; A('s_nop 1')
    K.xsum_g([S1, S2_, S3_], 76)
    A('s_lshl_b32 s46, s56, 2'); A('s_add_u32 s46, s46, s57'); A('s_lshl_b32 s46, s46, 8'); A(f's_add_u32 s46, s46, {L_STAT}')
    A('v_lshlrev_b32 v8, 4, v2'); A('v_add_u32 v8, s46, v8')
    A('s_mov_b64 exec, 0xffff')
    A(f'ds_write_b128 v8, v[{S1}:{S1+3}]', 'st')
    A('s_mov_b64 exec, -1')
    K.barrier()
    K.stamp('stat')
    NP = A.newlabel('NOPUB')
    A('s_cmp_lg_u32 s57, 0'); A(f's_cbranch_scc1 {NP}')
    A('s_lshl_b32 s46, s56, 10'); A(f's_add_u32 s46, s46, {L_STAT}')
    A('v_lshlrev_b32 v8, 8, v3'); A('v_lshl_add_u32 v8, v2, 4, v8'); A('v_add_u32 v8, s46, v8')
    A('ds_read_b128 v[76:79], v8', 'sr'); A.wait_lg()
    K.xsum_g([76, 77, 78], 80)
    A('s_lshl_b32 s46, s42, 1'); A('s_add_u32 s46, s46, s56'); A('s_lshl_b32 s46, s46, 2'); A('s_add_u32 s46, s46, s43')
    A('s_lshl_b32 s46, s46, 8'); A(f's_add_u32 s46, s46, {STP_OFF}')
    A('v_lshlrev_b32 v8, 4, v2'); A('v_add_u32 v8, s46, v8')
    A('v_mov_b32 v79, 0')
    A('s_mov_b64 exec, 0xffff')
    A('buffer_store_dwordx4 v[76:79], v8, s[16:19], 0 offen sc1')
    A('s_mov_b64 exec, -1')
    A.label(NP); A.hist = []
    ND = A.newlabel('NODN')
    A('s_cmp_lt_u32 s3, 4'); A(f's_cbranch_scc1 {ND}')
    A('s_cmp_ge_u32 s2, 144'); A(f's_cbranch_scc1 {ND}')
    A('s_mul_i32 s46, s2, 36864'); A('s_mul_i32 s47, s55, 9216'); A('s_add_u32 s46, s46, s47')
    A('v_add_u32 v9, s46, v1')
    for i in range(9):
        if i % 4 == 0:
            A(f's_add_u32 m0, s47, {L_DN + (i//4)*4096}'); A(f's_mov_b32 s48, {(i//4)*4096}')
        A(f'buffer_load_dwordx4 v9, s[36:39], s48 offen offset:{(i%4)*1024} nt lds')
    A.label(ND)
    A.vm = []
    A('s_lshl_b32 s46, s42, 1'); A('s_add_u32 s46, s46, s56'); A('s_lshl_b32 s46, s46, 10'); A(f's_add_u32 s46, s46, {STP_OFF}')
    A('v_lshlrev_b32 v8, 8, v3'); A('v_lshl_add_u32 v8, v2, 4, v8'); A('v_add_u32 v8, s46, v8')
    L = K.poll_begin()
    A('buffer_load_dwordx4 v[76:79], v8, s[16:19], 0 offen sc1')
    K.waitall_vm()
    A('v_add_f32 v80, v76, v77'); A('v_add_f32 v80, v80, v78')
    A('v_cmp_u_f32 vcc, v80, v80')
    K.poll_end(L)
    K.stamp('h3')
    K.xsum_g([76, 77, 78], 80)
    MEAN, RSTD, RV, KEY = 72, 73, 74, 75
    A('s_mov_b32 s46, 0x3AE38E39')
    A(f'v_mul_f32 v{MEAN}, s46, v76'); A('v_mul_f32 v77, s46, v77')
    A(f'v_fma_f32 v77, -v{MEAN}, v{MEAN}, v77'); A('v_add_f32 v77, 0x3727c5ac, v77')
    A(f'v_rsq_f32 v{RSTD}, v77')
    A(f'v_mul_f32 v{RV}, v78, v{RSTD}')
    A(f'v_ashrrev_i32 v76, 31, v{RV}'); A('v_or_b32 v76, 0x80000000, v76'); A(f'v_xor_b32 v76, v76, v{RV}')
    A('s_mov_b32 s46, 0xfffff800')
    A(f'v_and_or_b32 v{KEY}, v76, s46, v5')
    NR = A.newlabel('NORR')
    A('s_or_b32 s46, s43, s57'); A('s_cmp_lg_u32 s46, 0'); A(f's_cbranch_scc1 {NR}')
    A('v_lshlrev_b32 v8, 2, v5'); A(f'v_add_u32 v8, {RR_OFF}, v8')
    A('s_mov_b64 exec, 0xffff')
    A(f'buffer_store_dword v{KEY}, v8, s[16:19], 0 offen sc1')
    A('s_mov_b64 exec, -1')
    A.label(NR); A.hist = []
    LN = 12
    A(f'v_mul_f32 v76, v{MEAN}, v{RSTD}'); A('v_sub_f32 v76, 0, v76')
    for q in range(12): A(f'v_fma_f32 v{LN+q}, v{HR+q}, v{RSTD}, v76')
    KQ, OWN = 80, 84
    A('v_lshlrev_b32 v8, 4, v4'); A(f'v_add_u32 v8, {RR_OFF}, v8')
    A('s_lshl_b32 s46, s42, 7'); A(f's_add_u32 s46, s46, {RR_OFF}')
    A('v_lshlrev_b32 v9, 2, v0'); A('v_add_u32 v9, s46, v9')
    A(f'v_mov_b32 v10, {BIG}'); A('v_cmp_gt_u32 vcc, 32, v0'); A('v_cndmask_b32 v9, v10, v9, vcc')
    A.vm = []
    L = K.poll_begin()
    A(f'buffer_load_dwordx4 v[{KQ}:{KQ+3}], v8, s[16:19], 0 offen sc1')
    A(f'buffer_load_dword v{OWN}, v9, s[16:19], 0 offen sc1')
    K.waitall_vm()
    A(f'v_max3_u32 v85, v{KQ}, v{KQ+1}, v{KQ+2}'); A(f'v_max_u32 v85, v85, v{KQ+3}')
    A(f'v_max_u32 v86, v85, v{OWN}')
    A('v_cmp_eq_u32 vcc, -1, v86')
    K.poll_end(L)
    K.stamp('h4')
    for mod in ('quad_perm:[1,0,3,2]', 'quad_perm:[2,3,0,1]', 'row_half_mirror', 'row_mirror'):
        A(f'v_max_u32_dpp v85, v85, v85 {mod} row_mask:0xf bank_mask:0xf')
    A('v_mov_b32 v86, v85'); A('v_permlane16_swap_b32 v85, v86'); A('v_max_u32 v85, v85, v86')
    A('v_mov_b32 v86, v85'); A('v_permlane32_swap_b32 v85, v86'); A('v_max_u32 v85, v85, v86')
    A('s_lshl_b32 s46, s3, 2'); A(f's_add_u32 s46, s46, {L_WMAX}'); A('v_mov_b32 v86, s46')
    A('s_mov_b64 exec, 1'); A('ds_write_b32 v86, v85', 'wm'); A('s_mov_b64 exec, -1')
    K.barrier()
    A(f'v_mov_b32 v86, {L_WMAX}')
    A('ds_read_b128 v[88:91], v86', 'wm'); A('ds_read_b128 v[92:95], v86 offset:16', 'wm'); A.wait_lg()
    A('v_min3_u32 v88, v88, v89, v90'); A('v_min3_u32 v91, v91, v92, v93'); A('v_min3_u32 v88, v88, v94, v95'); A('v_min_u32 v88, v88, v91')
    TAU = 88
    A(f'v_cmp_ge_u32 vcc, v{OWN}, v{TAU}')
    A('s_mov_b64 s[50:51], vcc')
    CL = A.newlabel('CAND'); CD = A.newlabel('CANDD')
    A.label(CL)
    A('s_cmp_eq_u32 s50, 0'); A(f's_cbranch_scc1 {CD}')
    A('s_ff1_i32_b32 s46, s50')
    A('s_bitset0_b32 s50, s46')
    A(f'v_readlane_b32 s47, v{OWN}, s46')
    A('s_nop 3')
    A('s_mov_b32 s48, 0')
    for q in range(4):
        A(f'v_cmp_lt_u32 vcc, s47, v{KQ+q}')
        A('s_bcnt1_i32_b64 s49, vcc'); A('s_add_u32 s48, s48, s49')
    A('s_lshl_b32 s46, s46, 2'); A(f's_add_u32 s46, s46, {L_RANK}')
    A('v_mov_b32 v86, s46'); A('v_mov_b32 v87, s48')
    A('s_mov_b64 exec, 1'); A('ds_add_u32 v86, v87', 'rk'); A('s_mov_b64 exec, -1')
    A(f's_branch {CL}')
    A.label(CD); A.hist = []
    K.barrier()
    K.stamp('rank')
    A('s_lshl_b32 s46, s56, 6'); A(f's_add_u32 s46, s46, {L_RANK}')
    A('v_lshlrev_b32 v86, 2, v2'); A('v_add_u32 v86, s46, v86')
    A('ds_read_b32 v87, v86', 'rk'); A.wait_lg()
    RK = 87
    A(f'v_cmp_ge_u32 s[50:51], v{KEY}, v{TAU}'); A(f'v_cmp_gt_u32 vcc, 8, v{RK}'); A('s_and_b64 s[50:51], s[50:51], vcc')
    BS, PK = 24, 36
    for q in range(0, 12, 2): A(f'v_pk_add_f32 v[{BS+q}:{BS+q+1}], v[{HR+q}:{HR+q+1}], v[{LN+q}:{LN+q+1}]')
    for q in range(6): A(f'v_cvt_pk_bf16_f32 v{PK+q}, v{BS+2*q}, v{BS+2*q+1}')
    for q in range(6): A(f'v_cvt_pk_bf16_f32 v{PK+6+q}, v{LN+2*q}, v{LN+2*q+1}')
    A(f'v_mul_u32_u24 v8, 1152, v{RK}'); A('v_lshl_add_u32 v8, v7, 1, v8'); A(f'v_add_u32 v8, {XSEL_OFF}, v8')
    A(f'v_mul_u32_u24 v9, 2304, v{RK}'); A('v_lshl_add_u32 v9, v7, 2, v9'); A(f'v_add_u32 v9, {BASE_OFF}, v9')
    A(f'v_lshlrev_b32 v10, 3, v{RK}'); A(f'v_add_u32 v10, {META_OFF}, v10')
    A('v_mov_b32 v48, v5'); A(f'v_mov_b32 v49, v{RV}')
    def stores(ntile):
        SK = A.newlabel('NOSEL')
        A('s_and_saveexec_b64 s[52:53], s[50:51]'); A(f's_cbranch_execz {SK}')
        for i in range(ntile):
            A(f'buffer_store_dwordx2 v[{PK+6+2*i}:{PK+7+2*i}], v8, s[16:19], 0 offen offset:{32*i} sc1')
            A(f'buffer_store_dwordx4 v[{BS+4*i}:{BS+4*i+3}], v9, s[16:19], 0 offen offset:{64*i} sc1')
        A.label(SK)
        A('s_andn2_b64 exec, s[52:53], s[50:51]')
        SK2 = A.newlabel('NOOUT')
        A(f's_cbranch_execz {SK2}')
        for i in range(ntile):
            A(f'buffer_store_dwordx2 v[{PK+2*i}:{PK+2*i+1}], v6, s[24:27], 0 offen offset:{32*i}')
        A.label(SK2)
        A('s_mov_b64 exec, s[52:53]')
    S3T = A.newlabel('ST3'); SJ = A.newlabel('STJ')
    A('s_cmp_eq_u32 s57, 0'); A(f's_cbranch_scc1 {S3T}')
    stores(2)
    A(f's_branch {SJ}')
    A.label(S3T)
    stores(3)
    NM = A.newlabel('NOMETA')
    A('s_cmp_lg_u32 s43, 0'); A(f's_cbranch_scc1 {NM}')
    A('s_and_b64 s[52:53], s[50:51], 0xffff')
    A('s_and_saveexec_b64 s[48:49], s[52:53]'); A(f's_cbranch_execz {NM}_R')
    A('buffer_store_dwordx2 v[48:49], v10, s[16:19], 0 offen sc1')
    A.label(NM + '_R')
    A('s_mov_b64 exec, -1')
    A.label(NM)
    A.label(SJ); A.hist = []
    A('s_mov_b64 exec, -1')
    K.stamp('sel')
    if stop == 'sel': return
    s5(K)

def s5(K):
    A = K.A
    A.vm = []; A.lg = []
    FIN = A.newlabel('FINAL')
    A('s_cmp_ge_u32 s2, 144'); A(f's_cbranch_scc1 {FIN}')
    A('s_mul_i32 s46, s3, 3'); A('s_lshl_b32 s47, s3, 1'); A('s_add_u32 s47, s47, 2'); A('s_cmp_lt_u32 s3, 2'); A('s_cselect_b32 s46, s46, s47')
    A('v_and_b32 v8, 7, v2'); A('v_mul_u32_u24 v8, 1152, v8'); A('v_lshl_add_u32 v8, v3, 4, v8')
    A('s_lshl_b32 s47, s46, 6'); A(f's_add_u32 s47, s47, {XSEL_OFF}'); A('v_add_u32 v8, s47, v8')
    A('v_lshrrev_b32 v9, 2, v2'); A('v_lshl_add_u32 v9, v3, 3, v9'); A('v_lshlrev_b32 v9, 6, v9')
    A('v_and_b32 v10, 3, v2'); A('v_lshl_add_u32 v9, v10, 3, v9')
    A('s_lshl_b32 s47, s46, 11'); A(f's_add_u32 s47, s47, {L_GU}'); A('v_add_u32 v9, s47, v9'); A('v_add_u32 v10, 36864, v9')
    XB = 12
    L = K.poll_begin()
    for i in range(3): A(f'buffer_load_dwordx4 v[{XB+4*i}:{XB+4*i+3}], v8, s[16:19], 0 offen offset:{64*i} sc1')
    K.waitall_vm()
    A(f'v_max3_u32 v11, v{XB}, v{XB+1}, v{XB+2}')
    for r in range(XB+3, XB+7, 2): A(f'v_max3_u32 v11, v11, v{r}, v{r+1}')
    A(f'v_max_u32 v11, v11, v{XB+7}')
    A(f'v_max3_u32 v24, v{XB+8}, v{XB+9}, v{XB+10}'); A(f'v_max_u32 v24, v24, v{XB+11}')
    A('s_cmp_lt_u32 s3, 2'); A('s_cselect_b32 s47, -1, 0'); A('v_and_b32 v24, s47, v24'); A('v_max_u32 v11, v11, v24')
    A('v_cmp_eq_u32 vcc, -1, v11')
    K.poll_end(L)
    K.stamp('xsel')
    AFG, DG = 28, 76
    def gu(nst):
        for i in range(nst):
            for ch in range(4):
                mat, ft = ch >> 1, ch & 1
                for h in range(2):
                    r = AFG + (i*4+ch)*4 + 2*h
                    A(f'ds_read_b64_tr_b16 v[{r}:{r+1}], v{9+mat} offset:{i*2048 + h*256 + ft*32}', ('gu', i))
            A.wait_lg(('gu', i))
            for ch in range(4):
                r = AFG + (i*4+ch)*4; d = DG + 4*ch
                c = '0' if i == 0 else f'v[{d}:{d+3}]'
                A(f'v_mfma_f32_16x16x32_bf16 v[{d}:{d+3}], v[{r}:{r+3}], v[{XB+4*i}:{XB+4*i+3}], {c}')
    G2 = A.newlabel('GU2'); GJ = A.newlabel('GUJ')
    A('s_cmp_ge_u32 s3, 2'); A(f's_cbranch_scc1 {G2}')
    gu(3); A('s_nop 7'); A(f's_branch {GJ}')
    A.label(G2); A.hist = []
    gu(2); A('s_nop 7')
    A.label(GJ); A.hist = []
    A('s_lshl_b32 s46, s3, 12'); A(f's_add_u32 s46, s46, {L_R2}'); A('v_add_u32 v11, s46, v1')
    for ch in range(4): A(f'ds_write_b128 v11, v[{DG+4*ch}:{DG+4*ch+3}] offset:{ch*1024}', 'r2')
    K.barrier()
    AS = A.newlabel('ASKIP')
    A('s_cmp_ge_u32 s3, 4'); A(f's_cbranch_scc1 {AS}')
    A('v_and_b32 v12, 31, v4'); A('v_lshrrev_b32 v13, 5, v4')
    A('v_lshrrev_b32 v14, 4, v12'); A('v_lshlrev_b32 v14, 10, v14')
    A('v_bfe_u32 v15, v12, 2, 2'); A('v_lshl_add_u32 v15, v15, 4, v13'); A('v_lshl_add_u32 v14, v15, 4, v14')
    A('v_and_b32 v15, 3, v12'); A('v_lshl_add_u32 v14, v15, 2, v14'); A(f'v_add_u32 v14, {L_R2}, v14')
    for w in range(8):
        A(f'ds_read_b32 v{16+w}, v14 offset:{w*4096}', 'g')
    A.wait_lg()
    for w in range(8):
        A(f'ds_read_b32 v{24+w}, v14 offset:{w*4096 + 2048}', 'u')
    for base in (16,):
        A('v_add_f32 v16, v16, v17'); A('v_add_f32 v18, v18, v19'); A('v_add_f32 v20, v20, v21'); A('v_add_f32 v22, v22, v23')
        A('v_add_f32 v16, v16, v18'); A('v_add_f32 v20, v20, v22'); A('v_add_f32 v16, v16, v20')
    A('v_mul_f32 v17, 0xbfb8aa3b, v16'); A('v_exp_f32 v17, v17'); A('v_add_f32 v17, 1.0, v17'); A('v_rcp_f32 v17, v17'); A('v_mul_f32 v16, v16, v17')
    A.wait_lg()
    A('v_add_f32 v24, v24, v25'); A('v_add_f32 v26, v26, v27'); A('v_add_f32 v28, v28, v29'); A('v_add_f32 v30, v30, v31')
    A('v_add_f32 v24, v24, v26'); A('v_add_f32 v28, v28, v30'); A('v_add_f32 v24, v24, v28')
    A('v_mul_f32 v16, v16, v24'); A('v_cvt_pk_bf16_f32 v16, v16, v16')
    A('v_lshlrev_b32 v14, 6, v13'); A('v_lshl_add_u32 v14, v12, 1, v14'); A(f'v_add_u32 v14, {L_AIMG}, v14')
    A('ds_write_b16 v14, v16', 'a'); A.wait_lg()
    A.label(AS); A.hist = []
    K.barrier()
    A('s_mul_i32 s46, s3, 5'); A('s_lshl_b32 s47, s3, 2'); A('s_add_u32 s47, s47, 4'); A('s_cmp_lt_u32 s3, 4'); A('s_cselect_b32 s46, s46, s47')
    A('v_and_b32 v8, 7, v2'); A('v_lshlrev_b32 v8, 6, v8'); A('v_lshl_add_u32 v8, v3, 4, v8'); A(f'v_add_u32 v8, {L_AIMG}, v8')
    A('ds_read_b128 v[12:15], v8', 'ab')
    A('v_lshrrev_b32 v9, 2, v2'); A('v_lshl_add_u32 v9, v3, 3, v9'); A('v_mul_u32_u24 v9, 1152, v9')
    A('v_and_b32 v10, 3, v2'); A('v_lshl_add_u32 v9, v10, 3, v9')
    A('s_lshl_b32 s47, s46, 5'); A(f's_add_u32 s47, s47, {L_DN}'); A('v_add_u32 v9, s47, v9')
    A('v_mul_u32_u24 v10, %d, v2' % (18*144*64)); A('v_lshl_add_u32 v10, v3, 3, v10')
    A('s_lshl_b32 s47, s2, 6'); A(f's_add_u32 s47, s47, {YP_OFF}'); A('v_add_u32 v10, s47, v10')
    A(f'v_mov_b32 v11, {BIG}'); A('v_cmp_gt_u32 vcc, 8, v2'); A('v_cndmask_b32 v10, v11, v10, vcc')
    def dn(n):
        for i in range(n):
            for h in range(2):
                r = 16 + 4*i + 2*h
                A(f'ds_read_b64_tr_b16 v[{r}:{r+1}], v9 offset:{i*32 + h*4*1152}', ('dn', i))
        for i in range(n):
            A.wait_lg([('dn', i), 'ab'])
            A(f'v_mfma_f32_16x16x32_bf16 v[{40+4*i}:{43+4*i}], v[{16+4*i}:{19+4*i}], v[12:15], 0')
        for i in range(n):
            d = 40 + 4*i
            A(f's_add_u32 s47, s46, {i}'); A('s_lshr_b32 s48, s47, 1'); A(f's_mul_i32 s48, s48, {144*64}')
            A('s_and_b32 s47, s47, 1'); A('s_lshl_b32 s47, s47, 5'); A('s_add_u32 s48, s48, s47')
            A(f'v_cvt_pk_bf16_f32 v{d}, v{d}, v{d+1}'); A(f'v_cvt_pk_bf16_f32 v{d+1}, v{d+2}, v{d+3}')
            A(f'buffer_store_dwordx2 v[{d}:{d+1}], v10, s[16:19], s48 offen sc1')
    D4 = A.newlabel('DN4'); DJ = A.newlabel('DNJ')
    A('s_cmp_ge_u32 s3, 4'); A(f's_cbranch_scc1 {D4}')
    lg0 = list(A.lg)
    dn(5); A(f's_branch {DJ}')
    A.label(D4); A.hist = []; A.lg = lg0
    dn(4)
    A.label(DJ); A.hist = []
    K.stamp('ypub')
    A.label(FIN); A.hist = []; A.vm = []; A.lg = []
    A('s_cmp_lt_u32 s2, 112'); A('s_cbranch_scc1 K1_FIN')
    A('s_sub_u32 s46, s2, 112')
    A('s_mul_hi_u32 s47, s46, 0x%x' % ((1 << 32)//18 + 1))
    A('s_mul_i32 s48, s47, 18'); A('s_sub_u32 s48, s46, s48')
    A('v_and_b32 v8, 15, v4'); A('v_lshrrev_b32 v9, 4, v4')
    A(f's_mul_i32 s49, s46, {144*64}'); A(f's_add_u32 s49, s49, {YP_OFF}')
    A('v_lshlrev_b32 v10, 6, v9'); A('v_lshl_add_u32 v10, v8, 2, v10'); A('v_add_u32 v10, s49, v10')
    A(f'v_add_u32 v11, {4*2048}, v10'); A(f'v_mov_b32 v12, {BIG}'); A('v_cmp_gt_u32 vcc, 16, v9'); A('v_cndmask_b32 v11, v12, v11, vcc')
    A('s_mul_i32 s49, s47, 2304'); A('s_lshl_b32 s50, s48, 7'); A('s_add_u32 s49, s49, s50'); A(f's_add_u32 s49, s49, {BASE_OFF}')
    A('v_lshlrev_b32 v13, 3, v8'); A('v_add_u32 v13, s49, v13')
    A('s_lshl_b32 s49, s47, 3'); A(f's_add_u32 s49, s49, {META_OFF}'); A('v_mov_b32 v14, s49')
    L = K.poll_begin()
    A('s_mov_b32 s49, 4096')
    for i in range(4):
        A(f'buffer_load_dword v{16+i}, v10, s[16:19], {"s49" if i >= 2 else "0"} offen offset:{(i&1)*2048} sc1')
    A('buffer_load_dword v20, v11, s[16:19], 0 offen sc1')
    A('buffer_load_dwordx2 v[22:23], v13, s[16:19], 0 offen sc1')
    A('buffer_load_dwordx2 v[24:25], v14, s[16:19], 0 offen sc1')
    K.waitall_vm()
    A('v_max3_u32 v15, v16, v17, v18'); A('v_max3_u32 v15, v15, v19, v20'); A('v_max3_u32 v15, v15, v22, v23'); A('v_max_u32 v15, v15, v24')
    A('v_cmp_eq_u32 vcc, -1, v15')
    K.poll_end(L)
    K.stamp('h6')
    A('v_mov_b32 v26, 0'); A('v_mov_b32 v27, 0')
    for i in range(5):
        A(f'v_lshlrev_b32 v28, 16, v{16+i}'); A(f'v_and_b32 v29, 0xffff0000, v{16+i}')
        A('v_pk_add_f32 v[26:27], v[26:27], v[28:29]')
    K.xsum_g([26, 27], 28)
    A('s_lshl_b32 s49, s3, 7'); A(f's_add_u32 s49, s49, {L_FIN}')
    A('v_lshlrev_b32 v28, 3, v8'); A('v_add_u32 v28, s49, v28')
    A('s_mov_b64 exec, 0xffff'); A('ds_write_b64 v28, v[26:27]', 'f'); A('s_mov_b64 exec, -1')
    K.barrier()
    A('s_cmp_lg_u32 s3, 0'); A('s_cbranch_scc1 K1_FIN')
    A('v_lshlrev_b32 v28, 3, v8'); A(f'v_add_u32 v28, {L_FIN}, v28')
    for w in range(8): A(f'ds_read_b64 v[{32+2*w}:{33+2*w}], v28 offset:{w*128}', 'f')
    A.wait_lg()
    for st in (1, 2, 4):
        for w in range(0, 8, 2*st): A(f'v_pk_add_f32 v[{32+2*w}:{33+2*w}], v[{32+2*w}:{33+2*w}], v[{32+2*(w+st)}:{33+2*(w+st)}]')
    A('v_mul_f32 v26, 0xbfb8aa3b, v25'); A('v_exp_f32 v26, v26'); A('v_add_f32 v26, 1.0, v26'); A('v_rcp_f32 v26, v26')
    A('v_fma_f32 v22, v32, v26, v22'); A('v_fma_f32 v23, v33, v26, v23')
    A('v_cvt_pk_bf16_f32 v22, v22, v23')
    A('v_mul_u32_u24 v28, 1152, v24'); A('v_lshl_add_u32 v28, v8, 2, v28'); A('s_lshl_b32 s49, s48, 6'); A('v_add_u32 v28, s49, v28')
    A('s_mov_b64 exec, 0xffff')
    A('buffer_store_dword v22, v28, s[24:27], 0 offen')
    A('s_mov_b64 exec, -1')
```

```python
XP_OFF   = 0x000000
XP_SZ    = 128*18*1024
WP_OFF   = XP_OFF + XP_SZ
WP_J     = 126*1024
WP_SZ    = 16*WP_J
WOP_OFF  = WP_OFF + WP_SZ
WOP_SZ   = 720*1024
WRC_OFF  = WOP_OFF + WOP_SZ
WRC_SZ   = 4096
FILL_OFF = WRC_OFF + WRC_SZ
KVP_OFF  = FILL_OFF
KVP_ONE  = 7680
KVP_SZ   = 256*KVP_ONE
OPM_OFF  = KVP_OFF + KVP_SZ
OPM_SZ   = 128*16*1024
OPT_OFF  = OPM_OFF + OPM_SZ
OPT_SZ   = 128*16*256
STP_OFF  = OPT_OFF + OPT_SZ
STP_SZ   = 128*4*256
RR_OFF   = STP_OFF + STP_SZ
RR_SZ    = 8192
XSEL_OFF = RR_OFF + RR_SZ
XSEL_SZ  = 8*1152
BASE_OFF = XSEL_OFF + XSEL_SZ
BASE_SZ  = 8*576*4
META_OFF = BASE_OFF + BASE_SZ
META_SZ  = 256
YP_OFF   = META_OFF + META_SZ
YP_SZ    = 144*144*64
FILL_END = YP_OFF + YP_SZ
DBG_OFF  = (FILL_END + 0xFFFF) & ~0xFFFF
WS_USED  = DBG_OFF + (16 << 20)
if __name__ == '__main__':
    for k, v in list(globals().items()):
        if k.isupper(): print(k, hex(v), v)
    print('fill bytes', FILL_END - FILL_OFF)
```

```python
import sys
sys.path.insert(0, 'gen')
from k0 import gen_k0
import layout

NAME = 'sequential_preLN__linear_kernel_hedgehog__moe_arch_mod__prompt'
HEADER = open('cdna_kernels/%s.s.ref' % NAME).read().split('; Override launch')[0]

def desc(name, vgpr, accum, sgpr=102):
    return f'''.amdhsa_kernel {name}
  .amdhsa_next_free_vgpr {vgpr}
  .amdhsa_next_free_sgpr {sgpr}
  .amdhsa_accum_offset {accum}
  .amdhsa_group_segment_fixed_size 0
  .amdhsa_kernarg_size 96
  .amdhsa_user_sgpr_count 2
  .amdhsa_user_sgpr_kernarg_segment_ptr 1
  .amdhsa_system_sgpr_workgroup_id_x 1
  .amdhsa_float_denorm_mode_32 3
  .amdhsa_float_denorm_mode_16_64 3
.end_amdhsa_kernel
'''

def build(k1_text=None, k1_lds=163840, k1_kb=1, only_k0=False, extra_launches=''):
    k0_text, nwg0 = gen_k0('main_kernel', max(k1_kb, 1))
    if k1_text is None: k1_text = '    s_endpgm\n'
    out = HEADER
    out += f'; @launch kernel=prep_kernel grid=({nwg0},1,1) block=(256,1,1) lds=0\n'
    if not only_k0:
        out += f'; @launch kernel=main_kernel grid=(256,1,1) block=(512,1,1) lds={k1_lds}\n'
    out += extra_launches
    out += '.amdgcn_target "amdgcn-amd-amdhsa--gfx950"\n.text\n'
    out += '.globl prep_kernel\n.p2align 8\n.type prep_kernel,@function\nprep_kernel:\n' + k0_text
    out += '.globl main_kernel\n.p2align 8\n.type main_kernel,@function\nmain_kernel:\n' + k1_text
    out += '.p2align 8\n.fill 256, 4, 0xbf800000\n' if False else ''
    out += '.section .rodata,"a"\n.p2align 6\n'
    out += desc('prep_kernel', 128, 128, 64)
    out += '.p2align 6\n' + desc('main_kernel', 256, 112, 102)
    return out

if __name__ == '__main__':
    from k1 import gen_k1
    stop = sys.argv[1] if len(sys.argv) > 1 else None
    prof = len(sys.argv) > 2
    if stop == 'none': stop = None
    t = build(k1_text=gen_k1(stop, prof), k1_kb=20)
    import k1
    open('stamps.txt', 'w').write(' '.join(k1.LAST.stamps))
    open('out.s', 'w').write(t)
    print(len(t))
```

```python
import os
from asmlib import *
from layout import *

LOG2E = 0x3FB8AA3B
DIAG = os.environ.get('DIAG')
STF = os.environ.get('K0ST', 'sc1')
FLF = os.environ.get('K0FILL', 'sc1')
BIG = 0x40000000

def srd(A, d, lo, hi, size):
    A(f's_mov_b32 s{d}, s{lo}'); A(f's_mov_b32 s{d+1}, s{hi}')
    A(f's_mov_b32 s{d+2}, {size}'); A(f's_mov_b32 s{d+3}, 0x20000')

def gen_k0(code_sym, code_kb):
    A = Asm()
    NX, NW, NO = 64, 144, 36
    NWG = NX + NW + NO + 1
    A('s_cmp_ge_u32 s2, %d' % NWG)
    A('s_cbranch_scc1 K0_END')
    if DIAG: A('s_memrealtime s[60:61]')
    A('s_load_dwordx4 s[4:7], s[0:1], 0')
    A('s_load_dwordx4 s[8:11], s[0:1], 16')
    A('s_load_dwordx2 s[12:13], s[0:1], 40')
    A('s_load_dwordx2 s[14:15], s[0:1], 88')
    A('v_lshrrev_b32 v1, 6, v0')
    A('v_and_b32 v0, 63, v0')
    A('v_readfirstlane_b32 s3, v1')
    A('s_lshl_b32 s16, s2, 2')
    A('s_add_u32 s16, s16, s3')
    A('v_lshlrev_b32 v2, 4, v0')
    A('s_waitcnt lgkmcnt(0)')
    srd(A, 20, 14, 15, FILL_OFF)
    srd(A, 32, 14, 15, FILL_END)
    A('s_cmp_lt_u32 s2, %d' % NX)
    A('s_cbranch_scc1 K0_X')
    A('s_cmp_lt_u32 s2, %d' % (NX + NW))
    A('s_cbranch_scc1 K0_W')
    A('s_cmp_lt_u32 s2, %d' % (NX + NW + NO))
    A('s_cbranch_scc1 K0_O')
    A('s_branch K0_M')

    def fills():
        A('s_mul_i32 s17, s16, 7168')
        A('s_add_u32 s17, s17, %d' % FILL_OFF)
        A('v_mov_b32 v4, -1'); A('v_mov_b32 v5, -1'); A('v_mov_b32 v6, -1'); A('v_mov_b32 v7, -1')
        A('v_add_u32 v3, s17, v2')
        for i in range(4):
            A(f'buffer_store_dwordx4 v[4:7], v3, s[32:35], 0 offen offset:{i*1024} {FLF}', 'fill')
        A('s_mov_b32 s18, 4096')
        for i in range(3):
            A(f'buffer_store_dwordx4 v[4:7], v3, s[32:35], s18 offen offset:{i*1024} {FLF}', 'fill')
        A('s_lshr_b32 s17, s2, 3'); A('s_lshl_b32 s17, s17, 2'); A('s_add_u32 s17, s17, s3')
        A(f's_min_u32 s17, s17, {code_kb-1}')
        A('s_getpc_b64 s[18:19]')
        lab = A.newlabel('K0_PC'); A.label(lab)
        A(f's_add_u32 s18, s18, {code_sym}-{lab}')
        A('s_addc_u32 s19, s19, 0')
        A('s_lshl_b32 s17, s17, 10')
        A('v_add_u32 v3, s17, v2')
        A('global_load_dwordx4 v[8:11], v3, s[18:19]', 'pf')

    A.label('K0_X')
    A.vm = []
    srd(A, 24, 4, 5, 2048*1152)
    A('s_lshl_b32 s17, s16, 3')
    A('v_lshrrev_b32 v12, 3, v0')
    A('v_add_u32 v12, s17, v12')
    A('v_and_b32 v13, 7, v0')
    A('v_mul_u32_u24 v14, 1152, v12')
    A('v_lshl_add_u32 v14, v13, 4, v14')
    X = 16
    for i in range(9):
        A(f'buffer_load_dwordx4 v[{X+4*i}:{X+4*i+3}], v14, s[24:27], 0 offen offset:{i*128}', 'x')
    fills()
    A('v_lshrrev_b32 v15, 4, v12')
    A('v_mul_u32_u24 v15, 18432, v15')
    A('v_and_b32 v12, 15, v12')
    A('v_lshl_add_u32 v15, v12, 4, v15')
    A('v_lshrrev_b32 v12, 2, v13')
    A('v_lshl_add_u32 v15, v12, 10, v15')
    A('v_and_b32 v12, 3, v13')
    A('v_lshl_add_u32 v15, v12, 8, v15')
    A('s_mov_b32 s17, 0x3f803f80')
    for r in range(56, 64): A(f'v_mov_b32 v{r}, 0')
    A.wait_vm('x')
    for k in range(36):
        A(f'v_dot2c_f32_bf16 v{56+(k&3)}, s17, v{X+k}')
        A(f'v_dot2c_f32_bf16 v{60+(k&3)}, v{X+k}, v{X+k}')
    A('v_add_f32 v56, v56, v57'); A('v_add_f32 v58, v58, v59'); A('v_add_f32 v60, v60, v61'); A('v_add_f32 v62, v62, v63')
    A('v_add_f32 v56, v56, v58'); A('v_add_f32 v60, v60, v62')
    for mod in ('quad_perm:[1,0,3,2]', 'quad_perm:[2,3,0,1]', 'row_half_mirror'):
        A(f'v_add_f32_dpp v56, v56, v56 {mod} row_mask:0xf bank_mask:0xf')
        A(f'v_add_f32_dpp v60, v60, v60 {mod} row_mask:0xf bank_mask:0xf')
    A('s_mov_b32 s17, 0x%08x' % 0x3AE38E39)
    A('v_mul_f32 v56, s17, v56')
    A('v_mul_f32 v60, s17, v60')
    A('v_fma_f32 v60, -v56, v56, v60')
    A('v_add_f32 v60, 0x3727c5ac, v60')
    A('v_rsq_f32 v60, v60')
    A('v_mul_f32 v56, v56, v60')
    A('v_sub_f32 v56, 0, v56')
    for i in range(9):
        for k in range(4):
            r = X + 4*i + k
            A(f'v_lshlrev_b32 v57, 16, v{r}')
            A(f'v_and_b32 v58, 0xffff0000, v{r}')
            A('v_fma_f32 v57, v57, v60, v56')
            A('v_fma_f32 v58, v58, v60, v56')
            A(f'v_cvt_pk_bf16_f32 v{r}, v57, v58')
        off = (i & 1) * 2048
        A(f'buffer_store_dwordx4 v[{X+4*i}:{X+4*i+3}], v15, s[20:23], 0 offen offset:{off} {STF}', 'st')
        if i & 1: A('v_add_u32 v15, 4096, v15')
    if DIAG:
        A('s_waitcnt vmcnt(0)')
        A('s_memrealtime s[62:63]')
        A('s_waitcnt lgkmcnt(0)')
        A('s_cmp_lg_u32 s16, 0'); A('s_cbranch_scc1 K0_END')
        srd(A, 24, 14, 15, WS_USED)
        A('v_mov_b32 v4, s60'); A('v_mov_b32 v5, s62'); A('v_mov_b32 v6, %d' % DBG_OFF)
        A('buffer_store_dwordx2 v[4:5], v6, s[24:27], 0 offen')
    A('s_endpgm')

    A.label('K0_W')
    A.vm = []
    srd(A, 24, 6, 7, 576*3456)
    srd(A, 28, 8, 9, 32*648)
    A(f's_sub_u32 s17, s16, {NX*4}')
    A('s_mul_hi_u32 s36, s17, 0x%x' % ((1 << 32)//36 + 1))
    A('s_mul_i32 s37, s36, 36')
    A('s_sub_u32 s37, s17, s37')
    A('v_and_b32 v12, 15, v0')
    A('v_lshrrev_b32 v13, 4, v0')
    A('s_lshl_b32 s38, s37, 4')
    A('v_add_u32 v14, s38, v12')
    A('v_mul_u32_u24 v14, 3456, v14')
    A('v_lshl_add_u32 v14, v13, 4, v14')
    A('s_mul_i32 s38, s36, 72')
    A('v_add_u32 v14, s38, v14')
    AF = 16
    for sec in range(3):
        for hd in range(2):
            r = AF + (sec*2+hd)*4
            A(f'buffer_load_dwordx4 v[{r}:{r+3}], v14, s[24:27], 0 offen offset:{sec*1152+hd*36}', 'a')
    A('v_mul_u32_u24 v15, 288, v13')
    A('v_lshl_add_u32 v15, v12, 1, v15')
    A('s_mul_i32 s38, s36, 1296')
    A('v_add_u32 v15, s38, v15')
    A('v_mov_b32 v41, %d' % BIG)
    A('v_cmp_gt_u32 vcc, 9, v12')
    A('v_cndmask_b32 v15, v41, v15, vcc')
    A('v_cmp_gt_u32 vcc, 3, v13')
    A('v_cndmask_b32 v15, v41, v15, vcc')
    A('v_cmp_gt_u32 vcc, 2, v13')
    A('v_cndmask_b32 v40, v41, v15, vcc')
    BF = 44
    for hd in range(2):
        for p in range(2):
            for jj in range(8):
                r = 96 + (hd*2+p)*8 + jj
                va = 'v15' if jj < 2 else 'v40'
                A(f'buffer_load_ushort v{r}, {va}, s[28:31], 0 offen offset:{(hd*324+jj*18+9*p)*2}', 'b')
    fills()
    A('v_lshlrev_b32 v42, 3, v13')
    A('v_sub_u32 v42, v12, v42')
    A('v_mov_b32 v43, 100')
    A('v_cmp_gt_u32 vcc, 9, v12')
    A('v_cndmask_b32 v42, v43, v42, vcc')
    A('v_mov_b32 v68, 0x3f80'); A('v_mov_b32 v69, 0x3f800000'); A('v_mov_b32 v70, 0')
    for p in range(2):
        if p == 1: A('v_add_u32 v42, 9, v42')
        for m in range(4):
            r = 60 + p*4 + m
            A(f'v_cmp_eq_u32 vcc, {2*m}, v42')
            A(f'v_cndmask_b32 v{r}, v70, v68, vcc')
            A(f'v_cmp_eq_u32 vcc, {2*m+1}, v42')
            A(f'v_cndmask_b32 v{r}, v{r}, v69, vcc')
    A('s_lshr_b32 s38, s37, 1')
    A('s_mul_i32 s39, s38, 5120')
    A('s_lshl_b32 s40, s38, 11')
    A('s_add_u32 s40, s40, %d' % (92160 - 5*1024))
    A('s_mul_i32 s41, s36, %d' % WP_J)
    A('s_add_u32 s41, s41, %d' % WP_OFF)
    A('s_and_b32 s42, s37, 1')
    A('s_lshl_b32 s42, s42, 9')
    A('s_add_u32 s41, s41, s42')
    A('v_lshrrev_b32 v74, 1, v13')
    A('v_lshlrev_b32 v74, 8, v74')
    A('v_and_b32 v75, 1, v13')
    A('v_lshl_add_u32 v74, v75, 3, v74')
    A('v_add_u32 v74, s41, v74')
    for sec, base, r in ((1, 0, 71), (2, 9, 72), (0, 18, 73)):
        A(f'v_add_u32 v75, {base}, v12')
        A('v_lshrrev_b32 v76, 2, v75')
        A('v_and_b32 v75, 3, v75')
        A('v_lshlrev_b32 v75, 4, v75')
        A('v_lshl_add_u32 v75, v76, 10, v75')
        A('v_mov_b32 v77, s39'); A('v_mov_b32 v78, s40')
        A('v_cmp_gt_u32 vcc, 5, v76')
        A('v_cndmask_b32 v77, v78, v77, vcc')
        A('v_add3_u32 v75, v75, v77, v74')
        A('v_cmp_gt_u32 vcc, 9, v12')
        A(f'v_cndmask_b32 v{r}, v41, v75, vcc')
    A.wait_vm(['a', 'b'])
    for q in range(16):
        A(f'v_lshl_or_b32 v{BF+q}, v{96+2*q+1}, 16, v{96+2*q}')
    A('s_mov_b32 s38, 0x%08x' % LOG2E)
    D = 80
    for sec in range(3):
        for hd in range(2):
            for p in range(2):
                d = D + ((sec*2+hd)*2+p)*4
                af = AF + (sec*2+hd)*4
                bf = (60 + p*4) if sec == 2 else BF + (hd*2+p)*4
                A(f'v_mfma_f32_16x16x32_bf16 v[{d}:{d+3}], v[{af}:{af+3}], v[{bf}:{bf+3}], 0')
    for sec in range(3):
        ar = {1: 71, 2: 72, 0: 73}[sec]
        for hd in range(2):
            for p in range(2):
                d = D + ((sec*2+hd)*2+p)*4
                if sec != 2:
                    for b in range(4): A(f'v_mul_f32 v{d+b}, s38, v{d+b}')
                A(f'v_cvt_pk_bf16_f32 v{d}, v{d}, v{d+1}')
                A(f'v_cvt_pk_bf16_f32 v{d+1}, v{d+2}, v{d+3}')
                A(f'buffer_store_dwordx2 v[{d}:{d+1}], v{ar}, s[20:23], 0 offen offset:{64*(2*hd+p)} {STF}', 'st')
    A('s_endpgm')

    A.label('K0_O')
    A.vm = []
    srd(A, 24, 10, 11, 576*1152)
    A(f's_sub_u32 s17, s16, {(NX+NW)*4}')
    A('s_mul_hi_u32 s36, s17, 0x%x' % ((1 << 32)//9 + 1))
    A('s_mul_i32 s37, s36, 9')
    A('s_sub_u32 s37, s17, s37')
    A('s_mov_b32 s44, s17')
    A('s_lshr_b32 s38, s36, 2')
    A('s_and_b32 s39, s36, 3')
    A('v_and_b32 v12, 15, v0'); A('v_lshrrev_b32 v13, 4, v0')
    A('v_lshrrev_b32 v14, 1, v13')
    A('s_lshl_b32 s40, s39, 3')
    A('v_add_u32 v14, s40, v14')
    A('v_mul_u32_u24 v14, 18, v14')
    A('v_and_b32 v15, 1, v13')
    A('v_mad_u32_u24 v14, v15, 9, v14')
    A('v_mul_u32_u24 v14, 1152, v14')
    A('s_mul_i32 s40, s38, 288'); A('s_lshl_b32 s41, s37, 5'); A('s_add_u32 s40, s40, s41')
    A('v_lshl_add_u32 v14, v12, 1, v14')
    A('v_add_u32 v14, s40, v14')
    O = 16
    for u in range(4):
        for jj in range(8):
            A(f's_mov_b32 s{42+(jj&1)}, {(36*u+jj)*1152}')
            A(f'buffer_load_ushort v{40+8*u+jj}, v14, s[24:27], s{42+(jj&1)} offen', 'o')
    for i in range(4):
        A(f's_mov_b32 s{42+(i&1)}, {(36*i+8)*1152}')
        A(f'buffer_load_ushort v{O+16+i}, v14, s[24:27], s{42+(i&1)} offen', 'o')
    fills()
    A('s_mul_i32 s40, s44, 5120'); A('s_add_u32 s40, s40, %d' % WOP_OFF)
    A('v_add_u32 v14, s40, v2')
    A.wait_vm('o')
    for q in range(16):
        A(f'v_lshl_or_b32 v{O+q}, v{40+2*q+1}, 16, v{40+2*q}')
    for u in range(4):
        A(f'buffer_store_dwordx4 v[{O+4*u}:{O+4*u+3}], v14, s[20:23], 0 offen offset:{u*1024} {STF}', 'st')
    A('v_add_u32 v14, 4096, v14')
    A(f'buffer_store_dwordx4 v[{O+16}:{O+19}], v14, s[20:23], 0 offen {STF}', 'st')
    A('s_endpgm')

    A.label('K0_M')
    A.vm = []
    srd(A, 24, 12, 13, 1152)
    A('v_lshlrev_b32 v12, 2, v0')
    for i in range(5):
        A(f'buffer_load_dword v{16+i}, v12, s[24:27], 0 offen offset:{i*256}', 'm')
    fills()
    L = 'K0_END'
    A('s_cmp_lg_u32 s3, 0'); A(f's_cbranch_scc1 {L}')
    A('s_mov_b32 s17, 0x3f803f80')
    A('v_mov_b32 v24, 0')
    A.wait_vm('m')
    for i in range(5): A(f'v_dot2c_f32_bf16 v24, s17, v{16+i}')
    for mod in ('quad_perm:[1,0,3,2]', 'quad_perm:[2,3,0,1]', 'row_half_mirror', 'row_mirror'):
        A(f'v_add_f32_dpp v24, v24, v24 {mod} row_mask:0xf bank_mask:0xf')
    A('v_mov_b32 v25, v24'); A('v_permlane16_swap_b32 v24, v25'); A('v_add_f32 v24, v24, v25')
    A('v_mov_b32 v25, v24'); A('v_permlane32_swap_b32 v24, v25'); A('v_add_f32 v24, v24, v25')
    A('s_mov_b32 s17, 0x%08x' % 0x3AE38E39)
    A('v_mul_f32 v24, s17, v24')
    A('v_lshlrev_b32 v12, 3, v0')
    A('v_add_u32 v12, %d, v12' % WRC_OFF)
    for i in range(5):
        A(f'v_lshlrev_b32 v26, 16, v{16+i}'); A(f'v_and_b32 v27, 0xffff0000, v{16+i}')
        A('v_sub_f32 v26, v26, v24'); A('v_sub_f32 v27, v27, v24')
        A(f'buffer_store_dwordx2 v[26:27], v12, s[20:23], 0 offen offset:{i*512} {STF}', 'st')
        A('s_nop 1')
    A.label('K0_END')
    A('s_endpgm')
    return A.text(), NWG
```

```python
import os
from asmlib import *
from layout import *
from k0 import srd, BIG

SPIN = 3000
LOG2E = 0x3FB8AA3B

L_W    = 0
L_IMG  = 0
L_RED  = 0
L_GU   = 73728
L_DN   = 0
L_R2   = 36864
L_KVT  = 147456
L_ZERO = L_KVT + 48*96
L_STAT = L_ZERO + 64
L_WMAX = L_STAT + 2048
L_RANK = L_WMAX + 64
L_AIMG = L_RANK + 128
L_FIN  = L_AIMG + 512
LDS_BYTES = 163840
assert L_FIN + 1024 <= LDS_BYTES

NV = 112
ACC = 16
def acc(T, tt): return ACC + (T*2+tt)*4
WF = 72
NCT_H = 6

class K1:
    def __init__(self, stop=None, prof=False):
        self.A = Asm(); self.stop = stop; self.prof = prof; self.stamps = []
        self.PF = int(os.environ.get('PF', 5))
        self.nbar = 0

    def stamp(self, name):
        if not self.prof: return
        if name in os.environ.get('NOSTAMP', '').split(','): return
        if name in self.stamps: i = self.stamps.index(name)
        else:
            i = len(self.stamps); assert i < 19
            self.stamps.append(name)
        op = 's_memtime' if os.environ.get('CYC') else 's_memrealtime'
        self.A(f'{op} s[{64+2*i}:{65+2*i}]')
    def poll_begin(self):
        A = self.A
        L = A.newlabel('POLL')
        A(f's_mov_b32 s62, {SPIN}')
        A.label(L)
        return L
    def poll_end(self, L):
        A = self.A
        D = A.newlabel('PDONE')
        A(f's_cbranch_vccz {D}')
        A('s_sub_u32 s62, s62, 1')
        A(f's_cbranch_scc1 {D}')
        A('s_sleep 1')
        A(f's_branch {L}')
        A.label(D)
    def waitall_vm(self):
        self.A('s_waitcnt vmcnt(0)'); self.A.vm = []
    def bar(self):
        self.A('s_barrier'); self.nbar += 1
    def barrier(self):
        self.A.wait_lg(); self.bar()
    def xsum_g(self, regs, tmp):
        A = self.A
        for swap in ('v_permlane16_swap_b32', 'v_permlane32_swap_b32'):
            for i, r in enumerate(regs): A(f'v_mov_b32 v{tmp+i}, v{r}')
            for i, r in enumerate(regs): A(f'{swap} v{r}, v{tmp+i}')
            for i, r in enumerate(regs): A(f'v_add_f32 v{r}, v{r}, v{tmp+i}')

    def prologue(self):
        A = self.A
        A('s_cmp_ge_u32 s2, 256'); A('s_cbranch_scc1 K1_END')
        A('s_load_dwordx2 s[4:5], s[0:1], 0')
        A('s_load_dwordx4 s[8:11], s[0:1], 48')
        A('s_load_dwordx4 s[12:15], s[0:1], 64')
        A('s_load_dwordx2 s[6:7], s[0:1], 88')
        A('v_mov_b32 v4, v0')
        A('v_lshrrev_b32 v1, 6, v0')
        A('v_and_b32 v0, 63, v0')
        A('v_readfirstlane_b32 s3, v1')
        A('v_lshlrev_b32 v1, 4, v0')
        A('s_and_b32 s44, s2, 7'); A('s_lshr_b32 s45, s2, 3')
        A('s_lshr_b32 s40, s44, 1'); A('s_lshl_b32 s40, s40, 2'); A('s_lshr_b32 s46, s45, 3'); A('s_add_u32 s40, s40, s46')
        A('s_and_b32 s41, s44, 1'); A('s_lshl_b32 s41, s41, 3'); A('s_and_b32 s46, s45, 7'); A('s_add_u32 s41, s41, s46')
        A('s_lshl_b32 s42, s44, 3'); A('s_lshr_b32 s46, s45, 2'); A('s_add_u32 s42, s42, s46')
        A('s_and_b32 s43, s45, 3')
        A('s_and_b32 s55, s3, 3')
        A('v_and_b32 v2, 15, v0')
        A('v_lshrrev_b32 v3, 4, v0')
        A('s_waitcnt lgkmcnt(0)')
        srd(A, 16, 6, 7, WS_USED)

    def other_srds(self):
        A = self.A
        srd(A, 20, 4, 5, 2048*1152)
        srd(A, 24, 14, 15, 2048*1152)
        srd(A, 28, 8, 9, 576*9216)
        srd(A, 32, 10, 11, 576*9216)
        srd(A, 36, 12, 13, 4608*1152)

    steps_for_chunk = [[0,1,2],[3,4,5],[6,7,8],[9,10,11],[12,13,14,15],[16,17]]

    def c_gemm1(self):
        A = self.A
        A('s_lshl_b32 s46, s40, 3'); A('s_lshl_b32 s47, s55, 1'); A('s_add_u32 s46, s46, s47')
        A('s_mul_i32 s46, s46, 18432')
        A('v_add_u32 v5, s46, v1')
        def xload1(s_, tt):
            A(f's_mov_b32 s49, {tt*18432 + (s_//4)*4096}')
            r = (tt*18+s_)*4
            A(f'buffer_load_dwordx4 a[{r}:{r+3}], v5, s[16:19], s49 offen offset:{(s_%4)*1024}', ('x', s_))
        todo = [(s_, tt) for s_ in range(18) for tt in range(2)]
        P = self.PF
        def issue_upto(step, maxn=None):
            n = 0
            while todo and todo[0][0] <= step and (maxn is None or n < maxn):
                xload1(*todo.pop(0)); n += 1
        issue_upto(P - 1)
        self.other_srds()
        A('v_add_u32 v6, 0x10000, v1')
        def wread(frag, dst, tag):
            if frag < 64: A(f'ds_read_b128 v[{dst}:{dst+3}], v1 offset:{frag*1024}', tag)
            else: A(f'ds_read_b128 v[{dst}:{dst+3}], v6 offset:{(frag-64)*1024}', tag)
        self.wread = wread
        chunk_of = {}
        for c, ss in enumerate(self.steps_for_chunk):
            for s_ in ss: chunk_of[s_] = c
        fill = self.c_setup_list()
        self.stamp('issued')
        self.bar()
        self.stamp('chunk0')
        for T in range(5): wread(T, WF + 4*T, ('r', 0, T))
        for s_ in range(18):
            buf = WF + (s_ & 1)*20; nbuf = WF + ((s_+1) & 1)*20
            for T in range(5):
                A.wait_lg(('r', s_, T))
                if T == 0: A.wait_vm(('x', s_))
                for tt in range(2):
                    d = acc(T, tt); x = (tt*18+s_)*4
                    c = '0' if s_ == 0 else f'v[{d}:{d+3}]'
                    A(f'v_mfma_f32_16x16x32_bf16 v[{d}:{d+3}], v[{buf+4*T}:{buf+4*T+3}], a[{x}:{x+3}], {c}')
                if s_ + 1 < 18:
                    if T == 0 and chunk_of[s_+1] != chunk_of[s_]: self.bar()
                    wread((s_+1)*5+T, nbuf + 4*T, ('r', s_+1, T))
                if T in (1, 3): issue_upto(s_ + P, 1)
                if T in (2, 4) and fill and s_ >= 1: A(fill.pop(0))
            issue_upto(s_ + P)
        for f in fill: A(f)

    def c_setup_list(self):
        f = []
        f += ['v_and_b32 v14, 1, v3', 'v_cmp_eq_u32 vcc, 0, v14', 'v_mov_b32 v15, 1.0', 's_nop 0', 'v_cndmask_b32 v7, 0, v15, vcc']
        f += ['s_lshl_b32 s46, s55, 5', 'v_add_u32 v8, s46, v2', 'v_mul_u32_u24 v8, 288, v8', 'v_lshl_add_u32 v8, v3, 6, v8']
        return f

    def c_setup2(self):
        A = self.A
        t0, t1, t2, t3, t4 = 100, 101, 102, 103, 104
        A(f'v_lshrrev_b32 v{t0}, 2, v2')
        A(f'v_and_b32 v{t1}, 3, v2')
        A(f'v_lshrrev_b32 v{t2}, 1, v{t0}')
        A(f'v_and_b32 v{t0}, 1, v{t0}')
        A(f'v_lshrrev_b32 v{t3}, 1, v3')
        A(f'v_cmp_eq_u32 s[52:53], v{t2}, v{t3}')
        A(f'v_mul_u32_u24 v{t2}, 24, v{t2}')
        A(f'v_and_b32 v{t3}, 1, v3'); A(f'v_mul_u32_u24 v{t3}, 48, v{t3}')
        A(f'v_add_u32 v{t3}, {L_KVT}, v{t3}')
        A(f'v_mov_b32 v{t4}, {L_ZERO}')
        for To in range(3):
            A(f'v_add_u32 v14, {4*To}, v{t1}')
            A(f'v_mad_u32_u24 v15, v{t0}, 12, v14')
            A('v_cmp_eq_u32 vcc, 9, v14'); A('v_cndmask_b32 v15, v15, v14, vcc')
            A(f'v_add_u32 v15, v{t2}, v15'); A('v_mul_u32_u24 v15, 96, v15'); A(f'v_add_u32 v15, v15, v{t3}')
            A('v_cmp_ge_u32 vcc, 9, v14'); A('s_and_b64 vcc, vcc, s[52:53]')
            A(f'v_cndmask_b32 v{9+To}, v{t4}, v15, vcc')
        A('s_lshl_b32 s46, s40, 3'); A('s_lshl_b32 s47, s55, 1'); A('s_add_u32 s46, s46, s47')
        A('s_lshl_b32 s46, s46, 4'); A('s_add_u32 s46, s46, s41')
        A('s_lshl_b32 s47, s46, 10'); A(f's_add_u32 s47, s47, {OPM_OFF}'); A('v_add_u32 v12, s47, v1')
        A('s_lshl_b32 s47, s46, 8'); A(f's_add_u32 s47, s47, {OPT_OFF}'); A('v_lshlrev_b32 v13, 2, v0'); A('v_add_u32 v13, s47, v13')

    def c_part2(self):
        A = self.A; wread = self.wread
        for T in range(2): wread(90 + T, WF + 4*T, ('r2', 0, T))
        for s_ in range(18):
            buf = WF + (s_ & 1)*8; nbuf = WF + ((s_+1) & 1)*8
            for T in range(2):
                A.wait_lg(('r2', s_, T))
                for tt in range(2):
                    d = acc(5+T, tt); x = (tt*18+s_)*4
                    c = '0' if s_ == 0 else f'v[{d}:{d+3}]'
                    A(f'v_mfma_f32_16x16x32_bf16 v[{d}:{d+3}], v[{buf+4*T}:{buf+4*T+3}], a[{x}:{x+3}], {c}')
                if s_ + 1 < 18: wread(90 + (s_+1)*2+T, nbuf + 4*T, ('r2', s_+1, T))

    def softmax9(self, r, out, t0):
        A = self.A
        ep = [t0 + 2*i for i in range(9)]; em = [t0 + 2*i + 1 for i in range(9)]
        mx, mn, t1, t2 = t0+18, t0+19, t0+20, t0+21
        assert t0 % 2 == 0
        A(f'v_max3_f32 v{mx}, v{r[0]}, v{r[1]}, v{r[2]}'); A(f'v_min3_f32 v{mn}, v{r[0]}, v{r[1]}, v{r[2]}')
        A(f'v_max3_f32 v{t1}, v{r[3]}, v{r[4]}, v{r[5]}'); A(f'v_min3_f32 v{t2}, v{r[3]}, v{r[4]}, v{r[5]}')
        A(f'v_max3_f32 v{mx}, v{mx}, v{r[6]}, v{r[7]}'); A(f'v_min3_f32 v{mn}, v{mn}, v{r[6]}, v{r[7]}')
        A(f'v_max3_f32 v{mx}, v{mx}, v{t1}, v{r[8]}'); A(f'v_min3_f32 v{mn}, v{mn}, v{t2}, v{r[8]}')
        A(f'v_mov_b32 v{t1}, v{mx}'); A(f'v_mov_b32 v{t2}, v{mn}')
        A(f'v_permlane16_swap_b32 v{mx}, v{t1}'); A(f'v_permlane16_swap_b32 v{mn}, v{t2}')
        A(f'v_max_f32 v{mx}, v{mx}, v{t1}'); A(f'v_min_f32 v{mn}, v{mn}, v{t2}')
        for i in range(9):
            A(f'v_sub_f32 v{ep[i]}, v{r[i]}, v{mx}'); A(f'v_sub_f32 v{em[i]}, v{mn}, v{r[i]}')
        for i in range(9):
            A(f'v_exp_f32 v{ep[i]}, v{ep[i]}'); A(f'v_exp_f32 v{em[i]}, v{em[i]}')
        A(f'v_pk_add_f32 v[{mx}:{mn}], v[{ep[0]}:{em[0]}], v[{ep[1]}:{em[1]}]')
        A(f'v_pk_add_f32 v[{t1}:{t2}], v[{ep[2]}:{em[2]}], v[{ep[3]}:{em[3]}]')
        for i in (4, 6):
            A(f'v_pk_add_f32 v[{mx}:{mn}], v[{mx}:{mn}], v[{ep[i]}:{em[i]}]')
            A(f'v_pk_add_f32 v[{t1}:{t2}], v[{t1}:{t2}], v[{ep[i+1]}:{em[i+1]}]')
        A(f'v_pk_add_f32 v[{mx}:{mn}], v[{mx}:{mn}], v[{ep[8]}:{em[8]}]')
        A(f'v_pk_add_f32 v[{mx}:{mn}], v[{mx}:{mn}], v[{t1}:{t2}]')
        A(f'v_mov_b32 v{t1}, v{mx}'); A(f'v_mov_b32 v{t2}, v{mn}')
        A(f'v_permlane16_swap_b32 v{mx}, v{t1}'); A(f'v_permlane16_swap_b32 v{mn}, v{t2}')
        A(f'v_pk_add_f32 v[{mx}:{mn}], v[{mx}:{mn}], v[{t1}:{t2}]')
        A(f'v_rcp_f32 v{mx}, v{mx}'); A(f'v_rcp_f32 v{mn}, v{mn}')
        for i in range(9):
            A(f'v_pk_mul_f32 v[{ep[i]}:{em[i]}], v[{ep[i]}:{em[i]}], v[{mx}:{mn}]')
        for k, e in enumerate((ep, em)):
            for m in range(4): A(f'v_cvt_pk_bf16_f32 v{out+5*k+m}, v{e[2*m]}, v{e[2*m+1]}')
            A(f'v_cvt_pk_bf16_f32 v{out+5*k+4}, v{e[8]}, 0')

    def kregs(self, tt, base):
        return [acc((base+i) >> 2, tt) + ((base+i) & 3) for i in range(9)]

    def c_program(self):
        A = self.A
        self.c_gemm1()
        self.stamp('gemm1')
        self.bar()
        B, TMP = 72, 88
        for tt in range(2):
            self.softmax9(self.kregs(tt, 0), B, TMP)
            vv = self.kregs(tt, 9)
            for m in range(4): A(f'v_cvt_pk_bf16_f32 v{B+10+m}, v{vv[2*m]}, v{vv[2*m+1]}')
            A(f'v_cvt_pk_bf16_f32 v{B+14}, v{vv[8]}, v7')
            A(f'v_mov_b32 v{B+15}, 0')
            for q in range(4):
                A(f'ds_write_b128 v8, v[{B+4*q}:{B+4*q+3}] offset:{L_IMG + tt*16*288 + 16*q}', 'img')
            if tt == 0: A.wait_lg()
        self.stamp('softk')
        self.barrier()
        self.c_part2()
        self.stamp('gemm2')
        self.c_setup2()
        for tt in range(2):
            P = 16 + 12*tt
            self.softmax9(self.kregs(tt, 18), P, 88)
            A(f'v_mov_b32 v{P+10}, 0'); A(f'v_mov_b32 v{P+11}, 0')
        self.stamp('softq')
        self.wo_loads(NCT_H, 9 - NCT_H)
        self.bar()
        self.stamp('h1')
        AF, D = 40, 76
        for To in range(3):
            for s2 in range(3):
                a_ = AF + (To*3+s2)*4
                A(f'ds_read_b128 v[{a_}:{a_+3}], v{9+To} offset:{16*s2}', ('s2', To))
        for tt in range(2):
            P = 16 + 12*tt; Dt = D + 12*tt
            for To in range(3):
                if tt == 0: A.wait_lg(('s2', To))
                for s2 in range(3):
                    a_ = AF + (To*3+s2)*4; d = Dt + 4*To
                    c = '0' if s2 == 0 else f'v[{d}:{d+3}]'
                    A(f'v_mfma_f32_16x16x32_bf16 v[{d}:{d+3}], v[{a_}:{a_+3}], v[{P+4*s2}:{P+4*s2+3}], {c}')
        for tt in range(2):
            Dt = D + 12*tt; O = 100 + 6*tt
            A(f'v_add_f32 v14, 0x358637bd, v{Dt+9}')
            A('v_rcp_f32 v14, v14')
            for i in range(9): A(f'v_mul_f32 v{Dt+i}, v{Dt+i}, v14')
            O = 40 + 8*tt
            for m in range(4): A(f'v_cvt_pk_bf16_f32 v{O+m}, v{Dt+2*m}, v{Dt+2*m+1}')
            A(f'v_cvt_pk_bf16_f32 v{O+4}, v{Dt+8}, 0')
            A(f's_mov_b32 s46, {tt*16384}'); A(f's_mov_b32 s47, {tt*4096}')
            A(f'buffer_store_dwordx4 v[{O}:{O+3}], v12, s[16:19], s46 offen sc1', 'op')
            A(f'buffer_store_dword v{O+4}, v13, s[16:19], s47 offen sc1', 'op')
        self.stamp('opub')

    def wo_loads(self, ct0, n, i0=0, i1=None, areg=14):
        A = self.A
        if i1 is None: i1 = n*5
        if i0 == 0:
            A('s_lshl_b32 s46, s43, 2'); A('s_add_u32 s46, s46, s55'); A('s_mul_i32 s46, s46, 9'); A(f's_add_u32 s46, s46, {ct0}')
            A('s_mul_i32 s46, s46, 5120'); A(f's_add_u32 s46, s46, {WOP_OFF}')
            A(f'v_add_u32 v{areg}, s46, v1')
        for i in range(i0, i1):
            if i % 4 == 0 or i == i0: A(f's_mov_b32 s47, {(i//4)*4096}')
            A(f'buffer_load_dwordx4 a[{4*i}:{4*i+3}], v{areg}, s[16:19], s47 offen offset:{(i%4)*1024}', 'wo')

    def h_program(self):
        A = self.A
        A(f's_mul_i32 s46, s41, {WP_J}'); A(f's_add_u32 s46, s46, {WP_OFF}')
        A('s_lshl_b32 s54, s55, 12'); A('s_add_u32 s46, s46, s54')
        A('v_add_u32 v5, s46, v1')
        def dma(c):
            A(f's_add_u32 m0, s54, {c*16384}')
            A(f's_mov_b32 s48, {c*16384}')
            for i in range(4):
                A(f'buffer_load_dwordx4 v5, s[16:19], s48 offen offset:{i*1024} lds', ('w', c))
        LA = int(os.environ.get('LA', 3))
        for c in range(LA): dma(c)
        self.other_srds()
        n16 = (L_AIMG - L_KVT)//16
        for r in range(8, 12): A(f'v_mov_b32 v{r}, 0')
        A('v_subrev_u32 v12, 256, v4')
        A('v_lshlrev_b32 v13, 4, v12'); A(f'v_add_u32 v13, {L_KVT}, v13')
        A('ds_write_b128 v13, v[8:11]', 'z')
        A(f'v_cmp_gt_u32 vcc, {n16-256}, v12')
        A('s_and_saveexec_b64 s[50:51], vcc')
        A('ds_write_b128 v13, v[8:11] offset:4096', 'z')
        A('s_mov_b64 exec, s[50:51]')
        A.wait_lg()
        self.stamp('issued')
        for c in range(6):
            A.wait_vm(('w', c)); self.bar()
            if c == 0: self.stamp('chunk0')
            if c + LA < 6: dma(c + LA)
        self.h_setup()
        self.stamp('gemm1')
        self.bar()
        dma(6); dma(7)
        W1 = int(os.environ.get('W1', 8))
        self.wo_loads(0, NCT_H, 0, W1, areg=25)
        A.wait_vm([('w', 6), ('w', 7)])
        self.stamp('softk')
        self.bar()
        AFr, BFr, D = 32, 80, 96
        for ks in range(4):
            rl = []
            for h in range(2):
                b = BFr + 4*ks + 2*h
                rl.append((f'ds_read_b64_tr_b16 v[{b}:{b+1}], v17 offset:{L_IMG + ks*9216 + h*4608}', ('kb', ks)))
            for T in range(3):
                for h in range(2):
                    a_ = AFr + (ks*3+T)*4 + 2*h
                    rl.append((f'ds_read_b64_tr_b16 v[{a_}:{a_+1}], v{14+T} offset:{L_IMG + ks*9216 + h*4608}', ('ka', ks)))
            for x in rl[:4]: A(*x)
            if ks >= 1: self._kvm(ks-1, AFr, BFr, D)
            for x in rl[4:]: A(*x)
        self._kvm(3, AFr, BFr, D)
        for T in range(3):
            A(f'buffer_store_dwordx4 v[{D+4*T}:{D+4*T+3}], v{19 if T == 2 else 18}, s[16:19], 0 offen offset:{64*T} sc1', 'kvp')
        self.stamp('gemm2')
        self.wo_loads(0, NCT_H, W1, None, areg=25)
        LD = 32
        L1 = [96, 100, 104, 108, 24-0, 28, 8, 14+0]
        L1 = [96, 100, 104, 108, 28, 8, 14, 16]
        L1 = [96, 100, 104, 108, 28, 8, 14, 26]
        L1 = [96, 100, 104, 108, 28, 8, 14, 24]
        L = self.poll_begin()
        for m in range(16):
            A(f's_mov_b32 s{46+(m&1)}, {m*KVP_ONE}')
            A(f'buffer_load_dwordx4 v[{LD+4*m}:{LD+4*m+3}], v20, s[16:19], s{46+(m&1)} offen sc1', 'kv')
        for m in range(8):
            A(f's_mov_b32 s{46+(m&1)}, {m*KVP_ONE}')
            A(f'buffer_load_dwordx4 v[{L1[m]}:{L1[m]+3}], v22, s[16:19], s{46+(m&1)} offen sc1', 'kv')
        self.waitall_vm()
        def padd(d, s_):
            for b in (0, 2): A(f'v_pk_add_f32 v[{d+b}:{d+b+1}], v[{d+b}:{d+b+1}], v[{s_+b}:{s_+b+1}]')
        for st in (1, 2, 4, 8):
            for m in range(0, 16, 2*st): padd(LD+4*m, LD+4*(m+st))
        for st in (1, 2, 4):
            for m in range(0, 8, 2*st): padd(L1[m], L1[m+st])
        E = L1[0]
        for b in range(4): A(f'v_add_f32_dpp v{E+b}, v{E+b}, v{E+b} quad_perm:[1,0,3,2] row_mask:0xf bank_mask:0xf')
        A(f'v_add_f32 v18, v{LD}, v{LD+1}'); A(f'v_add_f32 v19, v{LD+2}, v{LD+3}'); A('v_add_f32 v18, v18, v19')
        A(f'v_add_f32 v19, v{E}, v{E+1}'); A('v_add_f32 v18, v18, v19'); A(f'v_add_f32 v19, v{E+2}, v{E+3}'); A('v_add_f32 v18, v18, v19')
        A('v_cmp_u_f32 vcc, v18, v18')
        self.poll_end(L)
        A(f'v_cvt_pk_bf16_f32 v18, v{LD}, v{LD+1}'); A(f'v_cvt_pk_bf16_f32 v19, v{LD+2}, v{LD+3}')
        A('ds_write_b64 v21, v[18:19]', 'kvt')
        A(f'v_cvt_pk_bf16_f32 v26, v{E}, v{E+1}'); A(f'v_cvt_pk_bf16_f32 v27, v{E+2}, v{E+3}')
        A('v_cmp_gt_u32 vcc, 248, v12')
        A('s_and_saveexec_b64 s[50:51], vcc')
        A('ds_write_b64 v23, v[26:27]', 'kvt')
        A('s_mov_b64 exec, s[50:51]')
        A.wait_lg()
        self.stamp('softq')
        self.bar()
        self.stamp('h1')
        self.stamp('opub')

    def _kvm(self, ks, AFr, BFr, D):
        A = self.A
        A.wait_lg([('kb', ks), ('ka', ks)])
        for T in range(3):
            a_ = AFr + (ks*3+T)*4; b = BFr + 4*ks; d = D + 4*T
            c = '0' if ks == 0 else f'v[{d}:{d+3}]'
            A(f'v_mfma_f32_16x16x32_bf16 v[{d}:{d+3}], v[{a_}:{a_+3}], v[{b}:{b+3}], {c}')

    def h_setup(self):
        A = self.A
        A('v_lshrrev_b32 v9, 2, v0')
        A('v_mul_u32_u24 v9, 288, v9')
        A('s_lshr_b32 s46, s55, 1'); A('s_lshl_b32 s47, s46, 7')
        A('v_add_u32 v9, s47, v9')
        A('v_and_b32 v10, 3, v0')
        for T in range(3):
            A(f'v_add_u32 v11, {4*T}, v10'); A('v_lshlrev_b32 v24, 3, v11'); A('v_add_u32 v13, 24, v24')
            A('v_cmp_gt_u32 vcc, 5, v11'); A('v_cndmask_b32 v24, v13, v24, vcc')
            A(f'v_add_u32 v{14+T}, v9, v24')
        A('s_and_b32 s48, s55, 1'); A('s_lshl_b32 s47, s48, 2')
        A('v_add_u32 v11, s47, v10'); A('v_lshlrev_b32 v24, 3, v11')
        A('v_add_u32 v13, 80, v24'); A('v_add_u32 v24, 40, v24')
        A('v_cmp_gt_u32 vcc, 3, v11'); A('v_cndmask_b32 v24, v13, v24, vcc')
        A('v_mov_b32 v13, 40'); A('v_cmp_gt_u32 vcc, 6, v11'); A('v_cndmask_b32 v24, v13, v24, vcc')
        A('v_add_u32 v17, v9, v24')
        A('s_lshl_b32 s47, s48, 4')
        A('v_add_u32 v11, s47, v2')
        A('s_mul_i32 s48, s46, 24')
        A('v_add_u32 v24, s48, v11'); A('v_mul_u32_u24 v24, 10, v24'); A('v_add_u32 v24, v24, v3'); A('v_lshlrev_b32 v24, 4, v24')
        A('s_lshl_b32 s48, s41, 4'); A('s_add_u32 s48, s48, s40'); A(f's_mul_i32 s48, s48, {KVP_ONE}'); A(f's_add_u32 s48, s48, {KVP_OFF}')
        A('v_add_u32 v24, s48, v24')
        A(f'v_mov_b32 v13, {BIG}')
        A('v_subrev_u32 v19, 12, v11')
        A('v_cmp_gt_u32 s[52:53], 9, v19'); A('v_cmp_gt_u32 vcc, 10, v11'); A('s_or_b64 vcc, vcc, s[52:53]')
        A('v_cndmask_b32 v18, v13, v24, vcc')
        A('v_cmp_gt_u32 vcc, 2, v3'); A('v_cndmask_b32 v19, v13, v18, vcc')
        A(f's_mul_i32 s46, s41, {16*KVP_ONE}'); A(f's_add_u32 s46, s46, {KVP_OFF}')
        for rnd in range(2):
            ga, la = (20, 21) if rnd == 0 else (22, 23)
            if rnd == 0: A('v_mov_b32 v24, v12')
            else:
                A('v_lshrrev_b32 v24, 1, v12'); A('v_add_u32 v24, 256, v24'); A('v_min_u32 v24, 379, v24')
            A('v_mul_u32_u24 v8, 6554, v24'); A('v_lshrrev_b32 v8, 16, v8')
            A('v_mul_u32_u24 v9, 10, v8'); A('v_sub_u32 v9, v24, v9')
            A('v_cmp_le_u32 vcc, 19, v8'); A('v_cndmask_b32 v10, 0, 1, vcc')
            A('v_mul_u32_u24 v11, 19, v10'); A('v_sub_u32 v11, v8, v11')
            A('v_cmp_le_u32 vcc, 10, v11'); A('v_cndmask_b32 v13, 0, 2, vcc'); A('v_add_u32 v11, v11, v13')
            A('v_mad_u32_u24 v11, v10, 24, v11')
            A(f'v_mad_u32_u24 v{ga}, v11, 10, v9'); A(f'v_lshlrev_b32 v{ga}, 4, v{ga}')
            A(f'v_add_u32 v{ga}, s46, v{ga}')
            if rnd == 1:
                A('v_and_b32 v13, 1, v12'); A(f'v_mul_u32_u24 v13, {8*KVP_ONE}, v13'); A(f'v_add_u32 v{ga}, v{ga}, v13')
            A(f'v_mul_u32_u24 v{la}, 96, v11'); A(f'v_lshl_add_u32 v{la}, v9, 3, v{la}')
            A('v_cmp_le_u32 vcc, 5, v9'); A('v_cndmask_b32 v13, 0, 8, vcc'); A(f'v_add_u32 v{la}, v{la}, v13')
            A(f'v_add_u32 v{la}, {L_KVT}, v{la}')

    def dump(self, regs, slot):
        A = self.A
        A('s_lshl_b32 s60, s2, 3'); A('s_add_u32 s60, s60, s3'); A('s_mul_i32 s60, s60, 4096'); A(f's_add_u32 s60, s60, {DBG_OFF}')
        A('v_lshlrev_b32 v111, 2, v0'); A('v_add_u32 v111, s60, v111')
        for i, r in enumerate(regs):
            off = (slot+i)*256
            assert off < 4096
            if r[0] == 'a':
                A(f'v_accvgpr_read_b32 v110, {r}'); r = 'v110'
            A(f'buffer_store_dword {r}, v111, s[16:19], 0 offen offset:{off}')
            A('s_nop 1')

    def finish(self):
        A = self.A
        A.label('K1_FIN')
        if self.prof:
            self.stamp('end')
            A('s_waitcnt lgkmcnt(0)')
            A('s_lshl_b32 s60, s2, 3'); A('s_add_u32 s60, s60, s3'); A('s_lshl_b32 s60, s60, 7')
            A(f's_add_u32 s60, s60, {DBG_OFF + (8<<20)}')
            A('v_mov_b32 v110, s60')
            for i in range(len(self.stamps)):
                A(f'v_mov_b32 v111, s{64+2*i}')
                A(f'buffer_store_dword v111, v110, s[16:19], 0 offen offset:{4*i}')
        if os.environ.get('DIAG') and self.prof:
            A('s_load_dwordx2 s[4:5], s[0:1], 80'); A('s_waitcnt lgkmcnt(0)')
            A('s_sub_u32 s4, s4, 512'); A('s_subb_u32 s5, s5, 0')
            A('s_cmp_lg_u32 s2, %s' % os.environ.get('DIAGWG', '0')); A('s_cbranch_scc1 K1_END')
            A('s_cmp_lg_u32 s3, 0'); A('s_cbranch_scc1 K1_END')
            srd(A, 24, 4, 5, 256)
            A('v_mov_b32 v110, 0')
            sel = os.environ['DIAG'].split(',')
            for k, nm in enumerate(sel):
                i = self.stamps.index(nm)
                A(f'v_mov_b32 v111, s{64+2*i}')
                A(f'buffer_store_dword v111, v110, s[24:27], 0 offen offset:{8+4*k}')
        A.label('K1_END'); A('s_endpgm')
        return A.text()

def gen_k1(stop=None, prof=False):
    K = K1(stop, prof)
    global LAST; LAST = K
    A = K.A
    K.stamp('start')
    K.prologue()
    K.stamp('prolog')
    A('s_cmp_ge_u32 s3, 4'); A('s_cbranch_scc1 K1_H')
    vm0, lg0 = list(A.vm), list(A.lg)
    K.nbar = 0
    K.c_program()
    nb_c = K.nbar
    A('s_branch K1_JOIN')
    A.label('K1_H')
    A.vm, A.lg, A.hist = list(vm0), list(lg0), []
    K.nbar = 0
    K.h_program()
    assert K.nbar == nb_c, (K.nbar, nb_c)
    A.label('K1_JOIN')
    A('s_nop 7')
    A.vm = ['?']*0; A.lg = []
    if stop == 'o': return K.finish()
    import k1b
    k1b.rest(K)
    return K.finish()
```

```python
import os
from asmlib import *
from layout import *
from k0 import srd, BIG

SPIN = 3000
LOG2E = 0x3FB8AA3B

L_W    = 0
L_IMG  = 0
L_RED  = 0
L_GU   = 73728
L_DN   = 0
L_R2   = 36864
L_KVT  = 147456
L_ZERO = L_KVT + 48*96
L_STAT = L_ZERO + 64
L_WMAX = L_STAT + 2048
L_RANK = L_WMAX + 64
L_AIMG = L_RANK + 128
L_FIN  = L_AIMG + 512
LDS_BYTES = 163840
assert L_FIN + 1024 <= LDS_BYTES

NV = 112
ACC = 16
def acc(T, tt): return ACC + (T*2+tt)*4
WF = 72
NCT_H = 6

class K1:
    def __init__(self, stop=None, prof=False):
        self.A = Asm(); self.stop = stop; self.prof = prof; self.stamps = []
        self.PF = int(os.environ.get('PF', 5))
        self.nbar = 0

    def stamp(self, name):
        if not self.prof: return
        if name in os.environ.get('NOSTAMP', '').split(','): return
        if name in self.stamps: i = self.stamps.index(name)
        else:
            i = len(self.stamps); assert i < 19
            self.stamps.append(name)
        op = 's_memtime' if os.environ.get('CYC') else 's_memrealtime'
        self.A(f'{op} s[{64+2*i}:{65+2*i}]')
    def poll_begin(self):
        A = self.A
        L = A.newlabel('POLL')
        A(f's_mov_b32 s62, {SPIN}')
        A.label(L)
        return L
    def poll_end(self, L):
        A = self.A
        D = A.newlabel('PDONE')
        A(f's_cbranch_vccz {D}')
        A('s_sub_u32 s62, s62, 1')
        A(f's_cbranch_scc1 {D}')
        A('s_sleep 1')
        A(f's_branch {L}')
        A.label(D)
    def waitall_vm(self):
        self.A('s_waitcnt vmcnt(0)'); self.A.vm = []
    def bar(self):
        self.A('s_barrier'); self.nbar += 1
    def barrier(self):
        self.A.wait_lg(); self.bar()
    def xsum_g(self, regs, tmp):
        A = self.A
        for swap in ('v_permlane16_swap_b32', 'v_permlane32_swap_b32'):
            for i, r in enumerate(regs): A(f'v_mov_b32 v{tmp+i}, v{r}')
            for i, r in enumerate(regs): A(f'{swap} v{r}, v{tmp+i}')
            for i, r in enumerate(regs): A(f'v_add_f32 v{r}, v{r}, v{tmp+i}')

    def prologue(self):
        A = self.A
        A('s_cmp_ge_u32 s2, 256'); A('s_cbranch_scc1 K1_END')
        A('s_load_dwordx2 s[4:5], s[0:1], 0')
        A('s_load_dwordx4 s[8:11], s[0:1], 48')
        A('s_load_dwordx4 s[12:15], s[0:1], 64')
        A('s_load_dwordx2 s[6:7], s[0:1], 88')
        A('v_mov_b32 v4, v0')
        A('v_lshrrev_b32 v1, 6, v0')
        A('v_and_b32 v0, 63, v0')
        A('v_readfirstlane_b32 s3, v1')
        A('v_lshlrev_b32 v1, 4, v0')
        A('s_and_b32 s44, s2, 7'); A('s_lshr_b32 s45, s2, 3')
        A('s_lshr_b32 s40, s44, 1'); A('s_lshl_b32 s40, s40, 2'); A('s_lshr_b32 s46, s45, 3'); A('s_add_u32 s40, s40, s46')
        A('s_and_b32 s41, s44, 1'); A('s_lshl_b32 s41, s41, 3'); A('s_and_b32 s46, s45, 7'); A('s_add_u32 s41, s41, s46')
        A('s_lshl_b32 s42, s44, 3'); A('s_lshr_b32 s46, s45, 2'); A('s_add_u32 s42, s42, s46')
        A('s_and_b32 s43, s45, 3')
        A('s_and_b32 s55, s3, 3')
        A('v_and_b32 v2, 15, v0')
        A('v_lshrrev_b32 v3, 4, v0')
        A('s_waitcnt lgkmcnt(0)')
        srd(A, 16, 6, 7, WS_USED)

    def other_srds(self):
        A = self.A
        srd(A, 20, 4, 5, 2048*1152)
        srd(A, 24, 14, 15, 2048*1152)
        srd(A, 28, 8, 9, 576*9216)
        srd(A, 32, 10, 11, 576*9216)
        srd(A, 36, 12, 13, 4608*1152)

    steps_for_chunk = [[0,1,2],[3,4,5],[6,7,8],[9,10,11],[12,13,14,15],[16,17]]

    def c_gemm1(self):
        A = self.A
        A('s_lshl_b32 s46, s40, 3'); A('s_lshl_b32 s47, s55, 1'); A('s_add_u32 s46, s46, s47')
        A('s_mul_i32 s46, s46, 18432')
        A('v_add_u32 v5, s46, v1')
        def xload1(s_, tt):
            A(f's_mov_b32 s49, {tt*18432 + (s_//4)*4096}')
            r = (tt*18+s_)*4
            A(f'buffer_load_dwordx4 a[{r}:{r+3}], v5, s[16:19], s49 offen offset:{(s_%4)*1024}', ('x', s_))
        todo = [(s_, tt) for s_ in range(18) for tt in range(2)]
        P = self.PF
        def issue_upto(step, maxn=None):
            n = 0
            while todo and todo[0][0] <= step and (maxn is None or n < maxn):
                xload1(*todo.pop(0)); n += 1
        issue_upto(P - 1)
        self.other_srds()
        A('v_add_u32 v6, 0x10000, v1')
        def wread(frag, dst, tag):
            if frag < 64: A(f'ds_read_b128 v[{dst}:{dst+3}], v1 offset:{frag*1024}', tag)
            else: A(f'ds_read_b128 v[{dst}:{dst+3}], v6 offset:{(frag-64)*1024}', tag)
        self.wread = wread
        chunk_of = {}
        for c, ss in enumerate(self.steps_for_chunk):
            for s_ in ss: chunk_of[s_] = c
        fill = self.c_setup_list()
        self.stamp('issued')
        self.bar()
        self.stamp('chunk0')
        for T in range(5): wread(T, WF + 4*T, ('r', 0, T))
        for s_ in range(18):
            buf = WF + (s_ & 1)*20; nbuf = WF + ((s_+1) & 1)*20
            for T in range(5):
                A.wait_lg(('r', s_, T))
                if T == 0: A.wait_vm(('x', s_))
                for tt in range(2):
                    d = acc(T, tt); x = (tt*18+s_)*4
                    c = '0' if s_ == 0 else f'v[{d}:{d+3}]'
                    A(f'v_mfma_f32_16x16x32_bf16 v[{d}:{d+3}], v[{buf+4*T}:{buf+4*T+3}], a[{x}:{x+3}], {c}')
                if s_ + 1 < 18:
                    if T == 0 and chunk_of[s_+1] != chunk_of[s_]: self.bar()
                    wread((s_+1)*5+T, nbuf + 4*T, ('r', s_+1, T))
                if T in (1, 3): issue_upto(s_ + P, 1)
                if T in (2, 4) and fill and s_ >= 1: A(fill.pop(0))
            issue_upto(s_ + P)
        for f in fill: A(f)

    def c_setup_list(self):
        f = []
        f += ['v_and_b32 v14, 1, v3', 'v_cmp_eq_u32 vcc, 0, v14', 'v_mov_b32 v15, 1.0', 's_nop 0', 'v_cndmask_b32 v7, 0, v15, vcc']
        f += ['s_lshl_b32 s46, s55, 5', 'v_add_u32 v8, s46, v2', 'v_mul_u32_u24 v8, 288, v8', 'v_lshl_add_u32 v8, v3, 6, v8']
        return f

    def c_setup2(self):
        A = self.A
        t0, t1, t2, t3, t4 = 100, 101, 102, 103, 104
        A(f'v_lshrrev_b32 v{t0}, 2, v2')
        A(f'v_and_b32 v{t1}, 3, v2')
        A(f'v_lshrrev_b32 v{t2}, 1, v{t0}')
        A(f'v_and_b32 v{t0}, 1, v{t0}')
        A(f'v_lshrrev_b32 v{t3}, 1, v3')
        A(f'v_cmp_eq_u32 s[52:53], v{t2}, v{t3}')
        A(f'v_mul_u32_u24 v{t2}, 24, v{t2}')
        A(f'v_and_b32 v{t3}, 1, v3'); A(f'v_mul_u32_u24 v{t3}, 48, v{t3}')
        A(f'v_add_u32 v{t3}, {L_KVT}, v{t3}')
        A(f'v_mov_b32 v{t4}, {L_ZERO}')
        for To in range(3):
            A(f'v_add_u32 v14, {4*To}, v{t1}')
            A(f'v_mad_u32_u24 v15, v{t0}, 12, v14')
            A('v_cmp_eq_u32 vcc, 9, v14'); A('v_cndmask_b32 v15, v15, v14, vcc')
            A(f'v_add_u32 v15, v{t2}, v15'); A('v_mul_u32_u24 v15, 96, v15'); A(f'v_add_u32 v15, v15, v{t3}')
            A('v_cmp_ge_u32 vcc, 9, v14'); A('s_and_b64 vcc, vcc, s[52:53]')
            A(f'v_cndmask_b32 v{9+To}, v{t4}, v15, vcc')
        A('s_lshl_b32 s46, s40, 3'); A('s_lshl_b32 s47, s55, 1'); A('s_add_u32 s46, s46, s47')
        A('s_lshl_b32 s46, s46, 4'); A('s_add_u32 s46, s46, s41')
        A('s_lshl_b32 s47, s46, 10'); A(f's_add_u32 s47, s47, {OPM_OFF}'); A('v_add_u32 v12, s47, v1')
        A('s_lshl_b32 s47, s46, 8'); A(f's_add_u32 s47, s47, {OPT_OFF}'); A('v_lshlrev_b32 v13, 2, v0'); A('v_add_u32 v13, s47, v13')

    def c_part2(self):
        A = self.A; wread = self.wread
        for T in range(2): wread(90 + T, WF + 4*T, ('r2', 0, T))
        for s_ in range(18):
            buf = WF + (s_ & 1)*8; nbuf = WF + ((s_+1) & 1)*8
            for T in range(2):
                A.wait_lg(('r2', s_, T))
                for tt in range(2):
                    d = acc(5+T, tt); x = (tt*18+s_)*4
                    c = '0' if s_ == 0 else f'v[{d}:{d+3}]'
                    A(f'v_mfma_f32_16x16x32_bf16 v[{d}:{d+3}], v[{buf+4*T}:{buf+4*T+3}], a[{x}:{x+3}], {c}')
                if s_ + 1 < 18: wread(90 + (s_+1)*2+T, nbuf + 4*T, ('r2', s_+1, T))

    def softmax9(self, r, out, t0):
        A = self.A
        ep = [t0 + 2*i for i in range(9)]; em = [t0 + 2*i + 1 for i in range(9)]
        mx, mn, t1, t2 = t0+18, t0+19, t0+20, t0+21
        assert t0 % 2 == 0
        A(f'v_max3_f32 v{mx}, v{r[0]}, v{r[1]}, v{r[2]}'); A(f'v_min3_f32 v{mn}, v{r[0]}, v{r[1]}, v{r[2]}')
        A(f'v_max3_f32 v{t1}, v{r[3]}, v{r[4]}, v{r[5]}'); A(f'v_min3_f32 v{t2}, v{r[3]}, v{r[4]}, v{r[5]}')
        A(f'v_max3_f32 v{mx}, v{mx}, v{r[6]}, v{r[7]}'); A(f'v_min3_f32 v{mn}, v{mn}, v{r[6]}, v{r[7]}')
        A(f'v_max3_f32 v{mx}, v{mx}, v{t1}, v{r[8]}'); A(f'v_min3_f32 v{mn}, v{mn}, v{t2}, v{r[8]}')
        A(f'v_mov_b32 v{t1}, v{mx}'); A(f'v_mov_b32 v{t2}, v{mn}')
        A(f'v_permlane16_swap_b32 v{mx}, v{t1}'); A(f'v_permlane16_swap_b32 v{mn}, v{t2}')
        A(f'v_max_f32 v{mx}, v{mx}, v{t1}'); A(f'v_min_f32 v{mn}, v{mn}, v{t2}')
        for i in range(9):
            A(f'v_sub_f32 v{ep[i]}, v{r[i]}, v{mx}'); A(f'v_sub_f32 v{em[i]}, v{mn}, v{r[i]}')
        for i in range(9):
            A(f'v_exp_f32 v{ep[i]}, v{ep[i]}'); A(f'v_exp_f32 v{em[i]}, v{em[i]}')
        A(f'v_pk_add_f32 v[{mx}:{mn}], v[{ep[0]}:{em[0]}], v[{ep[1]}:{em[1]}]')
        A(f'v_pk_add_f32 v[{t1}:{t2}], v[{ep[2]}:{em[2]}], v[{ep[3]}:{em[3]}]')
        for i in (4, 6):
            A(f'v_pk_add_f32 v[{mx}:{mn}], v[{mx}:{mn}], v[{ep[i]}:{em[i]}]')
            A(f'v_pk_add_f32 v[{t1}:{t2}], v[{t1}:{t2}], v[{ep[i+1]}:{em[i+1]}]')
        A(f'v_pk_add_f32 v[{mx}:{mn}], v[{mx}:{mn}], v[{ep[8]}:{em[8]}]')
        A(f'v_pk_add_f32 v[{mx}:{mn}], v[{mx}:{mn}], v[{t1}:{t2}]')
        A(f'v_mov_b32 v{t1}, v{mx}'); A(f'v_mov_b32 v{t2}, v{mn}')
        A(f'v_permlane16_swap_b32 v{mx}, v{t1}'); A(f'v_permlane16_swap_b32 v{mn}, v{t2}')
        A(f'v_pk_add_f32 v[{mx}:{mn}], v[{mx}:{mn}], v[{t1}:{t2}]')
        A(f'v_rcp_f32 v{mx}, v{mx}'); A(f'v_rcp_f32 v{mn}, v{mn}')
        for i in range(9):
            A(f'v_pk_mul_f32 v[{ep[i]}:{em[i]}], v[{ep[i]}:{em[i]}], v[{mx}:{mn}]')
        for k, e in enumerate((ep, em)):
            for m in range(4): A(f'v_cvt_pk_bf16_f32 v{out+5*k+m}, v{e[2*m]}, v{e[2*m+1]}')
            A(f'v_cvt_pk_bf16_f32 v{out+5*k+4}, v{e[8]}, 0')

    def kregs(self, tt, base):
        return [acc((base+i) >> 2, tt) + ((base+i) & 3) for i in range(9)]

    def c_program(self):
        A = self.A
        self.c_gemm1()
        self.stamp('gemm1')
        self.bar()
        B, TMP = 72, 88
        for tt in range(2):
            self.softmax9(self.kregs(tt, 0), B, TMP)
            vv = self.kregs(tt, 9)
            for m in range(4): A(f'v_cvt_pk_bf16_f32 v{B+10+m}, v{vv[2*m]}, v{vv[2*m+1]}')
            A(f'v_cvt_pk_bf16_f32 v{B+14}, v{vv[8]}, v7')
            A(f'v_mov_b32 v{B+15}, 0')
            for q in range(4):
                A(f'ds_write_b128 v8, v[{B+4*q}:{B+4*q+3}] offset:{L_IMG + tt*16*288 + 16*q}', 'img')
            if tt == 0: A.wait_lg()
        self.stamp('softk')
        self.barrier()
        self.c_part2()
        self.stamp('gemm2')
        self.c_setup2()
        for tt in range(2):
            P = 16 + 12*tt
            self.softmax9(self.kregs(tt, 18), P, 88)
            A(f'v_mov_b32 v{P+10}, 0'); A(f'v_mov_b32 v{P+11}, 0')
        self.stamp('softq')
        self.wo_loads(NCT_H, 9 - NCT_H)
        self.bar()
        self.stamp('h1')
        AF, D = 40, 76
        for To in range(3):
            for s2 in range(3):
                a_ = AF + (To*3+s2)*4
                A(f'ds_read_b128 v[{a_}:{a_+3}], v{9+To} offset:{16*s2}', ('s2', To))
        for tt in range(2):
            P = 16 + 12*tt; Dt = D + 12*tt
            for To in range(3):
                if tt == 0: A.wait_lg(('s2', To))
                for s2 in range(3):
                    a_ = AF + (To*3+s2)*4; d = Dt + 4*To
                    c = '0' if s2 == 0 else f'v[{d}:{d+3}]'
                    A(f'v_mfma_f32_16x16x32_bf16 v[{d}:{d+3}], v[{a_}:{a_+3}], v[{P+4*s2}:{P+4*s2+3}], {c}')
        for tt in range(2):
            Dt = D + 12*tt; O = 100 + 6*tt
            A(f'v_add_f32 v14, 0x358637bd, v{Dt+9}')
            A('v_rcp_f32 v14, v14')
            for i in range(9): A(f'v_mul_f32 v{Dt+i}, v{Dt+i}, v14')
            O = 40 + 8*tt
            for m in range(4): A(f'v_cvt_pk_bf16_f32 v{O+m}, v{Dt+2*m}, v{Dt+2*m+1}')
            A(f'v_cvt_pk_bf16_f32 v{O+4}, v{Dt+8}, 0')
            A(f's_mov_b32 s46, {tt*16384}'); A(f's_mov_b32 s47, {tt*4096}')
            A(f'buffer_store_dwordx4 v[{O}:{O+3}], v12, s[16:19], s46 offen sc1', 'op')
            A(f'buffer_store_dword v{O+4}, v13, s[16:19], s47 offen sc1', 'op')
        self.stamp('opub')

    def wo_loads(self, ct0, n, i0=0, i1=None, areg=14):
        A = self.A
        if i1 is None: i1 = n*5
        if i0 == 0:
            A('s_lshl_b32 s46, s43, 2'); A('s_add_u32 s46, s46, s55'); A('s_mul_i32 s46, s46, 9'); A(f's_add_u32 s46, s46, {ct0}')
            A('s_mul_i32 s46, s46, 5120'); A(f's_add_u32 s46, s46, {WOP_OFF}')
            A(f'v_add_u32 v{areg}, s46, v1')
        for i in range(i0, i1):
            if i % 4 == 0 or i == i0: A(f's_mov_b32 s47, {(i//4)*4096}')
            A(f'buffer_load_dwordx4 a[{4*i}:{4*i+3}], v{areg}, s[16:19], s47 offen offset:{(i%4)*1024}', 'wo')

    def h_program(self):
        A = self.A
        A(f's_mul_i32 s46, s41, {WP_J}'); A(f's_add_u32 s46, s46, {WP_OFF}')
        A('s_lshl_b32 s54, s55, 12'); A('s_add_u32 s46, s46, s54')
        A('v_add_u32 v5, s46, v1')
        def dma(c):
            A(f's_add_u32 m0, s54, {c*16384}')
            A(f's_mov_b32 s48, {c*16384}')
            for i in range(4):
                A(f'buffer_load_dwordx4 v5, s[16:19], s48 offen offset:{i*1024} lds', ('w', c))
        LA = int(os.environ.get('LA', 3))
        for c in range(LA): dma(c)
        self.other_srds()
        n16 = (L_AIMG - L_KVT)//16
        for r in range(8, 12): A(f'v_mov_b32 v{r}, 0')
        A('v_subrev_u32 v12, 256, v4')
        A('v_lshlrev_b32 v13, 4, v12'); A(f'v_add_u32 v13, {L_KVT}, v13')
        A('ds_write_b128 v13, v[8:11]', 'z')
        A(f'v_cmp_gt_u32 vcc, {n16-256}, v12')
        A('s_and_saveexec_b64 s[50:51], vcc')
        A('ds_write_b128 v13, v[8:11] offset:4096', 'z')
        A('s_mov_b64 exec, s[50:51]')
        A.wait_lg()
        self.stamp('issued')
        for c in range(6):
            A.wait_vm(('w', c)); self.bar()
            if c == 0: self.stamp('chunk0')
            if c + LA < 6: dma(c + LA)
        self.h_setup()
        self.stamp('gemm1')
        self.bar()
        dma(6); dma(7)
        W1 = int(os.environ.get('W1', 8))
        self.wo_loads(0, NCT_H, 0, W1, areg=25)
        A.wait_vm([('w', 6), ('w', 7)])
        self.stamp('softk')
        self.bar()
        AFr, BFr, D = 32, 80, 96
        for ks in range(4):
            rl = []
            for h in range(2):
                b = BFr + 4*ks + 2*h
                rl.append((f'ds_read_b64_tr_b16 v[{b}:{b+1}], v17 offset:{L_IMG + ks*9216 + h*4608}', ('kb', ks)))
            for T in range(3):
                for h in range(2):
                    a_ = AFr + (ks*3+T)*4 + 2*h
                    rl.append((f'ds_read_b64_tr_b16 v[{a_}:{a_+1}], v{14+T} offset:{L_IMG + ks*9216 + h*4608}', ('ka', ks)))
            for x in rl[:4]: A(*x)
            if ks >= 1: self._kvm(ks-1, AFr, BFr, D)
            for x in rl[4:]: A(*x)
        self._kvm(3, AFr, BFr, D)
        for T in range(3):
            A(f'buffer_store_dwordx4 v[{D+4*T}:{D+4*T+3}], v{19 if T == 2 else 18}, s[16:19], 0 offen offset:{64*T} sc1', 'kvp')
        self.stamp('gemm2')
        self.wo_loads(0, NCT_H, W1, None, areg=25)
        LD = 32
        L1 = [96, 100, 104, 108, 24-0, 28, 8, 14+0]
        L1 = [96, 100, 104, 108, 28, 8, 14, 16]
        L1 = [96, 100, 104, 108, 28, 8, 14, 26]
        L1 = [96, 100, 104, 108, 28, 8, 14, 24]
        L = self.poll_begin()
        for m in range(16):
            A(f's_mov_b32 s{46+(m&1)}, {m*KVP_ONE}')
            A(f'buffer_load_dwordx4 v[{LD+4*m}:{LD+4*m+3}], v20, s[16:19], s{46+(m&1)} offen sc1', 'kv')
        for m in range(8):
            A(f's_mov_b32 s{46+(m&1)}, {m*KVP_ONE}')
            A(f'buffer_load_dwordx4 v[{L1[m]}:{L1[m]+3}], v22, s[16:19], s{46+(m&1)} offen sc1', 'kv')
        self.waitall_vm()
        def padd(d, s_):
            for b in (0, 2): A(f'v_pk_add_f32 v[{d+b}:{d+b+1}], v[{d+b}:{d+b+1}], v[{s_+b}:{s_+b+1}]')
        for st in (1, 2, 4, 8):
            for m in range(0, 16, 2*st): padd(LD+4*m, LD+4*(m+st))
        for st in (1, 2, 4):
            for m in range(0, 8, 2*st): padd(L1[m], L1[m+st])
        E = L1[0]
        for b in range(4): A(f'v_add_f32_dpp v{E+b}, v{E+b}, v{E+b} quad_perm:[1,0,3,2] row_mask:0xf bank_mask:0xf')
        A(f'v_add_f32 v18, v{LD}, v{LD+1}'); A(f'v_add_f32 v19, v{LD+2}, v{LD+3}'); A('v_add_f32 v18, v18, v19')
        A(f'v_add_f32 v19, v{E}, v{E+1}'); A('v_add_f32 v18, v18, v19'); A(f'v_add_f32 v19, v{E+2}, v{E+3}'); A('v_add_f32 v18, v18, v19')
        A('v_cmp_u_f32 vcc, v18, v18')
        self.poll_end(L)
        A(f'v_cvt_pk_bf16_f32 v18, v{LD}, v{LD+1}'); A(f'v_cvt_pk_bf16_f32 v19, v{LD+2}, v{LD+3}')
        A('ds_write_b64 v21, v[18:19]', 'kvt')
        A(f'v_cvt_pk_bf16_f32 v26, v{E}, v{E+1}'); A(f'v_cvt_pk_bf16_f32 v27, v{E+2}, v{E+3}')
        A('v_cmp_gt_u32 vcc, 248, v12')
        A('s_and_saveexec_b64 s[50:51], vcc')
        A('ds_write_b64 v23, v[26:27]', 'kvt')
        A('s_mov_b64 exec, s[50:51]')
        A.wait_lg()
        self.stamp('softq')
        self.bar()
        self.stamp('h1')
        self.stamp('opub')

    def _kvm(self, ks, AFr, BFr, D):
        A = self.A
        A.wait_lg([('kb', ks), ('ka', ks)])
        for T in range(3):
            a_ = AFr + (ks*3+T)*4; b = BFr + 4*ks; d = D + 4*T
            c = '0' if ks == 0 else f'v[{d}:{d+3}]'
            A(f'v_mfma_f32_16x16x32_bf16 v[{d}:{d+3}], v[{a_}:{a_+3}], v[{b}:{b+3}], {c}')

    def h_setup(self):
        A = self.A
        A('v_lshrrev_b32 v9, 2, v0')
        A('v_mul_u32_u24 v9, 288, v9')
        A('s_lshr_b32 s46, s55, 1'); A('s_lshl_b32 s47, s46, 7')
        A('v_add_u32 v9, s47, v9')
        A('v_and_b32 v10, 3, v0')
        for T in range(3):
            A(f'v_add_u32 v11, {4*T}, v10'); A('v_lshlrev_b32 v24, 3, v11'); A('v_add_u32 v13, 24, v24')
            A('v_cmp_gt_u32 vcc, 5, v11'); A('v_cndmask_b32 v24, v13, v24, vcc')
            A(f'v_add_u32 v{14+T}, v9, v24')
        A('s_and_b32 s48, s55, 1'); A('s_lshl_b32 s47, s48, 2')
        A('v_add_u32 v11, s47, v10'); A('v_lshlrev_b32 v24, 3, v11')
        A('v_add_u32 v13, 80, v24'); A('v_add_u32 v24, 40, v24')
        A('v_cmp_gt_u32 vcc, 3, v11'); A('v_cndmask_b32 v24, v13, v24, vcc')
        A('v_mov_b32 v13, 40'); A('v_cmp_gt_u32 vcc, 6, v11'); A('v_cndmask_b32 v24, v13, v24, vcc')
        A('v_add_u32 v17, v9, v24')
        A('s_lshl_b32 s47, s48, 4')
        A('v_add_u32 v11, s47, v2')
        A('s_mul_i32 s48, s46, 24')
        A('v_add_u32 v24, s48, v11'); A('v_mul_u32_u24 v24, 10, v24'); A('v_add_u32 v24, v24, v3'); A('v_lshlrev_b32 v24, 4, v24')
        A('s_lshl_b32 s48, s41, 4'); A('s_add_u32 s48, s48, s40'); A(f's_mul_i32 s48, s48, {KVP_ONE}'); A(f's_add_u32 s48, s48, {KVP_OFF}')
        A('v_add_u32 v24, s48, v24')
        A(f'v_mov_b32 v13, {BIG}')
        A('v_subrev_u32 v19, 12, v11')
        A('v_cmp_gt_u32 s[52:53], 9, v19'); A('v_cmp_gt_u32 vcc, 10, v11'); A('s_or_b64 vcc, vcc, s[52:53]')
        A('v_cndmask_b32 v18, v13, v24, vcc')
        A('v_cmp_gt_u32 vcc, 2, v3'); A('v_cndmask_b32 v19, v13, v18, vcc')
        A(f's_mul_i32 s46, s41, {16*KVP_ONE}'); A(f's_add_u32 s46, s46, {KVP_OFF}')
        for rnd in range(2):
            ga, la = (20, 21) if rnd == 0 else (22, 23)
            if rnd == 0: A('v_mov_b32 v24, v12')
            else:
                A('v_lshrrev_b32 v24, 1, v12'); A('v_add_u32 v24, 256, v24'); A('v_min_u32 v24, 379, v24')
            A('v_mul_u32_u24 v8, 6554, v24'); A('v_lshrrev_b32 v8, 16, v8')
            A('v_mul_u32_u24 v9, 10, v8'); A('v_sub_u32 v9, v24, v9')
            A('v_cmp_le_u32 vcc, 19, v8'); A('v_cndmask_b32 v10, 0, 1, vcc')
            A('v_mul_u32_u24 v11, 19, v10'); A('v_sub_u32 v11, v8, v11')
            A('v_cmp_le_u32 vcc, 10, v11'); A('v_cndmask_b32 v13, 0, 2, vcc'); A('v_add_u32 v11, v11, v13')
            A('v_mad_u32_u24 v11, v10, 24, v11')
            A(f'v_mad_u32_u24 v{ga}, v11, 10, v9'); A(f'v_lshlrev_b32 v{ga}, 4, v{ga}')
            A(f'v_add_u32 v{ga}, s46, v{ga}')
            if rnd == 1:
                A('v_and_b32 v13, 1, v12'); A(f'v_mul_u32_u24 v13, {8*KVP_ONE}, v13'); A(f'v_add_u32 v{ga}, v{ga}, v13')
            A(f'v_mul_u32_u24 v{la}, 96, v11'); A(f'v_lshl_add_u32 v{la}, v9, 3, v{la}')
            A('v_cmp_le_u32 vcc, 5, v9'); A('v_cndmask_b32 v13, 0, 8, vcc'); A(f'v_add_u32 v{la}, v{la}, v13')
            A(f'v_add_u32 v{la}, {L_KVT}, v{la}')

    def dump(self, regs, slot):
        A = self.A
        A('s_lshl_b32 s60, s2, 3'); A('s_add_u32 s60, s60, s3'); A('s_mul_i32 s60, s60, 4096'); A(f's_add_u32 s60, s60, {DBG_OFF}')
        A('v_lshlrev_b32 v111, 2, v0'); A('v_add_u32 v111, s60, v111')
        for i, r in enumerate(regs):
            off = (slot+i)*256
            assert off < 4096
            if r[0] == 'a':
                A(f'v_accvgpr_read_b32 v110, {r}'); r = 'v110'
            A(f'buffer_store_dword {r}, v111, s[16:19], 0 offen offset:{off}')
            A('s_nop 1')

    def finish(self):
        A = self.A
        A.label('K1_FIN')
        if self.prof:
            self.stamp('end')
            A('s_waitcnt lgkmcnt(0)')
            A('s_lshl_b32 s60, s2, 3'); A('s_add_u32 s60, s60, s3'); A('s_lshl_b32 s60, s60, 7')
            A(f's_add_u32 s60, s60, {DBG_OFF + (8<<20)}')
            A('v_mov_b32 v110, s60')
            for i in range(len(self.stamps)):
                A(f'v_mov_b32 v111, s{64+2*i}')
                A(f'buffer_store_dword v111, v110, s[16:19], 0 offen offset:{4*i}')
        if os.environ.get('DIAG') and self.prof:
            A('s_load_dwordx2 s[4:5], s[0:1], 80'); A('s_waitcnt lgkmcnt(0)')
            A('s_cmp_lg_u32 s2, %s' % os.environ.get('DIAGWG', '0')); A('s_cbranch_scc1 K1_END')
            A('s_cmp_lg_u32 s3, 0'); A('s_cbranch_scc1 K1_END')
            srd(A, 24, 4, 5, 256)
            A('v_mov_b32 v110, %d' % DBG_OFF)
            A('buffer_load_dwordx2 v[108:109], v110, s[16:19], 0 offen'); A('s_waitcnt vmcnt(0)')
            A('v_mov_b32 v110, 0')
            A('buffer_store_dwordx2 v[108:109], v110, s[24:27], 0 offen')
            sel = os.environ['DIAG'].split(',')
            for k, nm in enumerate(sel):
                i = self.stamps.index(nm)
                A(f'v_mov_b32 v111, s{64+2*i}')
                A(f'buffer_store_dword v111, v110, s[24:27], 0 offen offset:{8+4*k}')
        A.label('K1_END'); A('s_endpgm')
        return A.text()

def gen_k1(stop=None, prof=False):
    K = K1(stop, prof)
    global LAST; LAST = K
    A = K.A
    K.stamp('start')
    K.prologue()
    K.stamp('prolog')
    A('s_cmp_ge_u32 s3, 4'); A('s_cbranch_scc1 K1_H')
    vm0, lg0 = list(A.vm), list(A.lg)
    K.nbar = 0
    K.c_program()
    nb_c = K.nbar
    A('s_branch K1_JOIN')
    A.label('K1_H')
    A.vm, A.lg, A.hist = list(vm0), list(lg0), []
    K.nbar = 0
    K.h_program()
    assert K.nbar == nb_c, (K.nbar, nb_c)
    A.label('K1_JOIN')
    A('s_nop 7')
    A.vm = ['?']*0; A.lg = []
    if stop == 'o': return K.finish()
    import k1b
    k1b.rest(K)
    return K.finish()
```

```python
import os
from asmlib import *
from layout import *
from s0 import srd, BIG, s0

SPIN = 3000
LOG2E = 0x3FB8AA3B

L_W    = 0
L_IMG  = 0
L_RED  = 0
L_GU   = 73728
L_DN   = 0
L_R2   = 36864
L_KVT  = 147456
L_ZERO = L_KVT + 48*96
L_STAT = L_ZERO + 64
L_WMAX = L_STAT + 2048
L_RANK = L_WMAX + 64
L_AIMG = L_RANK + 128
L_FIN  = L_AIMG + 512
LDS_BYTES = 163840
assert L_FIN + 1024 <= LDS_BYTES

NV = 112
ACC = 16
def acc(T, tt): return ACC + (T*2+tt)*4
WF = 72
NCT_H = 6

class K1:
    def __init__(self, stop=None, prof=False):
        self.A = Asm(); self.stop = stop; self.prof = prof; self.stamps = []
        self.PF = int(os.environ.get('PF', 5))
        self.nbar = 0

    def stamp(self, name):
        if not self.prof: return
        if name in os.environ.get('NOSTAMP', '').split(','): return
        if name in self.stamps: i = self.stamps.index(name)
        else:
            i = len(self.stamps); assert i < 19
            self.stamps.append(name)
        op = 's_memtime' if os.environ.get('CYC') else 's_memrealtime'
        self.A(f'{op} s[{64+2*i}:{65+2*i}]')
    def poll_begin(self):
        A = self.A
        L = A.newlabel('POLL')
        A(f's_mov_b32 s62, {SPIN}')
        A.label(L)
        return L
    def poll_end(self, L):
        A = self.A
        D = A.newlabel('PDONE')
        A(f's_cbranch_vccz {D}')
        A('s_sub_u32 s62, s62, 1')
        A(f's_cbranch_scc1 {D}')
        A('s_sleep 1')
        A(f's_branch {L}')
        A.label(D)
    def waitall_vm(self):
        self.A('s_waitcnt vmcnt(0)'); self.A.vm = []
    def bar(self):
        self.A('s_barrier'); self.nbar += 1
    def barrier(self):
        self.A.wait_lg(); self.bar()
    def xsum_g(self, regs, tmp):
        A = self.A
        for swap in ('v_permlane16_swap_b32', 'v_permlane32_swap_b32'):
            for i, r in enumerate(regs): A(f'v_mov_b32 v{tmp+i}, v{r}')
            for i, r in enumerate(regs): A(f'{swap} v{r}, v{tmp+i}')
            for i, r in enumerate(regs): A(f'v_add_f32 v{r}, v{r}, v{tmp+i}')

    def prologue(self):
        A = self.A
        A('s_cmp_ge_u32 s2, 256'); A('s_cbranch_scc1 K1_END')
        A('s_getpc_b64 s[46:47]')
        A('v_lshlrev_b32 v5, 4, v0')
        A('global_load_dwordx4 a[140:143], v5, s[46:47]', 'pf')
        A('s_load_dwordx2 s[6:7], s[0:1], 88')
        A('s_load_dwordx2 s[4:5], s[0:1], 0')
        A('s_load_dwordx4 s[32:35], s[0:1], 8')
        A('s_load_dwordx2 s[36:37], s[0:1], 24')
        A('s_load_dwordx2 s[38:39], s[0:1], 40')
        A('s_load_dwordx4 s[8:11], s[0:1], 48')
        A('s_load_dwordx4 s[12:15], s[0:1], 64')
        A('s_lshr_b32 s48, s2, 3'); A('s_and_b32 s48, s48, 1'); A('s_add_u32 s48, s48, 1'); A('s_lshl_b32 s48, s48, 13')
        A('v_add_u32 v5, s48, v5')
        A('global_load_dwordx4 a[136:139], v5, s[46:47]', 'pf')
        A('v_mov_b32 v4, v0')
        A('v_lshrrev_b32 v1, 6, v0')
        A('v_and_b32 v0, 63, v0')
        A('v_readfirstlane_b32 s3, v1')
        A('v_lshlrev_b32 v1, 4, v0')
        A('s_and_b32 s44, s2, 7'); A('s_lshr_b32 s45, s2, 3')
        A('s_lshr_b32 s40, s44, 1'); A('s_lshl_b32 s40, s40, 2'); A('s_lshr_b32 s46, s45, 3'); A('s_add_u32 s40, s40, s46')
        A('s_and_b32 s41, s44, 1'); A('s_lshl_b32 s41, s41, 3'); A('s_and_b32 s46, s45, 7'); A('s_add_u32 s41, s41, s46')
        A('s_lshl_b32 s42, s40, 2'); A('s_lshr_b32 s46, s41, 2'); A('s_add_u32 s42, s42, s46')
        A('s_and_b32 s43, s41, 3')
        A('s_and_b32 s55, s3, 3')
        A('v_and_b32 v2, 15, v0')
        A('v_lshrrev_b32 v3, 4, v0')
        A('s_waitcnt lgkmcnt(0)')
        srd(A, 16, 6, 7, WS_USED)

    def other_srds(self):
        A = self.A
        srd(A, 20, 4, 5, 2048*1152)
        srd(A, 24, 14, 15, 2048*1152)
        srd(A, 28, 8, 9, 576*9216)
        srd(A, 32, 10, 11, 576*9216)
        srd(A, 36, 12, 13, 4608*1152)

    steps_for_chunk = [[0,1,2],[3,4,5],[6,7,8],[9,10,11],[12,13,14,15],[16,17]]

    def c_gemm1(self):
        A = self.A
        A('s_lshl_b32 s46, s40, 3'); A('s_lshl_b32 s47, s55, 1'); A('s_add_u32 s46, s46, s47')
        A('s_mul_i32 s46, s46, 18432')
        A('v_add_u32 v5, s46, v1')
        def xload1(s_, tt):
            A(f's_mov_b32 s49, {tt*18432 + (s_//4)*4096}')
            r = (tt*18+s_)*4
            A(f'buffer_load_dwordx4 a[{r}:{r+3}], v5, s[16:19], s49 offen offset:{(s_%4)*1024}', ('x', s_))
        todo = [(s_, tt) for s_ in range(18) for tt in range(2)]
        P = self.PF
        def issue_upto(step, maxn=None):
            n = 0
            while todo and todo[0][0] <= step and (maxn is None or n < maxn):
                xload1(*todo.pop(0)); n += 1
        issue_upto(P - 1)
        self.other_srds()
        A('v_add_u32 v6, 0x10000, v1')
        def wread(frag, dst, tag):
            if frag < 64: A(f'ds_read_b128 v[{dst}:{dst+3}], v1 offset:{frag*1024}', tag)
            else: A(f'ds_read_b128 v[{dst}:{dst+3}], v6 offset:{(frag-64)*1024}', tag)
        self.wread = wread
        chunk_of = {}
        for c, ss in enumerate(self.steps_for_chunk):
            for s_ in ss: chunk_of[s_] = c
        fill = self.c_setup_list()
        self.stamp('issued')
        self.bar()
        self.stamp('chunk0')
        for T in range(5): wread(T, WF + 4*T, ('r', 0, T))
        for s_ in range(18):
            buf = WF + (s_ & 1)*20; nbuf = WF + ((s_+1) & 1)*20
            for T in range(5):
                A.wait_lg(('r', s_, T))
                if T == 0: A.wait_vm(('x', s_))
                for tt in range(2):
                    d = acc(T, tt); x = (tt*18+s_)*4
                    c = '0' if s_ == 0 else f'v[{d}:{d+3}]'
                    A(f'v_mfma_f32_16x16x32_bf16 v[{d}:{d+3}], v[{buf+4*T}:{buf+4*T+3}], a[{x}:{x+3}], {c}')
                if s_ + 1 < 18:
                    if T == 0 and chunk_of[s_+1] != chunk_of[s_]: self.bar()
                    wread((s_+1)*5+T, nbuf + 4*T, ('r', s_+1, T))
                if T in (1, 3): issue_upto(s_ + P, 1)
                if T in (2, 4) and fill and s_ >= 1: A(fill.pop(0))
            issue_upto(s_ + P)
        for f in fill: A(f)

    def c_setup_list(self):
        f = []
        f += ['v_and_b32 v14, 1, v3', 'v_cmp_eq_u32 vcc, 0, v14', 'v_mov_b32 v15, 1.0', 's_nop 0', 'v_cndmask_b32 v7, 0, v15, vcc']
        f += ['s_lshl_b32 s46, s55, 5', 'v_add_u32 v8, s46, v2', 'v_mul_u32_u24 v8, 288, v8', 'v_lshl_add_u32 v8, v3, 6, v8']
        return f

    def c_setup2(self):
        A = self.A
        t0, t1, t2, t3, t4 = 100, 101, 102, 103, 104
        A(f'v_lshrrev_b32 v{t0}, 2, v2')
        A(f'v_and_b32 v{t1}, 3, v2')
        A(f'v_lshrrev_b32 v{t2}, 1, v{t0}')
        A(f'v_and_b32 v{t0}, 1, v{t0}')
        A(f'v_lshrrev_b32 v{t3}, 1, v3')
        A(f'v_cmp_eq_u32 s[52:53], v{t2}, v{t3}')
        A(f'v_mul_u32_u24 v{t2}, 24, v{t2}')
        A(f'v_and_b32 v{t3}, 1, v3'); A(f'v_mul_u32_u24 v{t3}, 48, v{t3}')
        A(f'v_add_u32 v{t3}, {L_KVT}, v{t3}')
        A(f'v_mov_b32 v{t4}, {L_ZERO}')
        for To in range(3):
            A(f'v_add_u32 v14, {4*To}, v{t1}')
            A(f'v_mad_u32_u24 v15, v{t0}, 12, v14')
            A('v_cmp_eq_u32 vcc, 9, v14'); A('v_cndmask_b32 v15, v15, v14, vcc')
            A(f'v_add_u32 v15, v{t2}, v15'); A('v_mul_u32_u24 v15, 96, v15'); A(f'v_add_u32 v15, v15, v{t3}')
            A('v_cmp_ge_u32 vcc, 9, v14'); A('s_and_b64 vcc, vcc, s[52:53]')
            A(f'v_cndmask_b32 v{9+To}, v{t4}, v15, vcc')
        A('s_lshl_b32 s46, s40, 3'); A('s_lshl_b32 s47, s55, 1'); A('s_add_u32 s46, s46, s47')
        A('s_lshl_b32 s46, s46, 4'); A('s_add_u32 s46, s46, s41')
        A('s_lshl_b32 s47, s46, 10'); A(f's_add_u32 s47, s47, {OPM_OFF}'); A('v_add_u32 v12, s47, v1')
        A('s_lshl_b32 s47, s46, 8'); A(f's_add_u32 s47, s47, {OPT_OFF}'); A('v_lshlrev_b32 v13, 2, v0'); A('v_add_u32 v13, s47, v13')

    def c_part2(self):
        A = self.A; wread = self.wread
        for T in range(2): wread(90 + T, WF + 4*T, ('r2', 0, T))
        for s_ in range(18):
            buf = WF + (s_ & 1)*8; nbuf = WF + ((s_+1) & 1)*8
            for T in range(2):
                A.wait_lg(('r2', s_, T))
                for tt in range(2):
                    d = acc(5+T, tt); x = (tt*18+s_)*4
                    c = '0' if s_ == 0 else f'v[{d}:{d+3}]'
                    A(f'v_mfma_f32_16x16x32_bf16 v[{d}:{d+3}], v[{buf+4*T}:{buf+4*T+3}], a[{x}:{x+3}], {c}')
                if s_ + 1 < 18: wread(90 + (s_+1)*2+T, nbuf + 4*T, ('r2', s_+1, T))

    def softmax9(self, r, out, t0):
        A = self.A
        ep = [t0 + 2*i for i in range(9)]; em = [t0 + 2*i + 1 for i in range(9)]
        mx, mn, t1, t2 = t0+18, t0+19, t0+20, t0+21
        assert t0 % 2 == 0
        A(f'v_max3_f32 v{mx}, v{r[0]}, v{r[1]}, v{r[2]}'); A(f'v_min3_f32 v{mn}, v{r[0]}, v{r[1]}, v{r[2]}')
        A(f'v_max3_f32 v{t1}, v{r[3]}, v{r[4]}, v{r[5]}'); A(f'v_min3_f32 v{t2}, v{r[3]}, v{r[4]}, v{r[5]}')
        A(f'v_max3_f32 v{mx}, v{mx}, v{r[6]}, v{r[7]}'); A(f'v_min3_f32 v{mn}, v{mn}, v{r[6]}, v{r[7]}')
        A(f'v_max3_f32 v{mx}, v{mx}, v{t1}, v{r[8]}'); A(f'v_min3_f32 v{mn}, v{mn}, v{t2}, v{r[8]}')
        A(f'v_mov_b32 v{t1}, v{mx}'); A(f'v_mov_b32 v{t2}, v{mn}')
        A(f'v_permlane16_swap_b32 v{mx}, v{t1}'); A(f'v_permlane16_swap_b32 v{mn}, v{t2}')
        A(f'v_max_f32 v{mx}, v{mx}, v{t1}'); A(f'v_min_f32 v{mn}, v{mn}, v{t2}')
        for i in range(9):
            A(f'v_sub_f32 v{ep[i]}, v{r[i]}, v{mx}'); A(f'v_sub_f32 v{em[i]}, v{mn}, v{r[i]}')
        for i in range(9):
            A(f'v_exp_f32 v{ep[i]}, v{ep[i]}'); A(f'v_exp_f32 v{em[i]}, v{em[i]}')
        A(f'v_pk_add_f32 v[{mx}:{mn}], v[{ep[0]}:{em[0]}], v[{ep[1]}:{em[1]}]')
        A(f'v_pk_add_f32 v[{t1}:{t2}], v[{ep[2]}:{em[2]}], v[{ep[3]}:{em[3]}]')
        for i in (4, 6):
            A(f'v_pk_add_f32 v[{mx}:{mn}], v[{mx}:{mn}], v[{ep[i]}:{em[i]}]')
            A(f'v_pk_add_f32 v[{t1}:{t2}], v[{t1}:{t2}], v[{ep[i+1]}:{em[i+1]}]')
        A(f'v_pk_add_f32 v[{mx}:{mn}], v[{mx}:{mn}], v[{ep[8]}:{em[8]}]')
        A(f'v_pk_add_f32 v[{mx}:{mn}], v[{mx}:{mn}], v[{t1}:{t2}]')
        A(f'v_mov_b32 v{t1}, v{mx}'); A(f'v_mov_b32 v{t2}, v{mn}')
        A(f'v_permlane16_swap_b32 v{mx}, v{t1}'); A(f'v_permlane16_swap_b32 v{mn}, v{t2}')
        A(f'v_pk_add_f32 v[{mx}:{mn}], v[{mx}:{mn}], v[{t1}:{t2}]')
        A(f'v_rcp_f32 v{mx}, v{mx}'); A(f'v_rcp_f32 v{mn}, v{mn}')
        for i in range(9):
            A(f'v_pk_mul_f32 v[{ep[i]}:{em[i]}], v[{ep[i]}:{em[i]}], v[{mx}:{mn}]')
        for k, e in enumerate((ep, em)):
            for m in range(4): A(f'v_cvt_pk_bf16_f32 v{out+5*k+m}, v{e[2*m]}, v{e[2*m+1]}')
            A(f'v_cvt_pk_bf16_f32 v{out+5*k+4}, v{e[8]}, 0')

    def kregs(self, tt, base):
        return [acc((base+i) >> 2, tt) + ((base+i) & 3) for i in range(9)]

    def c_program(self):
        A = self.A
        self.c_gemm1()
        self.stamp('gemm1')
        self.bar()
        B, TMP = 72, 88
        for tt in range(2):
            self.softmax9(self.kregs(tt, 0), B, TMP)
            vv = self.kregs(tt, 9)
            for m in range(4): A(f'v_cvt_pk_bf16_f32 v{B+10+m}, v{vv[2*m]}, v{vv[2*m+1]}')
            A(f'v_cvt_pk_bf16_f32 v{B+14}, v{vv[8]}, v7')
            A(f'v_mov_b32 v{B+15}, 0')
            for q in range(4):
                A(f'ds_write_b128 v8, v[{B+4*q}:{B+4*q+3}] offset:{L_IMG + tt*16*288 + 16*q}', 'img')
            if tt == 0: A.wait_lg()
        self.stamp('softk')
        self.barrier()
        self.c_part2()
        self.stamp('gemm2')
        self.c_setup2()
        for tt in range(2):
            P = 16 + 12*tt
            self.softmax9(self.kregs(tt, 18), P, 88)
            A(f'v_mov_b32 v{P+10}, 0'); A(f'v_mov_b32 v{P+11}, 0')
        self.stamp('softq')
        self.wo_loads(NCT_H, 9 - NCT_H)
        self.bar()
        self.stamp('h1')
        AF, D = 40, 76
        for To in range(3):
            for s2 in range(3):
                a_ = AF + (To*3+s2)*4
                A(f'ds_read_b128 v[{a_}:{a_+3}], v{9+To} offset:{16*s2}', ('s2', To))
        for tt in range(2):
            P = 16 + 12*tt; Dt = D + 12*tt
            for To in range(3):
                if tt == 0: A.wait_lg(('s2', To))
                for s2 in range(3):
                    a_ = AF + (To*3+s2)*4; d = Dt + 4*To
                    c = '0' if s2 == 0 else f'v[{d}:{d+3}]'
                    A(f'v_mfma_f32_16x16x32_bf16 v[{d}:{d+3}], v[{a_}:{a_+3}], v[{P+4*s2}:{P+4*s2+3}], {c}')
        for tt in range(2):
            Dt = D + 12*tt; O = 100 + 6*tt
            A(f'v_add_f32 v14, 0x358637bd, v{Dt+9}')
            A('v_rcp_f32 v14, v14')
            for i in range(9): A(f'v_mul_f32 v{Dt+i}, v{Dt+i}, v14')
            O = 40 + 8*tt
            for m in range(4): A(f'v_cvt_pk_bf16_f32 v{O+m}, v{Dt+2*m}, v{Dt+2*m+1}')
            A(f'v_cvt_pk_bf16_f32 v{O+4}, v{Dt+8}, 0')
            A(f's_mov_b32 s46, {tt*16384}'); A(f's_mov_b32 s47, {tt*4096}')
            A(f'buffer_store_dwordx4 v[{O}:{O+3}], v12, s[16:19], s46 offen sc1', 'op')
            A(f'buffer_store_dword v{O+4}, v13, s[16:19], s47 offen sc1', 'op')
        self.stamp('opub')

    def wo_loads(self, ct0, n, i0=0, i1=None, areg=14):
        A = self.A
        if i1 is None: i1 = n*5
        if i0 == 0:
            A('s_lshl_b32 s46, s43, 2'); A('s_add_u32 s46, s46, s55'); A('s_mul_i32 s46, s46, 9'); A(f's_add_u32 s46, s46, {ct0}')
            A('s_mul_i32 s46, s46, 5120'); A(f's_add_u32 s46, s46, {WOP_OFF}')
            A(f'v_add_u32 v{areg}, s46, v1')
        for i in range(i0, i1):
            if i % 4 == 0 or i == i0: A(f's_mov_b32 s47, {(i//4)*4096}')
            A(f'buffer_load_dwordx4 a[{4*i}:{4*i+3}], v{areg}, s[16:19], s47 offen offset:{(i%4)*1024}', 'wo')

    def h_program(self):
        A = self.A
        A(f's_mul_i32 s46, s41, {WP_J}'); A(f's_add_u32 s46, s46, {WP_OFF}')
        A('s_lshl_b32 s54, s55, 12'); A('s_add_u32 s46, s46, s54')
        A('v_add_u32 v5, s46, v1')
        def dma(c):
            A(f's_add_u32 m0, s54, {c*16384}')
            A(f's_mov_b32 s48, {c*16384}')
            for i in range(4):
                A(f'buffer_load_dwordx4 v5, s[16:19], s48 offen offset:{i*1024} lds', ('w', c))
        LA = int(os.environ.get('LA', 3))
        for c in range(LA): dma(c)
        self.other_srds()
        n16 = (L_AIMG - L_KVT)//16
        for r in range(8, 12): A(f'v_mov_b32 v{r}, 0')
        A('v_subrev_u32 v12, 256, v4')
        A('v_lshlrev_b32 v13, 4, v12'); A(f'v_add_u32 v13, {L_KVT}, v13')
        A('ds_write_b128 v13, v[8:11]', 'z')
        A(f'v_cmp_gt_u32 vcc, {n16-256}, v12')
        A('s_and_saveexec_b64 s[50:51], vcc')
        A('ds_write_b128 v13, v[8:11] offset:4096', 'z')
        A('s_mov_b64 exec, s[50:51]')
        A.wait_lg()
        self.stamp('issued')
        for c in range(6):
            A.wait_vm(('w', c)); self.bar()
            if c == 0: self.stamp('chunk0')
            if c + LA < 6: dma(c + LA)
        self.h_setup()
        self.stamp('gemm1')
        self.bar()
        dma(6); dma(7)
        W1 = int(os.environ.get('W1', 8))
        self.wo_loads(0, NCT_H, 0, W1, areg=25)
        A.wait_vm([('w', 6), ('w', 7)])
        self.stamp('softk')
        self.bar()
        AFr, BFr, D = 32, 80, 96
        for ks in range(4):
            rl = []
            for h in range(2):
                b = BFr + 4*ks + 2*h
                rl.append((f'ds_read_b64_tr_b16 v[{b}:{b+1}], v17 offset:{L_IMG + ks*9216 + h*4608}', ('kb', ks)))
            for T in range(3):
                for h in range(2):
                    a_ = AFr + (ks*3+T)*4 + 2*h
                    rl.append((f'ds_read_b64_tr_b16 v[{a_}:{a_+1}], v{14+T} offset:{L_IMG + ks*9216 + h*4608}', ('ka', ks)))
            for x in rl[:4]: A(*x)
            if ks >= 1: self._kvm(ks-1, AFr, BFr, D)
            for x in rl[4:]: A(*x)
        self._kvm(3, AFr, BFr, D)
        for T in range(3):
            A(f'buffer_store_dwordx4 v[{D+4*T}:{D+4*T+3}], v{19 if T == 2 else 18}, s[16:19], 0 offen offset:{64*T} sc1', 'kvp')
        self.stamp('gemm2')
        self.wo_loads(0, NCT_H, W1, None, areg=25)
        LD = 32
        L1 = [96, 100, 104, 108, 24-0, 28, 8, 14+0]
        L1 = [96, 100, 104, 108, 28, 8, 14, 16]
        L1 = [96, 100, 104, 108, 28, 8, 14, 26]
        L1 = [96, 100, 104, 108, 28, 8, 14, 24]
        L = self.poll_begin()
        for m in range(16):
            A(f's_mov_b32 s{46+(m&1)}, {m*KVP_ONE}')
            A(f'buffer_load_dwordx4 v[{LD+4*m}:{LD+4*m+3}], v20, s[16:19], s{46+(m&1)} offen sc1', 'kv')
        for m in range(8):
            A(f's_mov_b32 s{46+(m&1)}, {m*KVP_ONE}')
            A(f'buffer_load_dwordx4 v[{L1[m]}:{L1[m]+3}], v22, s[16:19], s{46+(m&1)} offen sc1', 'kv')
        self.waitall_vm()
        def padd(d, s_):
            for b in (0, 2): A(f'v_pk_add_f32 v[{d+b}:{d+b+1}], v[{d+b}:{d+b+1}], v[{s_+b}:{s_+b+1}]')
        for st in (1, 2, 4, 8):
            for m in range(0, 16, 2*st): padd(LD+4*m, LD+4*(m+st))
        for st in (1, 2, 4):
            for m in range(0, 8, 2*st): padd(L1[m], L1[m+st])
        E = L1[0]
        for b in range(4): A(f'v_add_f32_dpp v{E+b}, v{E+b}, v{E+b} quad_perm:[1,0,3,2] row_mask:0xf bank_mask:0xf')
        A(f'v_add_f32 v18, v{LD}, v{LD+1}'); A(f'v_add_f32 v19, v{LD+2}, v{LD+3}'); A('v_add_f32 v18, v18, v19')
        A(f'v_add_f32 v19, v{E}, v{E+1}'); A('v_add_f32 v18, v18, v19'); A(f'v_add_f32 v19, v{E+2}, v{E+3}'); A('v_add_f32 v18, v18, v19')
        A('v_cmp_u_f32 vcc, v18, v18')
        self.poll_end(L)
        A(f'v_cvt_pk_bf16_f32 v18, v{LD}, v{LD+1}'); A(f'v_cvt_pk_bf16_f32 v19, v{LD+2}, v{LD+3}')
        A('ds_write_b64 v21, v[18:19]', 'kvt')
        A(f'v_cvt_pk_bf16_f32 v26, v{E}, v{E+1}'); A(f'v_cvt_pk_bf16_f32 v27, v{E+2}, v{E+3}')
        A('v_cmp_gt_u32 vcc, 248, v12')
        A('s_and_saveexec_b64 s[50:51], vcc')
        A('ds_write_b64 v23, v[26:27]', 'kvt')
        A('s_mov_b64 exec, s[50:51]')
        A.wait_lg()
        self.stamp('softq')
        self.bar()
        self.stamp('h1')
        NE = A.newlabel('NOEP')
        A('s_cmp_lg_u32 s2, 0'); A(f's_cbranch_scc1 {NE}')
        A('s_cmp_lg_u32 s3, 7'); A(f's_cbranch_scc1 {NE}')
        A(f'v_mov_b32 v8, {EPOCH_OFF}'); A('v_mov_b32 v9, s63')
        A('s_mov_b64 exec, 1')
        A('buffer_store_dword v9, v8, s[16:19], 0 offen sc1')
        A('s_mov_b64 exec, -1')
        A.label(NE)
        self.stamp('opub')

    def _kvm(self, ks, AFr, BFr, D):
        A = self.A
        A.wait_lg([('kb', ks), ('ka', ks)])
        for T in range(3):
            a_ = AFr + (ks*3+T)*4; b = BFr + 4*ks; d = D + 4*T
            c = '0' if ks == 0 else f'v[{d}:{d+3}]'
            A(f'v_mfma_f32_16x16x32_bf16 v[{d}:{d+3}], v[{a_}:{a_+3}], v[{b}:{b+3}], {c}')

    def h_setup(self):
        A = self.A
        A('v_lshrrev_b32 v9, 2, v0')
        A('v_mul_u32_u24 v9, 288, v9')
        A('s_lshr_b32 s46, s55, 1'); A('s_lshl_b32 s47, s46, 7')
        A('v_add_u32 v9, s47, v9')
        A('v_and_b32 v10, 3, v0')
        for T in range(3):
            A(f'v_add_u32 v11, {4*T}, v10'); A('v_lshlrev_b32 v24, 3, v11'); A('v_add_u32 v13, 24, v24')
            A('v_cmp_gt_u32 vcc, 5, v11'); A('v_cndmask_b32 v24, v13, v24, vcc')
            A(f'v_add_u32 v{14+T}, v9, v24')
        A('s_and_b32 s48, s55, 1'); A('s_lshl_b32 s47, s48, 2')
        A('v_add_u32 v11, s47, v10'); A('v_lshlrev_b32 v24, 3, v11')
        A('v_add_u32 v13, 80, v24'); A('v_add_u32 v24, 40, v24')
        A('v_cmp_gt_u32 vcc, 3, v11'); A('v_cndmask_b32 v24, v13, v24, vcc')
        A('v_mov_b32 v13, 40'); A('v_cmp_gt_u32 vcc, 6, v11'); A('v_cndmask_b32 v24, v13, v24, vcc')
        A('v_add_u32 v17, v9, v24')
        A('s_lshl_b32 s47, s48, 4')
        A('v_add_u32 v11, s47, v2')
        A('s_mul_i32 s48, s46, 24')
        A('v_add_u32 v24, s48, v11'); A('v_mul_u32_u24 v24, 10, v24'); A('v_add_u32 v24, v24, v3'); A('v_lshlrev_b32 v24, 4, v24')
        A('s_lshl_b32 s48, s41, 4'); A('s_add_u32 s48, s48, s40'); A(f's_mul_i32 s48, s48, {KVP_ONE}'); A(f's_add_u32 s48, s48, {KVP_OFF}')
        A('v_add_u32 v24, s48, v24')
        A(f'v_mov_b32 v13, {BIG}')
        A('v_subrev_u32 v19, 12, v11')
        A('v_cmp_gt_u32 s[52:53], 9, v19'); A('v_cmp_gt_u32 vcc, 10, v11'); A('s_or_b64 vcc, vcc, s[52:53]')
        A('v_cndmask_b32 v18, v13, v24, vcc')
        A('v_cmp_gt_u32 vcc, 2, v3'); A('v_cndmask_b32 v19, v13, v18, vcc')
        A(f's_mul_i32 s46, s41, {16*KVP_ONE}'); A(f's_add_u32 s46, s46, {KVP_OFF}')
        for rnd in range(2):
            ga, la = (20, 21) if rnd == 0 else (22, 23)
            if rnd == 0: A('v_mov_b32 v24, v12')
            else:
                A('v_lshrrev_b32 v24, 1, v12'); A('v_add_u32 v24, 256, v24'); A('v_min_u32 v24, 379, v24')
            A('v_mul_u32_u24 v8, 6554, v24'); A('v_lshrrev_b32 v8, 16, v8')
            A('v_mul_u32_u24 v9, 10, v8'); A('v_sub_u32 v9, v24, v9')
            A('v_cmp_le_u32 vcc, 19, v8'); A('v_cndmask_b32 v10, 0, 1, vcc')
            A('v_mul_u32_u24 v11, 19, v10'); A('v_sub_u32 v11, v8, v11')
            A('v_cmp_le_u32 vcc, 10, v11'); A('v_cndmask_b32 v13, 0, 2, vcc'); A('v_add_u32 v11, v11, v13')
            A('v_mad_u32_u24 v11, v10, 24, v11')
            A(f'v_mad_u32_u24 v{ga}, v11, 10, v9'); A(f'v_lshlrev_b32 v{ga}, 4, v{ga}')
            A(f'v_add_u32 v{ga}, s46, v{ga}')
            if rnd == 1:
                A('v_and_b32 v13, 1, v12'); A(f'v_mul_u32_u24 v13, {8*KVP_ONE}, v13'); A(f'v_add_u32 v{ga}, v{ga}, v13')
            A(f'v_mul_u32_u24 v{la}, 96, v11'); A(f'v_lshl_add_u32 v{la}, v9, 3, v{la}')
            A('v_cmp_le_u32 vcc, 5, v9'); A('v_cndmask_b32 v13, 0, 8, vcc'); A(f'v_add_u32 v{la}, v{la}, v13')
            A(f'v_add_u32 v{la}, {L_KVT}, v{la}')

    def dump(self, regs, slot):
        A = self.A
        A('s_lshl_b32 s60, s2, 3'); A('s_add_u32 s60, s60, s3'); A('s_mul_i32 s60, s60, 4096'); A(f's_add_u32 s60, s60, {DBG_OFF}')
        A('v_lshlrev_b32 v111, 2, v0'); A('v_add_u32 v111, s60, v111')
        for i, r in enumerate(regs):
            off = (slot+i)*256
            assert off < 4096
            if r[0] == 'a':
                A(f'v_accvgpr_read_b32 v110, {r}'); r = 'v110'
            A(f'buffer_store_dword {r}, v111, s[16:19], 0 offen offset:{off}')
            A('s_nop 1')

    def finish(self):
        A = self.A
        A.label('K1_FIN')
        if self.prof:
            self.stamp('end')
            A('s_waitcnt lgkmcnt(0)')
            A('s_lshl_b32 s60, s2, 3'); A('s_add_u32 s60, s60, s3'); A('s_lshl_b32 s60, s60, 7')
            A(f's_add_u32 s60, s60, {DBG_OFF + (8<<20)}')
            A('v_mov_b32 v110, s60')
            for i in range(len(self.stamps)):
                A(f'v_mov_b32 v111, s{64+2*i}')
                A(f'buffer_store_dword v111, v110, s[16:19], 0 offen offset:{4*i}')
        if os.environ.get('DIAG') and self.prof:
            A('s_load_dwordx2 s[4:5], s[0:1], 80'); A('s_waitcnt lgkmcnt(0)')
            A('s_cmp_lg_u32 s2, %s' % os.environ.get('DIAGWG', '0')); A('s_cbranch_scc1 K1_END')
            A('s_cmp_lg_u32 s3, %s' % os.environ.get('DIAGWAVE', '1')); A('s_cbranch_scc1 K1_END')
            srd(A, 24, 4, 5, 256)
            A('v_mov_b32 v110, 0')
            sel = os.environ['DIAG'].split(',')
            for k, nm in enumerate(sel):
                i = self.stamps.index(nm)
                A(f'v_mov_b32 v111, s{64+2*i}')
                A(f'buffer_store_dword v111, v110, s[24:27], 0 offen offset:{4*k}')
        A.label('K1_END'); A('s_endpgm')
        return A.text()

def gen_k1(stop=None, prof=False):
    K = K1(stop, prof)
    global LAST; LAST = K
    A = K.A
    K.stamp('start')
    K.prologue()
    K.stamp('prolog')
    s0(K, 'main_kernel', int(os.environ.get('CODEKB', 26)))
    A('s_cmp_ge_u32 s3, 4'); A('s_cbranch_scc1 K1_H')
    vm0, lg0 = list(A.vm), list(A.lg)
    K.nbar = 0
    K.c_program()
    nb_c = K.nbar
    A('s_branch K1_JOIN')
    A.label('K1_H')
    A.vm, A.lg, A.hist = list(vm0), list(lg0), []
    K.nbar = 0
    K.h_program()
    assert K.nbar == nb_c, (K.nbar, nb_c)
    A.label('K1_JOIN')
    A('s_nop 7')
    A.vm = ['?']*0; A.lg = []
    if stop == 'o': return K.finish()
    import k1b
    k1b.rest(K)
    return K.finish()
```

```python
XP_OFF   = 0x000000
XP_SZ    = 128*18*1024
WP_OFF   = XP_OFF + XP_SZ
WP_J     = 126*1024
WP_SZ    = 16*WP_J
WOP_OFF  = WP_OFF + WP_SZ
WOP_SZ   = 720*1024
WRC_OFF  = WOP_OFF + WOP_SZ
WRC_SZ   = 4096
FLAG_OFF = WRC_OFF + WRC_SZ
FLAG_SZ  = 256*128
FLAG2_OFF = FLAG_OFF + 64
EPOCH_OFF = FLAG_OFF + FLAG_SZ
EPOCH_SZ = 4096
KVP_OFF  = EPOCH_OFF + EPOCH_SZ
KVP_ONE  = 6144
KVP_SZ   = 256*KVP_ONE
FILL_OFF = KVP_OFF + KVP_SZ
OPM_OFF  = FILL_OFF
OPM_SZ   = 128*16*1024
OPT_OFF  = OPM_OFF + OPM_SZ
OPT_SZ   = 128*16*256
STP_OFF  = OPT_OFF + OPT_SZ
STP_SZ   = 128*4*256
RR_OFF   = STP_OFF + STP_SZ
RR_SZ    = 8192
XSEL_OFF = RR_OFF + RR_SZ
XSEL_SZ  = 8*1152
BASE_OFF = XSEL_OFF + XSEL_SZ
BASE_SZ  = 8*576*4
META_OFF = BASE_OFF + BASE_SZ
META_SZ  = 256
YP_OFF   = META_OFF + META_SZ
YP_SZ    = 144*144*64
FILL_END = YP_OFF + YP_SZ
DBG_OFF  = (FILL_END + 0xFFFF) & ~0xFFFF
WS_USED  = DBG_OFF + (16 << 20)
if __name__ == '__main__':
    for k, v in list(globals().items()):
        if k.isupper(): print(k, hex(v), v)
    print('fill bytes', FILL_END - FILL_OFF)
```

```python
import os
from asmlib import *
from layout import *
BIG = 0x40000000
RAWF = os.environ.get('RAWF', '')
LOG2E = 0x3FB8AA3B

def srd(A, d, lo, hi, size):
    A(f's_mov_b32 s{d}, s{lo}'); A(f's_mov_b32 s{d+1}, s{hi}')
    A(f's_mov_b32 s{d+2}, {size}'); A(f's_mov_b32 s{d+3}, 0x20000')

def s0(K, code_sym, code_kb):
    A = K.A
    JOIN = 'S0_JOIN'
    def fills():
        srd(A, 28, 6, 7, FILL_END)
        A('s_lshl_b32 s46, s2, 3'); A('s_add_u32 s46, s46, s3'); A('s_lshl_b32 s46, s46, 11'); A(f's_add_u32 s46, s46, {FILL_OFF}')
        for r in range(8, 12): A(f'v_mov_b32 v{r}, -1')
        A('v_add_u32 v12, s46, v1')
        A('buffer_store_dwordx4 v[8:11], v12, s[28:31], 0 offen sc1', 'fill')
        A('buffer_store_dwordx4 v[8:11], v12, s[28:31], 0 offen offset:1024 sc1', 'fill')
        A('s_lshl_b32 s46, s41, 4'); A('s_add_u32 s46, s46, s40'); A(f's_mul_i32 s46, s46, {KVP_ONE}')
        A('s_mul_i32 s47, s3, 960'); A('s_add_u32 s46, s46, s47'); A(f's_add_u32 s46, s46, {KVP_OFF}')
        A('v_add_u32 v12, s46, v1'); A(f'v_mov_b32 v13, {BIG}'); A('v_cmp_gt_u32 vcc, 60, v0'); A('v_cndmask_b32 v12, v13, v12, vcc')
        A('buffer_store_dwordx4 v[8:11], v12, s[28:31], 0 offen sc1', 'fill')
    A('s_cmp_eq_u32 s3, 7'); A('s_cbranch_scc1 S0_E')
    A('s_cmp_eq_u32 s3, 5'); A('s_cbranch_scc1 S0_M')
    A('s_cmp_eq_u32 s3, 4'); A('s_cbranch_scc1 S0_O')
    A('s_sub_u32 s46, s3, 1'); A('s_cmp_lt_u32 s46, 3'); A('s_cbranch_scc1 S0_W')

    A.label('S0_X'); A.vm = []; A.hist = []
    srd(A, 20, 4, 5, 2048*1152)
    A('s_lshl_b32 s46, s40, 7'); A('s_lshl_b32 s47, s41, 3'); A('s_add_u32 s46, s46, s47')
    A('s_cmp_eq_u32 s3, 6'); A('s_cselect_b32 s47, 4, 0'); A('s_add_u32 s46, s46, s47')
    A('v_add_u32 v14, s46, v3')
    A('v_mul_u32_u24 v15, 1152, v14'); A('v_lshl_add_u32 v15, v2, 4, v15')
    A(f'v_mov_b32 v13, {BIG}'); A('v_cmp_gt_u32 vcc, 8, v2'); A('v_cndmask_b32 v36, v13, v15, vcc')
    X = 16
    for i in range(4):
        A(f'buffer_load_dwordx4 v[{X+4*i}:{X+4*i+3}], v15, s[20:23], 0 offen offset:{i*256} {RAWF}', 'x')
    A(f'buffer_load_dwordx4 v[{X+16}:{X+19}], v36, s[20:23], 0 offen offset:1024 {RAWF}', 'x')
    A('v_lshrrev_b32 v37, 4, v14'); A('v_mul_u32_u24 v37, 18432, v37')
    A('v_and_b32 v14, 15, v14'); A('v_lshl_add_u32 v37, v14, 4, v37')
    A('v_lshrrev_b32 v14, 2, v2'); A('v_lshl_add_u32 v37, v14, 10, v37')
    A('v_and_b32 v14, 3, v2'); A('v_lshl_add_u32 v37, v14, 8, v37')
    A('v_add_u32 v38, 16384, v37'); A('v_cmp_gt_u32 vcc, 8, v2'); A('v_cndmask_b32 v38, v13, v38, vcc')
    A('s_mov_b32 s46, 0x3f803f80')
    for r in range(40, 48): A(f'v_mov_b32 v{r}, 0')
    K.stamp('s0iss')
    A.wait_vm('x')
    K.stamp('s0ld')
    for k in range(20):
        A(f'v_dot2c_f32_bf16 v{40+(k&3)}, s46, v{X+k}')
        A(f'v_dot2c_f32_bf16 v{44+(k&3)}, v{X+k}, v{X+k}')
    A('v_add_f32 v40, v40, v41'); A('v_add_f32 v42, v42, v43'); A('v_add_f32 v44, v44, v45'); A('v_add_f32 v46, v46, v47')
    A('v_add_f32 v40, v40, v42'); A('v_add_f32 v44, v44, v46')
    for mod in ('quad_perm:[1,0,3,2]', 'quad_perm:[2,3,0,1]', 'row_half_mirror', 'row_mirror'):
        A(f'v_add_f32_dpp v40, v40, v40 {mod} row_mask:0xf bank_mask:0xf')
        A(f'v_add_f32_dpp v44, v44, v44 {mod} row_mask:0xf bank_mask:0xf')
    A('s_mov_b32 s46, 0x3AE38E39')
    A('v_mul_f32 v40, s46, v40'); A('v_mul_f32 v44, s46, v44')
    A('v_fma_f32 v44, -v40, v40, v44'); A('v_add_f32 v44, 0x3727c5ac, v44'); A('v_rsq_f32 v44, v44')
    A('v_mul_f32 v40, v40, v44'); A('v_sub_f32 v40, 0, v40')
    A('v_mov_b32 v45, v44'); A('v_mov_b32 v41, v40')
    for i in range(5):
        for k in range(4):
            r = X + 4*i + k
            A(f'v_lshlrev_b32 v48, 16, v{r}'); A(f'v_and_b32 v49, 0xffff0000, v{r}')
            A('v_pk_fma_f32 v[48:49], v[48:49], v[44:45], v[40:41]')
            A(f'v_cvt_pk_bf16_f32 v{r}, v48, v49')
        if i < 4:
            A(f's_mov_b32 s46, {i*4096}')
            A(f'buffer_store_dwordx4 v[{X+4*i}:{X+4*i+3}], v37, s[16:19], s46 offen sc1', 'st')
        else:
            A(f'buffer_store_dwordx4 v[{X+16}:{X+19}], v38, s[16:19], 0 offen sc1', 'st')
    A(f's_branch {JOIN}')

    A.label('S0_W'); A.vm = []; A.hist = []
    A('s_sub_u32 s48, s3, 1'); A('s_lshl_b32 s48, s48, 4'); A('s_add_u32 s48, s48, s40')
    A('s_cmp_ge_u32 s48, 36'); A('s_cbranch_scc1 S0_M')
    srd(A, 24, 34, 35, 32*648)
    srd(A, 20, 32, 33, 576*3456)
    PH = 16
    A('v_mul_u32_u24 v14, 36, v2'); A('v_lshl_add_u32 v14, v3, 4, v14')
    A('s_mul_i32 s46, s41, 1296'); A('v_add_u32 v14, s46, v14')
    A(f'v_mov_b32 v13, {BIG}'); A('v_add_u32 v15, 576, v14'); A('v_cmp_gt_u32 vcc, 2, v2'); A('v_cndmask_b32 v15, v13, v15, vcc')
    for hd in range(2):
        A(f'buffer_load_dwordx4 v[{PH+8*hd}:{PH+8*hd+3}], v14, s[24:27], 0 offen offset:{hd*648} {RAWF}', 'b')
        A(f'buffer_load_dwordx4 v[{PH+8*hd+4}:{PH+8*hd+7}], v15, s[24:27], 0 offen offset:{hd*648} {RAWF}', 'b')
    A('s_lshl_b32 s46, s48, 4')
    A('v_add_u32 v14, s46, v2'); A('v_mul_u32_u24 v14, 3456, v14')
    A('s_mul_i32 s46, s41, 72'); A('v_add_u32 v14, s46, v14')
    A('v_lshl_add_u32 v15, v3, 3, v14')
    A('v_lshl_add_u32 v14, v3, 4, v14')
    AF = 32
    for sec in range(2):
        for hd in range(2):
            r = AF + (sec*2+hd)*4
            A(f'buffer_load_dwordx2 v[{r}:{r+1}], v15, s[20:23], 0 offen offset:{sec*1152+hd*36} {RAWF}', 'a')
            A(f'buffer_load_dwordx2 v[{r+2}:{r+3}], v15, s[20:23], 0 offen offset:{sec*1152+hd*36+32} {RAWF}', 'a')
    for hd in range(2):
        r = AF + (4+hd)*4
        A(f'buffer_load_dwordx4 v[{r}:{r+3}], v14, s[20:23], 0 offen offset:{2*1152+hd*36} {RAWF}', 'a')
    K.stamp('s0iss')
    ID, BF = 56, 64
    A('v_lshlrev_b32 v97, 3, v3'); A('v_sub_u32 v97, v2, v97')
    A('v_mov_b32 v98, 100'); A('v_cmp_gt_u32 vcc, 9, v2'); A('v_cndmask_b32 v97, v98, v97, vcc')
    A('v_mov_b32 v98, 0x3f80'); A('v_mov_b32 v99, 0x3f800000'); A('v_mov_b32 v100, 0')
    for p in range(2):
        if p == 1: A('v_add_u32 v97, 9, v97')
        for m in range(4):
            r = ID + p*4 + m
            A(f'v_cmp_eq_u32 vcc, {2*m}, v97'); A(f'v_cndmask_b32 v{r}, v100, v98, vcc')
            A(f'v_cmp_eq_u32 vcc, {2*m+1}, v97'); A(f'v_cndmask_b32 v{r}, v{r}, v99, vcc')
    A('s_lshr_b32 s46, s48, 1'); A('s_mul_i32 s47, s46, 5120')
    A('s_lshl_b32 s49, s46, 11'); A('s_add_u32 s49, s49, %d' % (92160 - 5*1024))
    A(f's_mul_i32 s50, s41, {WP_J}'); A(f's_add_u32 s50, s50, {WP_OFF}')
    A('s_and_b32 s51, s48, 1'); A('s_lshl_b32 s51, s51, 9'); A('s_add_u32 s50, s50, s51')
    A('v_lshrrev_b32 v104, 1, v3'); A('v_lshlrev_b32 v104, 8, v104'); A('v_and_b32 v105, 1, v3'); A('v_lshl_add_u32 v104, v105, 3, v104')
    A('v_add_u32 v104, s50, v104')
    for base, r in ((0, 101), (9, 102), (18, 103)):
        A(f'v_add_u32 v105, {base}, v2'); A('v_lshrrev_b32 v106, 2, v105'); A('v_and_b32 v105, 3, v105')
        A('v_lshlrev_b32 v105, 4, v105'); A('v_lshl_add_u32 v105, v106, 10, v105')
        A('v_mov_b32 v107, s47'); A('v_mov_b32 v108, s49')
        A('v_cmp_gt_u32 vcc, 5, v106'); A('v_cndmask_b32 v107, v108, v107, vcc')
        A('v_add3_u32 v105, v105, v107, v104')
        A('v_cmp_gt_u32 vcc, 9, v2'); A(f'v_cndmask_b32 v{r}, v13, v105, vcc')
    A('s_mov_b32 s46, 0x%08x' % LOG2E); A('v_mov_b32 v110, s46')
    A.wait_vm('b')
    T0 = 80
    for hd in range(2):
        for p in range(2):
            for t in range(2):
                d = T0 + (p*2+t)*4
                A(f'v_mfma_f32_16x16x32_bf16 v[{d}:{d+3}], v[{PH+8*hd+4*t}:{PH+8*hd+4*t+3}], v[{ID+4*p}:{ID+4*p+3}], 0')
        for p in range(2):
            b = BF + (hd*2+p)*4
            for t in range(2):
                d = T0 + (p*2+t)*4
                A(f'v_cvt_pk_bf16_f32 v{b+2*t}, v{d}, v{d+1}'); A(f'v_cvt_pk_bf16_f32 v{b+2*t+1}, v{d+2}, v{d+3}')
    A.wait_vm('a')
    K.stamp('s0ld')
    order = [(sec, hd, p) for sec in (1, 2, 0) for hd in range(2) for p in range(2)]
    for grp in range(3):
        part = order[4*grp:4*grp+4]
        for t, (sec, hd, p) in enumerate(part):
            d = T0 + 4*t if grp != 1 else 16 + 4*t
            af = AF + (sec*2+hd)*4
            bf = (ID + p*4) if sec == 2 else BF + (hd*2+p)*4
            A(f'v_mfma_f32_16x16x32_bf16 v[{d}:{d+3}], v[{af}:{af+3}], v[{bf}:{bf+3}], 0')
        for t, (sec, hd, p) in enumerate(part):
            d = T0 + 4*t if grp != 1 else 16 + 4*t
            ar = {1: 101, 2: 102, 0: 103}[sec]
            if sec != 2:
                A(f'v_pk_mul_f32 v[{d}:{d+1}], v[{d}:{d+1}], v[110:111] op_sel_hi:[1,0]')
                A(f'v_pk_mul_f32 v[{d+2}:{d+3}], v[{d+2}:{d+3}], v[110:111] op_sel_hi:[1,0]')
            A(f'v_cvt_pk_bf16_f32 v{d}, v{d}, v{d+1}'); A(f'v_cvt_pk_bf16_f32 v{d+1}, v{d+2}, v{d+3}')
            A(f'buffer_store_dwordx2 v[{d}:{d+1}], v{ar}, s[16:19], 0 offen offset:{64*(2*hd+p)} sc1', 'st')
    A(f's_branch {JOIN}')

    A.label('S0_O'); A.vm = []; A.hist = []
    A('s_cmp_ge_u32 s2, 72'); A('s_cbranch_scc1 S0_M')
    srd(A, 20, 36, 37, 576*1152)
    A('s_and_b32 s48, s2, 3'); A('s_lshr_b32 s49, s2, 2')
    A('v_lshrrev_b32 v14, 3, v2'); A('s_lshl_b32 s46, s48, 3'); A('v_add_u32 v14, s46, v14'); A('v_mul_u32_u24 v14, 18, v14')
    A('v_bfe_u32 v15, v2, 2, 1'); A('v_mad_u32_u24 v14, v15, 9, v14')
    A('v_and_b32 v15, 3, v2')
    A('v_mad_u32_u24 v12, v15, 36, v14'); A('v_add_u32 v12, 8, v12')
    A('v_add_u32 v14, v14, v15')
    A('v_mul_u32_u24 v14, 1152, v14'); A('v_mul_u32_u24 v12, 1152, v12')
    A('s_lshl_b32 s46, s49, 6'); A('v_lshl_add_u32 v15, v3, 4, s46')
    A('v_add_u32 v14, v14, v15'); A('v_add_u32 v12, v12, v15')
    OA = 16
    for u in range(4):
        for h in range(2):
            A(f's_mov_b32 s{50+h}, {(36*u+4*h)*1152}')
            r = OA + (u*2+h)*4
            A(f'buffer_load_dwordx4 v[{r}:{r+3}], v14, s[20:23], s{50+h} offen {RAWF}', 'o')
    A(f'buffer_load_dwordx4 v[{OA+32}:{OA+35}], v12, s[20:23], 0 offen {RAWF}', 'o')
    K.stamp('s0iss')
    OI = 52
    A('v_lshlrev_b32 v97, 3, v3'); A('v_sub_u32 v97, v2, v97')
    A('v_mov_b32 v98, 0x3f80'); A('v_mov_b32 v99, 0x3f800000'); A('v_mov_b32 v100, 0')
    for t in range(2):
        if t == 1: A('v_add_u32 v97, 16, v97')
        for m in range(4):
            r = OI + t*4 + m
            A(f'v_cmp_eq_u32 vcc, {2*m}, v97'); A(f'v_cndmask_b32 v{r}, v100, v98, vcc')
            A(f'v_cmp_eq_u32 vcc, {2*m+1}, v97'); A(f'v_cndmask_b32 v{r}, v{r}, v99, vcc')
    for t in range(2):
        A('s_lshl_b32 s46, s49, 1'); A(f's_add_u32 s46, s46, {t}')
        A('s_mul_hi_u32 s47, s46, 0x%x' % ((1 << 32)//9 + 1)); A('s_mul_i32 s50, s47, 9'); A('s_sub_u32 s50, s46, s50')
        A('s_lshl_b32 s47, s47, 2'); A('s_add_u32 s47, s47, s48'); A('s_mul_i32 s47, s47, 9'); A('s_add_u32 s47, s47, s50')
        A('s_mul_i32 s47, s47, 5120'); A(f's_add_u32 s47, s47, {WOP_OFF}')
        A(f'v_add_u32 v{10+t}, s47, v1')
    A.wait_vm('o')
    K.stamp('s0ld')
    for t in range(2):
        D = 60
        for q in range(9):
            A(f'v_mfma_f32_16x16x32_bf16 v[{D+4*q}:{D+4*q+3}], v[{OA+4*q}:{OA+4*q+3}], v[{OI+4*t}:{OI+4*t+3}], 0')
        for u in range(4):
            x_, y_ = D + 8*u, D + 8*u + 4
            A(f'v_cvt_pk_bf16_f32 v{x_}, v{x_}, v{x_+1}'); A(f'v_cvt_pk_bf16_f32 v{x_+1}, v{x_+2}, v{x_+3}')
            A(f'v_cvt_pk_bf16_f32 v{x_+2}, v{y_}, v{y_+1}'); A(f'v_cvt_pk_bf16_f32 v{x_+3}, v{y_+2}, v{y_+3}')
            A(f'buffer_store_dwordx4 v[{x_}:{x_+3}], v{10+t}, s[16:19], 0 offen offset:{u*1024} sc1', 'st')
        z = D + 32
        for i in range(4): A(f'v_cvt_pk_bf16_f32 v{z+i}, v{z+i}, 0')
        A('s_mov_b32 s46, 4096')
        A(f'buffer_store_dwordx4 v[{z}:{z+3}], v{10+t}, s[16:19], s46 offen sc1', 'st')
        A('s_nop 1')
    A(f's_branch {JOIN}')

    A.label('S0_E'); A.vm = []; A.hist = []
    A(f'v_mov_b32 v14, {EPOCH_OFF}')
    A('buffer_load_dword v20, v14, s[16:19], 0 offen sc1', 'ep')
    A.wait_vm('ep')
    A('v_add_u32 v20, 1, v20')
    A('v_readfirstlane_b32 s63, v20')
    A(f's_branch {JOIN}')


    A.label('S0_M'); A.vm = []; A.hist = []
    A('s_cmp_lg_u32 s2, 200'); A(f's_cbranch_scc1 {JOIN}')
    A('s_cmp_lg_u32 s3, 5'); A(f's_cbranch_scc1 {JOIN}')
    srd(A, 20, 38, 39, 1152)
    A('v_lshlrev_b32 v14, 2, v0')
    for i in range(5): A(f'buffer_load_dword v{16+i}, v14, s[20:23], 0 offen offset:{i*256}', 'm')
    A('s_mov_b32 s46, 0x3f803f80'); A('v_mov_b32 v24, 0')
    A.wait_vm('m')
    for i in range(5): A(f'v_dot2c_f32_bf16 v24, s46, v{16+i}')
    for mod in ('quad_perm:[1,0,3,2]', 'quad_perm:[2,3,0,1]', 'row_half_mirror', 'row_mirror'):
        A(f'v_add_f32_dpp v24, v24, v24 {mod} row_mask:0xf bank_mask:0xf')
    A('v_mov_b32 v25, v24'); A('v_permlane16_swap_b32 v24, v25'); A('v_add_f32 v24, v24, v25')
    A('v_mov_b32 v25, v24'); A('v_permlane32_swap_b32 v24, v25'); A('v_add_f32 v24, v24, v25')
    A('s_mov_b32 s46, 0x3AE38E39'); A('v_mul_f32 v24, s46, v24')
    A('v_lshlrev_b32 v14, 3, v0'); A(f'v_add_u32 v14, {WRC_OFF}, v14')
    for i in range(5):
        A(f'v_lshlrev_b32 v26, 16, v{16+i}'); A(f'v_and_b32 v27, 0xffff0000, v{16+i}')
        A('v_sub_f32 v26, v26, v24'); A('v_sub_f32 v27, v27, v24')
        A(f'buffer_store_dwordx2 v[26:27], v14, s[16:19], 0 offen offset:{i*512} sc1', 'st')
        A('s_nop 1')

    A.label(JOIN); A.hist = []
    K.stamp('s0work')
    fills()
    K.waitall_vm()
    K.stamp('s0ack')
    A('s_barrier')
    NPOLL = A.newlabel('S0_NP')
    A('s_cmp_lg_u32 s3, 7'); A(f's_cbranch_scc1 {NPOLL}')
    A('s_lshl_b32 s46, s2, 7'); A(f's_add_u32 s46, s46, {FLAG_OFF}')
    A('v_mov_b32 v14, s46'); A('v_mov_b32 v15, s63')
    A('s_mov_b64 exec, 1')
    A('buffer_store_dword v15, v14, s[16:19], 0 offen sc1')
    A('s_mov_b64 exec, -1')
    A('v_and_b32 v16, 15, v0'); A('v_bfe_u32 v17, v0, 4, 1')
    A('v_mov_b32 v18, s40'); A('v_mov_b32 v19, s41')
    A('v_cmp_eq_u32 vcc, 0, v17')
    A('v_cndmask_b32 v18, v16, v18, vcc')
    A('v_cndmask_b32 v19, v19, v16, vcc')
    A('v_and_b32 v20, 3, v18'); A('v_lshlrev_b32 v20, 3, v20'); A('v_and_b32 v21, 7, v19'); A('v_or_b32 v20, v20, v21'); A('v_lshlrev_b32 v20, 3, v20')
    A('v_lshrrev_b32 v21, 2, v18'); A('v_lshl_or_b32 v20, v21, 1, v20'); A('v_lshrrev_b32 v21, 3, v19'); A('v_or_b32 v20, v20, v21')
    A('v_lshlrev_b32 v20, 7, v20'); A(f'v_add_u32 v20, {FLAG_OFF}, v20')
    L = K.poll_begin()
    A('buffer_load_dword v21, v20, s[16:19], 0 offen sc1')
    K.waitall_vm()
    A('v_cmp_ne_u32 vcc, s63, v21')
    K.poll_end(L)
    A.label(NPOLL); A.hist = []
    A('s_barrier')
    K.stamp('s0flag')
```

```python
import sys
sys.path.insert(0, 'gen')
import layout

NAME = 'sequential_preLN__linear_kernel_hedgehog__moe_arch_mod__prompt'
HEADER = open('cdna_kernels/%s.s.ref' % NAME).read().split('; Override launch')[0]

def desc(name, vgpr, accum, sgpr=102):
    return f'''.amdhsa_kernel {name}
  .amdhsa_next_free_vgpr {vgpr}
  .amdhsa_next_free_sgpr {sgpr}
  .amdhsa_accum_offset {accum}
  .amdhsa_group_segment_fixed_size 0
  .amdhsa_kernarg_size 96
  .amdhsa_user_sgpr_count 2
  .amdhsa_user_sgpr_kernarg_segment_ptr 1
  .amdhsa_system_sgpr_workgroup_id_x 1
  .amdhsa_float_denorm_mode_32 3
  .amdhsa_float_denorm_mode_16_64 3
.end_amdhsa_kernel
'''

def build(k1_text, k1_lds=163840):
    out = HEADER
    out += f'; @launch grid=(256,1,1) block=(512,1,1) lds={k1_lds}\n'
    out += '.amdgcn_target "amdgcn-amd-amdhsa--gfx950"\n.text\n'
    kn = NAME + '_kernel'
    k1_text = k1_text.replace('main_kernel', kn)
    out += f'.globl {kn}\n.p2align 8\n.type {kn},@function\n{kn}:\n' + k1_text
    out += '.section .rodata,"a"\n.p2align 6\n'
    out += desc(kn, 256, 112, 102)
    return out

if __name__ == '__main__':
    from k1 import gen_k1
    stop = sys.argv[1] if len(sys.argv) > 1 else None
    prof = len(sys.argv) > 2
    if stop == 'none': stop = None
    t = build(gen_k1(stop, prof))
    import k1
    open('stamps.txt', 'w').write(' '.join(k1.LAST.stamps))
    open('out.s', 'w').write(t)
    print(len(t))
```

```python
import os
from asmlib import *
from layout import *
from s0 import srd, BIG, s0

SPIN = 3000
LOG2E = 0x3FB8AA3B

L_W    = 0
L_IMG  = 0
L_RED  = 0
L_GU   = 73728
L_DN   = 0
L_R2   = 36864
L_KVT  = 147456
L_ZERO = L_KVT + 48*96
L_STAT = L_ZERO + 64
L_WMAX = L_STAT + 2048
L_RANK = L_WMAX + 64
L_AIMG = L_RANK + 128
L_FIN  = L_AIMG + 512
LDS_BYTES = 163840
assert L_FIN + 1024 <= LDS_BYTES

NV = 112
ACC = 16
def acc(T, tt): return ACC + (T*2+tt)*4
WF = 72
NCT_H = 6

class K1:
    def __init__(self, stop=None, prof=False):
        self.A = Asm(); self.stop = stop; self.prof = prof; self.stamps = []
        self.PF = int(os.environ.get('PF', 5))
        self.nbar = 0

    def stamp(self, name):
        if not self.prof: return
        if name in os.environ.get('NOSTAMP', '').split(','): return
        if name in self.stamps: i = self.stamps.index(name)
        else:
            i = len(self.stamps); assert i < 19
            self.stamps.append(name)
        op = 's_memtime' if os.environ.get('CYC') else 's_memrealtime'
        self.A(f'{op} s[{64+2*i}:{65+2*i}]')
    def poll_begin(self):
        A = self.A
        L = A.newlabel('POLL')
        A(f's_mov_b32 s62, {SPIN}')
        A.label(L)
        return L
    def poll_end(self, L):
        A = self.A
        D = A.newlabel('PDONE')
        A(f's_cbranch_vccz {D}')
        A('s_sub_u32 s62, s62, 1')
        A(f's_cbranch_scc1 {D}')
        A('s_sleep %s' % os.environ.get('SLEEP', '1'))
        A(f's_branch {L}')
        A.label(D)
    def waitall_vm(self):
        self.A('s_waitcnt vmcnt(0)'); self.A.vm = []
    def bar(self):
        self.A('s_barrier'); self.nbar += 1
    def barrier(self):
        self.A.wait_lg(); self.bar()
    def xsum_g(self, regs, tmp):
        A = self.A
        for swap in ('v_permlane16_swap_b32', 'v_permlane32_swap_b32'):
            for i, r in enumerate(regs): A(f'v_mov_b32 v{tmp+i}, v{r}')
            for i, r in enumerate(regs): A(f'{swap} v{r}, v{tmp+i}')
            for i, r in enumerate(regs): A(f'v_add_f32 v{r}, v{r}, v{tmp+i}')

    def prologue(self):
        A = self.A
        A('s_cmp_ge_u32 s2, 256'); A('s_cbranch_scc1 K1_END')
        A('s_getpc_b64 s[46:47]')
        A('v_lshlrev_b32 v5, 4, v0')
        A('global_load_dwordx4 a[140:143], v5, s[46:47]', 'pf')
        A('s_load_dwordx2 s[6:7], s[0:1], 88')
        A('s_load_dwordx2 s[4:5], s[0:1], 0')
        A('s_load_dwordx4 s[32:35], s[0:1], 8')
        A('s_load_dwordx2 s[36:37], s[0:1], 24')
        A('s_load_dwordx2 s[38:39], s[0:1], 40')
        A('s_load_dwordx4 s[8:11], s[0:1], 48')
        A('s_load_dwordx4 s[12:15], s[0:1], 64')
        npieces = int(os.environ.get('CODE4K', 7)) - 2
        A('s_lshr_b32 s48, s2, 3'); A(f's_mul_hi_u32 s49, s48, {(1 << 32)//npieces + 1}'); A(f's_mul_i32 s49, s49, {npieces}')
        A('s_sub_u32 s48, s48, s49'); A('s_add_u32 s48, s48, 2'); A('s_lshl_b32 s48, s48, 12')
        A('v_and_b32 v5, 0xfff, v5'); A('v_add_u32 v5, s48, v5')
        A('global_load_dwordx4 a[136:139], v5, s[46:47]', 'pf')
        A('v_mov_b32 v4, v0')
        A('v_lshrrev_b32 v1, 6, v0')
        A('v_and_b32 v0, 63, v0')
        A('v_readfirstlane_b32 s3, v1')
        A('v_lshlrev_b32 v1, 4, v0')
        A('s_and_b32 s44, s2, 7'); A('s_lshr_b32 s45, s2, 3')
        A('s_lshr_b32 s40, s44, 1'); A('s_lshl_b32 s40, s40, 2'); A('s_lshr_b32 s46, s45, 3'); A('s_add_u32 s40, s40, s46')
        A('s_and_b32 s41, s44, 1'); A('s_lshl_b32 s41, s41, 3'); A('s_and_b32 s46, s45, 7'); A('s_add_u32 s41, s41, s46')
        A('s_lshl_b32 s42, s40, 2'); A('s_lshr_b32 s46, s41, 2'); A('s_add_u32 s42, s42, s46')
        A('s_and_b32 s43, s41, 3')
        A('s_and_b32 s55, s3, 3')
        A('v_and_b32 v2, 15, v0')
        A('v_lshrrev_b32 v3, 4, v0')
        A('s_waitcnt lgkmcnt(0)')
        srd(A, 16, 6, 7, WS_USED)

    def other_srds(self):
        A = self.A
        srd(A, 20, 4, 5, 2048*1152)
        srd(A, 24, 14, 15, 2048*1152)
        srd(A, 28, 8, 9, 576*9216)
        srd(A, 32, 10, 11, 576*9216)
        srd(A, 36, 12, 13, 4608*1152)

    steps_for_chunk = [[0,1,2],[3,4,5],[6,7,8],[9,10,11],[12,13,14,15],[16,17]]

    def c_gemm1(self):
        A = self.A
        A('s_lshl_b32 s46, s40, 3'); A('s_lshl_b32 s47, s55, 1'); A('s_add_u32 s46, s46, s47')
        A('s_mul_i32 s46, s46, 18432')
        A('v_add_u32 v5, s46, v1')
        def xload1(s_, tt):
            A(f's_mov_b32 s49, {tt*18432 + (s_//4)*4096}')
            r = (tt*18+s_)*4
            A(f'buffer_load_dwordx4 a[{r}:{r+3}], v5, s[16:19], s49 offen offset:{(s_%4)*1024}', ('x', s_))
        todo = [(s_, tt) for s_ in range(18) for tt in range(2)]
        P = self.PF
        def issue_upto(step, maxn=None):
            n = 0
            while todo and todo[0][0] <= step and (maxn is None or n < maxn):
                xload1(*todo.pop(0)); n += 1
        issue_upto(P - 1)
        self.other_srds()
        A('v_add_u32 v6, 0x10000, v1')
        def wread(frag, dst, tag):
            if frag < 64: A(f'ds_read_b128 v[{dst}:{dst+3}], v1 offset:{frag*1024}', tag)
            else: A(f'ds_read_b128 v[{dst}:{dst+3}], v6 offset:{(frag-64)*1024}', tag)
        self.wread = wread
        chunk_of = {}
        for c, ss in enumerate(self.steps_for_chunk):
            for s_ in ss: chunk_of[s_] = c
        fill = self.c_setup_list()
        self.stamp('issued')
        self.bar()
        self.stamp('chunk0')
        for T in range(5): wread(T, WF + 4*T, ('r', 0, T))
        for s_ in range(18):
            buf = WF + (s_ & 1)*20; nbuf = WF + ((s_+1) & 1)*20
            for T in range(5):
                A.wait_lg(('r', s_, T))
                if T == 0: A.wait_vm(('x', s_))
                for tt in range(2):
                    d = acc(T, tt); x = (tt*18+s_)*4
                    c = '0' if s_ == 0 else f'v[{d}:{d+3}]'
                    A(f'v_mfma_f32_16x16x32_bf16 v[{d}:{d+3}], v[{buf+4*T}:{buf+4*T+3}], a[{x}:{x+3}], {c}')
                if s_ + 1 < 18:
                    if T == 0 and chunk_of[s_+1] != chunk_of[s_]: self.bar()
                    wread((s_+1)*5+T, nbuf + 4*T, ('r', s_+1, T))
                if T in (1, 3): issue_upto(s_ + P, 1)
                if T in (2, 4) and fill and s_ >= 1: A(fill.pop(0))
            issue_upto(s_ + P)
        for f in fill: A(f)

    def c_setup_list(self):
        f = []
        f += ['v_and_b32 v14, 1, v3', 'v_cmp_eq_u32 vcc, 0, v14', 'v_mov_b32 v15, 1.0', 's_nop 0', 'v_cndmask_b32 v7, 0, v15, vcc']
        f += ['s_lshl_b32 s46, s55, 5', 'v_add_u32 v8, s46, v2', 'v_mul_u32_u24 v8, 288, v8', 'v_lshl_add_u32 v8, v3, 6, v8']
        return f

    def c_setup2(self):
        A = self.A
        t0, t1, t2, t3, t4 = 100, 101, 102, 103, 104
        A(f'v_lshrrev_b32 v{t0}, 2, v2')
        A(f'v_and_b32 v{t1}, 3, v2')
        A(f'v_lshrrev_b32 v{t2}, 1, v{t0}')
        A(f'v_and_b32 v{t0}, 1, v{t0}')
        A(f'v_lshrrev_b32 v{t3}, 1, v3')
        A(f'v_cmp_eq_u32 s[52:53], v{t2}, v{t3}')
        A(f'v_mul_u32_u24 v{t2}, 24, v{t2}')
        A(f'v_and_b32 v{t3}, 1, v3'); A(f'v_mul_u32_u24 v{t3}, 48, v{t3}')
        A(f'v_add_u32 v{t3}, {L_KVT}, v{t3}')
        A(f'v_mov_b32 v{t4}, {L_ZERO}')
        for To in range(3):
            A(f'v_add_u32 v14, {4*To}, v{t1}')
            A(f'v_mad_u32_u24 v15, v{t0}, 12, v14')
            A('v_cmp_eq_u32 vcc, 9, v14'); A('v_cndmask_b32 v15, v15, v14, vcc')
            A(f'v_add_u32 v15, v{t2}, v15'); A('v_mul_u32_u24 v15, 96, v15'); A(f'v_add_u32 v15, v15, v{t3}')
            A('v_cmp_ge_u32 vcc, 9, v14'); A('s_and_b64 vcc, vcc, s[52:53]')
            A(f'v_cndmask_b32 v{9+To}, v{t4}, v15, vcc')
        A('s_lshl_b32 s46, s40, 3'); A('s_lshl_b32 s47, s55, 1'); A('s_add_u32 s46, s46, s47')
        A('s_lshl_b32 s46, s46, 4'); A('s_add_u32 s46, s46, s41')
        A('s_lshl_b32 s47, s46, 10'); A(f's_add_u32 s47, s47, {OPM_OFF}'); A('v_add_u32 v12, s47, v1')
        A('s_lshl_b32 s47, s46, 8'); A(f's_add_u32 s47, s47, {OPT_OFF}'); A('v_lshlrev_b32 v13, 2, v0'); A('v_add_u32 v13, s47, v13')

    def c_part2(self):
        A = self.A; wread = self.wread
        for T in range(2): wread(90 + T, WF + 4*T, ('r2', 0, T))
        for s_ in range(18):
            buf = WF + (s_ & 1)*8; nbuf = WF + ((s_+1) & 1)*8
            for T in range(2):
                A.wait_lg(('r2', s_, T))
                for tt in range(2):
                    d = acc(5+T, tt); x = (tt*18+s_)*4
                    c = '0' if s_ == 0 else f'v[{d}:{d+3}]'
                    A(f'v_mfma_f32_16x16x32_bf16 v[{d}:{d+3}], v[{buf+4*T}:{buf+4*T+3}], a[{x}:{x+3}], {c}')
                if s_ + 1 < 18: wread(90 + (s_+1)*2+T, nbuf + 4*T, ('r2', s_+1, T))

    def softmax9(self, r, out, t0):
        A = self.A
        ep = [t0 + 2*i for i in range(9)]; em = [t0 + 2*i + 1 for i in range(9)]
        mx, mn, t1, t2 = t0+18, t0+19, t0+20, t0+21
        assert t0 % 2 == 0
        A(f'v_max3_f32 v{mx}, v{r[0]}, v{r[1]}, v{r[2]}'); A(f'v_min3_f32 v{mn}, v{r[0]}, v{r[1]}, v{r[2]}')
        A(f'v_max3_f32 v{t1}, v{r[3]}, v{r[4]}, v{r[5]}'); A(f'v_min3_f32 v{t2}, v{r[3]}, v{r[4]}, v{r[5]}')
        A(f'v_max3_f32 v{mx}, v{mx}, v{r[6]}, v{r[7]}'); A(f'v_min3_f32 v{mn}, v{mn}, v{r[6]}, v{r[7]}')
        A(f'v_max3_f32 v{mx}, v{mx}, v{t1}, v{r[8]}'); A(f'v_min3_f32 v{mn}, v{mn}, v{t2}, v{r[8]}')
        A(f'v_mov_b32 v{t1}, v{mx}'); A(f'v_mov_b32 v{t2}, v{mn}')
        A(f'v_permlane16_swap_b32 v{mx}, v{t1}'); A(f'v_permlane16_swap_b32 v{mn}, v{t2}')
        A(f'v_max_f32 v{mx}, v{mx}, v{t1}'); A(f'v_min_f32 v{mn}, v{mn}, v{t2}')
        for i in range(9):
            A(f'v_sub_f32 v{ep[i]}, v{r[i]}, v{mx}'); A(f'v_sub_f32 v{em[i]}, v{mn}, v{r[i]}')
        for i in range(9):
            A(f'v_exp_f32 v{ep[i]}, v{ep[i]}'); A(f'v_exp_f32 v{em[i]}, v{em[i]}')
        A(f'v_pk_add_f32 v[{mx}:{mn}], v[{ep[0]}:{em[0]}], v[{ep[1]}:{em[1]}]')
        A(f'v_pk_add_f32 v[{t1}:{t2}], v[{ep[2]}:{em[2]}], v[{ep[3]}:{em[3]}]')
        for i in (4, 6):
            A(f'v_pk_add_f32 v[{mx}:{mn}], v[{mx}:{mn}], v[{ep[i]}:{em[i]}]')
            A(f'v_pk_add_f32 v[{t1}:{t2}], v[{t1}:{t2}], v[{ep[i+1]}:{em[i+1]}]')
        A(f'v_pk_add_f32 v[{mx}:{mn}], v[{mx}:{mn}], v[{ep[8]}:{em[8]}]')
        A(f'v_pk_add_f32 v[{mx}:{mn}], v[{mx}:{mn}], v[{t1}:{t2}]')
        A(f'v_mov_b32 v{t1}, v{mx}'); A(f'v_mov_b32 v{t2}, v{mn}')
        A(f'v_permlane16_swap_b32 v{mx}, v{t1}'); A(f'v_permlane16_swap_b32 v{mn}, v{t2}')
        A(f'v_pk_add_f32 v[{mx}:{mn}], v[{mx}:{mn}], v[{t1}:{t2}]')
        A(f'v_rcp_f32 v{mx}, v{mx}'); A(f'v_rcp_f32 v{mn}, v{mn}')
        for i in range(9):
            A(f'v_pk_mul_f32 v[{ep[i]}:{em[i]}], v[{ep[i]}:{em[i]}], v[{mx}:{mn}]')
        for k, e in enumerate((ep, em)):
            for m in range(4): A(f'v_cvt_pk_bf16_f32 v{out+5*k+m}, v{e[2*m]}, v{e[2*m+1]}')
            A(f'v_cvt_pk_bf16_f32 v{out+5*k+4}, v{e[8]}, 0')

    def kregs(self, tt, base):
        return [acc((base+i) >> 2, tt) + ((base+i) & 3) for i in range(9)]

    def c_program(self):
        A = self.A
        self.c_gemm1()
        self.stamp('gemm1')
        self.bar()
        B, TMP = 72, 88
        for tt in range(2):
            self.softmax9(self.kregs(tt, 0), B, TMP)
            vv = self.kregs(tt, 9)
            for m in range(4): A(f'v_cvt_pk_bf16_f32 v{B+10+m}, v{vv[2*m]}, v{vv[2*m+1]}')
            A(f'v_cvt_pk_bf16_f32 v{B+14}, v{vv[8]}, v7')
            A(f'v_mov_b32 v{B+15}, 0')
            for q in range(4):
                A(f'ds_write_b128 v8, v[{B+4*q}:{B+4*q+3}] offset:{L_IMG + tt*16*288 + 16*q}', 'img')
            if tt == 0: A.wait_lg()
        self.stamp('softk')
        self.barrier()
        self.moe_prefetch()
        self.c_part2()
        self.stamp('gemm2')
        self.c_setup2()
        for tt in range(2):
            P = 16 + 12*tt
            self.softmax9(self.kregs(tt, 18), P, 88)
            A(f'v_mov_b32 v{P+10}, 0'); A(f'v_mov_b32 v{P+11}, 0')
        self.stamp('softq')
        self.wo_loads(NCT_H, 9 - NCT_H)
        self.bar()
        self.stamp('h1')
        AF, D = 40, 76
        for To in range(3):
            for s2 in range(3):
                a_ = AF + (To*3+s2)*4
                A(f'ds_read_b128 v[{a_}:{a_+3}], v{9+To} offset:{16*s2}', ('s2', To))
        for tt in range(2):
            P = 16 + 12*tt; Dt = D + 12*tt
            for To in range(3):
                if tt == 0: A.wait_lg(('s2', To))
                for s2 in range(3):
                    a_ = AF + (To*3+s2)*4; d = Dt + 4*To
                    c = '0' if s2 == 0 else f'v[{d}:{d+3}]'
                    A(f'v_mfma_f32_16x16x32_bf16 v[{d}:{d+3}], v[{a_}:{a_+3}], v[{P+4*s2}:{P+4*s2+3}], {c}')
        for tt in range(2):
            Dt = D + 12*tt; O = 100 + 6*tt
            A(f'v_add_f32 v14, 0x358637bd, v{Dt+9}')
            A('v_rcp_f32 v14, v14')
            for i in range(9): A(f'v_mul_f32 v{Dt+i}, v{Dt+i}, v14')
            O = 40 + 8*tt
            for m in range(4): A(f'v_cvt_pk_bf16_f32 v{O+m}, v{Dt+2*m}, v{Dt+2*m+1}')
            A(f'v_cvt_pk_bf16_f32 v{O+4}, v{Dt+8}, 0')
            A(f's_mov_b32 s46, {tt*16384}'); A(f's_mov_b32 s47, {tt*4096}')
            A(f'buffer_store_dwordx4 v[{O}:{O+3}], v12, s[16:19], s46 offen sc1', 'op')
            A(f'buffer_store_dword v{O+4}, v13, s[16:19], s47 offen sc1', 'op')
        self.stamp('opub')

    def moe_prefetch(self):
        A = self.A
        if os.environ.get('NOPF'): return
        pol = os.environ.get('MPFPOL', '')
        t = 100
        A('s_mul_i32 s46, s45, 162')
        A(f'v_add_u32 v{t}, s46, v4')
        A(f'v_mul_u32_u24 v{t+1}, 7282, v{t}'); A(f'v_lshrrev_b32 v{t+1}, 16, v{t+1}')
        A(f'v_mul_u32_u24 v{t+2}, 9, v{t+1}'); A(f'v_sub_u32 v{t+2}, v{t}, v{t+2}')
        A(f'v_mul_u32_u24 v{t+1}, 9216, v{t+1}'); A(f'v_lshl_add_u32 v{t+1}, v{t+2}, 7, v{t+1}')
        A('s_mul_i32 s46, s44, 1152'); A(f'v_add_u32 v{t+1}, s46, v{t+1}')
        A(f'v_lshlrev_b32 v{t+2}, 7, v{t}'); A(f's_mul_i32 s46, s44, {18*36864}'); A(f'v_add_u32 v{t+2}, s46, v{t+2}')
        A(f'v_mov_b32 v{t+3}, {BIG}'); A('v_cmp_gt_u32 vcc, 162, v4')
        A(f'v_cndmask_b32 v{t+1}, v{t+3}, v{t+1}, vcc'); A(f'v_cndmask_b32 v{t+2}, v{t+3}, v{t+2}, vcc')
        SK = A.newlabel('NOMPF')
        A('s_cmp_ge_u32 s3, 3'); A(f's_cbranch_scc1 {SK}')
        A(f'buffer_load_dword v110, v{t+1}, s[28:31], 0 offen {pol}', 'mpf')
        A(f'buffer_load_dword v111, v{t+1}, s[32:35], 0 offen {pol}', 'mpf')
        A(f'buffer_load_dword v111, v{t+2}, s[36:39], 0 offen {pol}', 'mpf')
        A.label(SK)

    def wo_loads(self, ct0, n, i0=0, i1=None, areg=14):
        A = self.A
        if i1 is None: i1 = n*5
        if i0 == 0:
            A('s_lshl_b32 s46, s43, 2'); A('s_add_u32 s46, s46, s55'); A('s_mul_i32 s46, s46, 9'); A(f's_add_u32 s46, s46, {ct0}')
            A('s_mul_i32 s46, s46, 5120'); A(f's_add_u32 s46, s46, {WOP_OFF}')
            A(f'v_add_u32 v{areg}, s46, v1')
        for i in range(i0, i1):
            if i % 4 == 0 or i == i0: A(f's_mov_b32 s47, {(i//4)*4096}')
            A(f'buffer_load_dwordx4 a[{4*i}:{4*i+3}], v{areg}, s[16:19], s47 offen offset:{(i%4)*1024}', 'wo')

    def h_program(self):
        A = self.A
        A(f's_mul_i32 s46, s41, {WP_J}'); A(f's_add_u32 s46, s46, {WP_OFF}')
        A('s_lshl_b32 s54, s55, 12'); A('s_add_u32 s46, s46, s54')
        A('v_add_u32 v5, s46, v1')
        def dma(c):
            A(f's_add_u32 m0, s54, {c*16384}')
            A(f's_mov_b32 s48, {c*16384}')
            for i in range(4):
                A(f'buffer_load_dwordx4 v5, s[16:19], s48 offen offset:{i*1024} lds', ('w', c))
        LA = int(os.environ.get('LA', 3))
        for c in range(LA): dma(c)
        self.other_srds()
        n16 = (L_AIMG - L_KVT)//16
        for r in range(8, 12): A(f'v_mov_b32 v{r}, 0')
        A('v_subrev_u32 v12, 256, v4')
        A('v_lshlrev_b32 v13, 4, v12'); A(f'v_add_u32 v13, {L_KVT}, v13')
        A('ds_write_b128 v13, v[8:11]', 'z')
        A(f'v_cmp_gt_u32 vcc, {n16-256}, v12')
        A('s_and_saveexec_b64 s[50:51], vcc')
        A('ds_write_b128 v13, v[8:11] offset:4096', 'z')
        A('s_mov_b64 exec, s[50:51]')
        A.wait_lg()
        self.stamp('issued')
        for c in range(6):
            A.wait_vm(('w', c)); self.bar()
            if c == 0: self.stamp('chunk0')
            if c + LA < 6: dma(c + LA)
        self.h_setup()
        self.stamp('gemm1')
        self.bar()
        dma(6); dma(7)
        W1 = int(os.environ.get('W1', 8))
        self.wo_loads(0, NCT_H, 0, W1, areg=25)
        A.wait_vm([('w', 6), ('w', 7)])
        self.stamp('softk')
        self.bar()
        AFr, BFr, D = 32, 80, 96
        for ks in range(4):
            rl = []
            for h in range(2):
                b = BFr + 4*ks + 2*h
                rl.append((f'ds_read_b64_tr_b16 v[{b}:{b+1}], v17 offset:{L_IMG + ks*9216 + h*4608}', ('kb', ks)))
            for T in range(3):
                for h in range(2):
                    a_ = AFr + (ks*3+T)*4 + 2*h
                    rl.append((f'ds_read_b64_tr_b16 v[{a_}:{a_+1}], v{14+T} offset:{L_IMG + ks*9216 + h*4608}', ('ka', ks)))
            for x in rl[:4]: A(*x)
            if ks >= 1: self._kvm(ks-1, AFr, BFr, D)
            for x in rl[4:]: A(*x)
        self._kvm(3, AFr, BFr, D)
        for T in range(3):
            A(f'buffer_store_dwordx4 v[{D+4*T}:{D+4*T+3}], v{19 if T == 2 else 18}, s[16:19], 0 offen offset:{64*T} sc1', 'kvp')
        self.stamp('gemm2')
        self.wo_loads(0, NCT_H, W1, None, areg=25)
        LD = 32
        L1 = [96, 100, 104, 108, 24-0, 28, 8, 14+0]
        L1 = [96, 100, 104, 108, 28, 8, 14, 16]
        L1 = [96, 100, 104, 108, 28, 8, 14, 26]
        L1 = [96, 100, 104, 108, 28, 8, 14, 24]
        L = self.poll_begin()
        for m in range(16):
            A(f's_mov_b32 s{46+(m&1)}, {m*KVP_ONE}')
            A(f'buffer_load_dwordx4 v[{LD+4*m}:{LD+4*m+3}], v20, s[16:19], s{46+(m&1)} offen sc1', 'kv')
        for m in range(8):
            A(f's_mov_b32 s{46+(m&1)}, {m*KVP_ONE}')
            A(f'buffer_load_dwordx4 v[{L1[m]}:{L1[m]+3}], v22, s[16:19], s{46+(m&1)} offen sc1', 'kv')
        self.waitall_vm()
        def padd(d, s_):
            for b in (0, 2): A(f'v_pk_add_f32 v[{d+b}:{d+b+1}], v[{d+b}:{d+b+1}], v[{s_+b}:{s_+b+1}]')
        for st in (1, 2, 4, 8):
            for m in range(0, 16, 2*st): padd(LD+4*m, LD+4*(m+st))
        for st in (1, 2, 4):
            for m in range(0, 8, 2*st): padd(L1[m], L1[m+st])
        E = L1[0]
        for b in range(4): A(f'v_add_f32_dpp v{E+b}, v{E+b}, v{E+b} quad_perm:[1,0,3,2] row_mask:0xf bank_mask:0xf')
        A(f'v_add_f32 v18, v{LD}, v{LD+1}'); A(f'v_add_f32 v19, v{LD+2}, v{LD+3}'); A('v_add_f32 v18, v18, v19')
        A(f'v_add_f32 v19, v{E}, v{E+1}'); A('v_add_f32 v18, v18, v19'); A(f'v_add_f32 v19, v{E+2}, v{E+3}'); A('v_add_f32 v18, v18, v19')
        A('v_cmp_u_f32 vcc, v18, v18')
        self.poll_end(L)
        A(f'v_cvt_pk_bf16_f32 v18, v{LD}, v{LD+1}'); A(f'v_cvt_pk_bf16_f32 v19, v{LD+2}, v{LD+3}')
        A('ds_write_b64 v21, v[18:19]', 'kvt')
        A(f'v_cvt_pk_bf16_f32 v26, v{E}, v{E+1}'); A(f'v_cvt_pk_bf16_f32 v27, v{E+2}, v{E+3}')
        A('v_cmp_gt_u32 vcc, 248, v12')
        A('s_and_saveexec_b64 s[50:51], vcc')
        A('ds_write_b64 v23, v[26:27]', 'kvt')
        A('s_mov_b64 exec, s[50:51]')
        A.wait_lg()
        self.stamp('softq')
        self.bar()
        self.stamp('h1')
        NE = A.newlabel('NOEP')
        A('s_cmp_lg_u32 s2, 0'); A(f's_cbranch_scc1 {NE}')
        A('s_cmp_lg_u32 s3, 7'); A(f's_cbranch_scc1 {NE}')
        A(f'v_mov_b32 v8, {EPOCH_OFF}'); A('v_mov_b32 v9, s63')
        A('s_mov_b64 exec, 1')
        A('buffer_store_dword v9, v8, s[16:19], 0 offen sc1')
        A('s_mov_b64 exec, -1')
        A.label(NE)
        self.stamp('opub')

    def _kvm(self, ks, AFr, BFr, D):
        A = self.A
        A.wait_lg([('kb', ks), ('ka', ks)])
        for T in range(3):
            a_ = AFr + (ks*3+T)*4; b = BFr + 4*ks; d = D + 4*T
            c = '0' if ks == 0 else f'v[{d}:{d+3}]'
            A(f'v_mfma_f32_16x16x32_bf16 v[{d}:{d+3}], v[{a_}:{a_+3}], v[{b}:{b+3}], {c}')

    def h_setup(self):
        A = self.A
        A('v_lshrrev_b32 v9, 2, v0')
        A('v_mul_u32_u24 v9, 288, v9')
        A('s_lshr_b32 s46, s55, 1'); A('s_lshl_b32 s47, s46, 7')
        A('v_add_u32 v9, s47, v9')
        A('v_and_b32 v10, 3, v0')
        for T in range(3):
            A(f'v_add_u32 v11, {4*T}, v10'); A('v_lshlrev_b32 v24, 3, v11'); A('v_add_u32 v13, 24, v24')
            A('v_cmp_gt_u32 vcc, 5, v11'); A('v_cndmask_b32 v24, v13, v24, vcc')
            A(f'v_add_u32 v{14+T}, v9, v24')
        A('s_and_b32 s48, s55, 1'); A('s_lshl_b32 s47, s48, 2')
        A('v_add_u32 v11, s47, v10'); A('v_lshlrev_b32 v24, 3, v11')
        A('v_add_u32 v13, 80, v24'); A('v_add_u32 v24, 40, v24')
        A('v_cmp_gt_u32 vcc, 3, v11'); A('v_cndmask_b32 v24, v13, v24, vcc')
        A('v_mov_b32 v13, 40'); A('v_cmp_gt_u32 vcc, 6, v11'); A('v_cndmask_b32 v24, v13, v24, vcc')
        A('v_add_u32 v17, v9, v24')
        A('s_lshl_b32 s47, s48, 4')
        A('v_add_u32 v11, s47, v2')
        A('s_mul_i32 s48, s46, 24')
        A('v_add_u32 v24, s48, v11'); A('v_mul_u32_u24 v24, 10, v24'); A('v_add_u32 v24, v24, v3'); A('v_lshlrev_b32 v24, 4, v24')
        A('s_lshl_b32 s48, s41, 4'); A('s_add_u32 s48, s48, s40'); A(f's_mul_i32 s48, s48, {KVP_ONE}'); A(f's_add_u32 s48, s48, {KVP_OFF}')
        A('v_add_u32 v24, s48, v24')
        A(f'v_mov_b32 v13, {BIG}')
        A('v_subrev_u32 v19, 12, v11')
        A('v_cmp_gt_u32 s[52:53], 9, v19'); A('v_cmp_gt_u32 vcc, 10, v11'); A('s_or_b64 vcc, vcc, s[52:53]')
        A('v_cndmask_b32 v18, v13, v24, vcc')
        A('v_cmp_gt_u32 vcc, 2, v3'); A('v_cndmask_b32 v19, v13, v18, vcc')
        A(f's_mul_i32 s46, s41, {16*KVP_ONE}'); A(f's_add_u32 s46, s46, {KVP_OFF}')
        for rnd in range(2):
            ga, la = (20, 21) if rnd == 0 else (22, 23)
            if rnd == 0: A('v_mov_b32 v24, v12')
            else:
                A('v_lshrrev_b32 v24, 1, v12'); A('v_add_u32 v24, 256, v24'); A('v_min_u32 v24, 379, v24')
            A('v_mul_u32_u24 v8, 6554, v24'); A('v_lshrrev_b32 v8, 16, v8')
            A('v_mul_u32_u24 v9, 10, v8'); A('v_sub_u32 v9, v24, v9')
            A('v_cmp_le_u32 vcc, 19, v8'); A('v_cndmask_b32 v10, 0, 1, vcc')
            A('v_mul_u32_u24 v11, 19, v10'); A('v_sub_u32 v11, v8, v11')
            A('v_cmp_le_u32 vcc, 10, v11'); A('v_cndmask_b32 v13, 0, 2, vcc'); A('v_add_u32 v11, v11, v13')
            A('v_mad_u32_u24 v11, v10, 24, v11')
            A(f'v_mad_u32_u24 v{ga}, v11, 10, v9'); A(f'v_lshlrev_b32 v{ga}, 4, v{ga}')
            A(f'v_add_u32 v{ga}, s46, v{ga}')
            if rnd == 1:
                A('v_and_b32 v13, 1, v12'); A(f'v_mul_u32_u24 v13, {8*KVP_ONE}, v13'); A(f'v_add_u32 v{ga}, v{ga}, v13')
            A(f'v_mul_u32_u24 v{la}, 96, v11'); A(f'v_lshl_add_u32 v{la}, v9, 3, v{la}')
            A('v_cmp_le_u32 vcc, 5, v9'); A('v_cndmask_b32 v13, 0, 8, vcc'); A(f'v_add_u32 v{la}, v{la}, v13')
            A(f'v_add_u32 v{la}, {L_KVT}, v{la}')

    def dump(self, regs, slot):
        A = self.A
        A('s_lshl_b32 s60, s2, 3'); A('s_add_u32 s60, s60, s3'); A('s_mul_i32 s60, s60, 4096'); A(f's_add_u32 s60, s60, {DBG_OFF}')
        A('v_lshlrev_b32 v111, 2, v0'); A('v_add_u32 v111, s60, v111')
        for i, r in enumerate(regs):
            off = (slot+i)*256
            assert off < 4096
            if r[0] == 'a':
                A(f'v_accvgpr_read_b32 v110, {r}'); r = 'v110'
            A(f'buffer_store_dword {r}, v111, s[16:19], 0 offen offset:{off}')
            A('s_nop 1')

    def finish(self):
        A = self.A
        A.label('K1_FIN')
        if self.prof:
            self.stamp('end')
            A('s_waitcnt lgkmcnt(0)')
            A('s_lshl_b32 s60, s2, 3'); A('s_add_u32 s60, s60, s3'); A('s_lshl_b32 s60, s60, 7')
            A(f's_add_u32 s60, s60, {DBG_OFF + (8<<20)}')
            A('v_mov_b32 v110, s60')
            for i in range(len(self.stamps)):
                A(f'v_mov_b32 v111, s{64+2*i}')
                A(f'buffer_store_dword v111, v110, s[16:19], 0 offen offset:{4*i}')
        if os.environ.get('DIAG') and self.prof:
            A('s_load_dwordx2 s[4:5], s[0:1], 80'); A('s_waitcnt lgkmcnt(0)')
            A('s_cmp_lg_u32 s2, %s' % os.environ.get('DIAGWG', '0')); A('s_cbranch_scc1 K1_END')
            A('s_cmp_lg_u32 s3, %s' % os.environ.get('DIAGWAVE', '1')); A('s_cbranch_scc1 K1_END')
            srd(A, 24, 4, 5, 256)
            A('v_mov_b32 v110, 0')
            sel = os.environ['DIAG'].split(',')
            for k, nm in enumerate(sel):
                i = self.stamps.index(nm)
                A(f'v_mov_b32 v111, s{64+2*i}')
                A(f'buffer_store_dword v111, v110, s[24:27], 0 offen offset:{4*k}')
        A.label('K1_END'); A('s_endpgm')
        return A.text()

def gen_k1(stop=None, prof=False):
    K = K1(stop, prof)
    global LAST; LAST = K
    A = K.A
    K.stamp('start')
    K.prologue()
    K.stamp('prolog')
    s0(K, 'main_kernel', int(os.environ.get('CODEKB', 26)))
    A('s_cmp_ge_u32 s3, 4'); A('s_cbranch_scc1 K1_H')
    vm0, lg0 = list(A.vm), list(A.lg)
    K.nbar = 0
    K.c_program()
    nb_c = K.nbar
    A('s_branch K1_JOIN')
    A.label('K1_H')
    A.vm, A.lg, A.hist = list(vm0), list(lg0), []
    K.nbar = 0
    K.h_program()
    assert K.nbar == nb_c, (K.nbar, nb_c)
    A.label('K1_JOIN')
    A('s_nop 7')
    A.vm = ['?']*0; A.lg = []
    if stop == 'o': return K.finish()
    import k1b
    k1b.rest(K)
    return K.finish()
```

```python
import os
from asmlib import *
from layout import *
from s0 import BIG
from k1 import *

def rest(K):
    A = K.A
    stop = K.stop
    NH, NC = NCT_H, 9 - NCT_H
    A('s_mul_i32 s61, s44, 18'); A('s_add_u32 s61, s61, s45')
    A('s_and_b32 s56, s3, 1'); A('s_lshr_b32 s57, s3, 1')
    A('s_lshl_b32 s58, s57, 1'); A('s_add_u32 s58, s58, 1'); A('s_cmp_eq_u32 s57, 0'); A('s_cselect_b32 s58, 0, s58')
    A('s_mul_i32 s59, s43, 144'); A('s_lshl_b32 s46, s58, 4'); A('s_add_u32 s59, s59, s46')
    A('s_lshl_b32 s46, s42, 5'); A('s_lshl_b32 s47, s56, 4'); A('s_add_u32 s46, s46, s47')
    A('v_add_u32 v5, s46, v2')
    A('v_mul_u32_u24 v6, 1152, v5')
    A('v_lshlrev_b32 v7, 2, v3'); A('v_add_u32 v7, s59, v7')
    A('v_lshl_add_u32 v6, v7, 1, v6')
    A(f'v_lshlrev_b32 v8, 2, v7'); A(f'v_add_u32 v8, {WRC_OFF}, v8')
    for i in range(3):
        A(f'buffer_load_dwordx2 a[{120+2*i}:{121+2*i}], v6, s[20:23], 0 offen offset:{32*i}', 'xr')
        A(f'buffer_load_dwordx4 a[{128+4*i}:{131+4*i}], v8, s[16:19], 0 offen offset:{64*i}', 'xr')
    if os.environ.get('PFTEST'):
        from s0 import moe_prefetch_wave
        NT_ = A.newlabel('PFT')
        A('s_cmp_lg_u32 s3, 5'); A(f's_cbranch_scc1 {NT_}')
        moe_prefetch_wave(K, os.environ.get('PFPOL', ''))
        K.other_srds()
        A.label(NT_)
        K.waitall_vm()
        K.stamp('pft0')
        K.bar()
        for _ in range(int(os.environ['PFTEST'])): A('s_sleep 100')
        K.bar()
        K.stamp('pft1')
    NOGU = A.newlabel('NOGU')
    if os.environ.get('NOGU'): A(f's_branch {NOGU}')
    A('s_cmp_lt_u32 s3, 4'); A(f's_cbranch_scc1 {NOGU}')
    A('s_cmp_ge_u32 s2, 144'); A(f's_cbranch_scc1 {NOGU}')
    A('v_lshrrev_b32 v9, 2, v0'); A('v_mul_u32_u24 v9, 9216, v9')
    A('v_and_b32 v10, 3, v0'); A('v_lshl_add_u32 v9, v10, 4, v9')
    A('s_lshl_b32 s46, s61, 6'); A('v_add_u32 v9, s46, v9')
    A('s_lshr_b32 s46, s55, 1'); A('s_and_b32 s47, s55, 1')
    A('s_mul_i32 s48, s46, 36864'); A('s_mul_i32 s49, s47, 18432'); A('s_add_u32 s48, s48, s49'); A(f's_add_u32 s48, s48, {L_GU}')
    A(f's_mul_i32 s49, s47, {18*147456}')
    if os.environ.get('PRIO'): A('s_setprio 3')
    G2 = A.newlabel('GUUP'); G3 = A.newlabel('GUDONE')
    A('s_cmp_eq_u32 s46, 1'); A(f's_cbranch_scc1 {G2}')
    for srd_, lab in ((28, None), (32, G2)):
        if lab: A.label(lab)
        for i in range(18):
            A(f's_add_u32 m0, s48, {i*1024}')
            A(f's_add_u32 s50, s49, {i*147456}')
            A(f'buffer_load_dwordx4 v9, s[{srd_}:{srd_+3}], s50 offen lds')
        if lab is None: A(f's_branch {G3}')
    A.label(G3)
    if os.environ.get('PRIO'): A('s_setprio 0')
    A.label(NOGU)
    A.vm = []
    BQ, AC = 12, 52
    A('s_lshl_b32 s46, s42, 5'); A('s_lshl_b32 s47, s55, 2'); A('s_add_u32 s46, s46, s47')
    A('s_lshl_b32 s47, s46, 10'); A(f's_add_u32 s47, s47, {OPM_OFF}'); A('v_add_u32 v9, s47, v1')
    A('s_lshl_b32 s47, s46, 8'); A(f's_add_u32 s47, s47, {OPT_OFF}'); A('v_lshlrev_b32 v10, 2, v0'); A('v_add_u32 v10, s47, v10')
    K.stamp('s3pre')
    if os.environ.get('BARPOLL'): K.bar()
    L = K.poll_begin()
    A('s_mov_b32 s46, 16384'); A('s_mov_b32 s47, 4096')
    for tt in range(2):
        for u in range(4):
            r = BQ + (tt*5+u)*4
            A(f'buffer_load_dwordx4 v[{r}:{r+3}], v9, s[16:19], {"s46" if tt else "0"} offen offset:{u*1024} sc1')
        for i in range(4):
            r = BQ + (tt*5+4)*4 + i
            A(f'buffer_load_dword v{r}, v10, s[16:19], {"s47" if tt else "0"} offen offset:{i*256} sc1')
    K.waitall_vm()
    A(f'v_max3_u32 v11, v{BQ}, v{BQ+1}, v{BQ+2}')
    for r in range(BQ+3, BQ+39, 2): A(f'v_max3_u32 v11, v11, v{r}, v{r+1}')
    A(f'v_max_u32 v11, v11, v{BQ+39}')
    A('v_cmp_eq_u32 vcc, -1, v11')
    K.poll_end(L)
    K.stamp('opoll')
    def mm(n):
        for u in range(5):
            for i in range(n):
                for tt in range(2):
                    d = AC + (i*2+tt)*4; a_ = (i*5+u)*4; b = BQ + (tt*5+u)*4
                    c = '0' if u == 0 else f'v[{d}:{d+3}]'
                    A(f'v_mfma_f32_16x16x32_bf16 v[{d}:{d+3}], a[{a_}:{a_+3}], v[{b}:{b+3}], {c}')
    A('s_mul_i32 s46, s55, 18432')
    A('v_add_u32 v11, s46, v1')
    CM = A.newlabel('S3C'); JM = A.newlabel('S3J')
    A('s_cmp_lt_u32 s3, 4'); A(f's_cbranch_scc1 {CM}')
    mm(NH)
    for i in range(NH):
        for tt in range(2):
            d = AC + (i*2+tt)*4
            A(f'ds_write_b128 v11, v[{d}:{d+3}] offset:{L_RED + (i*2+tt)*1024}', 'red')
    A.wait_lg()
    A(f's_branch {JM}')
    A.label(CM); A.hist = []
    mm(NC)
    for i in range(NC):
        for tt in range(2):
            d = AC + (i*2+tt)*4
            A(f'ds_write_b128 v11, v[{d}:{d+3}] offset:{L_RED + ((NH+i)*2+tt)*1024}', 'red')
    A.wait_lg()
    A.label(JM); A('s_nop 1')
    K.bar()
    K.stamp('s3mm')
    A('s_lshl_b32 s46, s58, 1'); A('s_add_u32 s46, s46, s56'); A('s_lshl_b32 s46, s46, 10')
    A('v_add_u32 v11, s46, v1')
    PR, HR = 12, 60
    S1, S2_, S3_ = 72, 73, 74
    def tile(i):
        for kq in range(4):
            r = PR + (i*4+kq)*4
            A(f'ds_read_b128 v[{r}:{r+3}], v11 offset:{L_RED + kq*18432 + i*2048}', ('pr', i))
    def proc(i):
        r = PR + i*16
        A.wait_lg(('pr', i))
        for b in (0, 2):
            A(f'v_pk_add_f32 v[{r+b}:{r+b+1}], v[{r+b}:{r+b+1}], v[{r+4+b}:{r+5+b}]')
            A(f'v_pk_add_f32 v[{r+8+b}:{r+9+b}], v[{r+8+b}:{r+9+b}], v[{r+12+b}:{r+13+b}]')
        A(f'v_accvgpr_read_b32 v76, a{120+2*i}'); A(f'v_accvgpr_read_b32 v77, a{121+2*i}')
        for b in (0, 2):
            A(f'v_pk_add_f32 v[{r+b}:{r+b+1}], v[{r+b}:{r+b+1}], v[{r+8+b}:{r+9+b}]')
        for b in range(4): A(f'v_accvgpr_read_b32 v{r+4+b}, a{128+4*i+b}')
        A('v_lshlrev_b32 v78, 16, v76'); A('v_and_b32 v79, 0xffff0000, v76')
        A('v_lshlrev_b32 v80, 16, v77'); A('v_and_b32 v81, 0xffff0000, v77')
        A(f'v_pk_add_f32 v[{r}:{r+1}], v[{r}:{r+1}], v[78:79]'); A(f'v_pk_add_f32 v[{r+2}:{r+3}], v[{r+2}:{r+3}], v[80:81]')
        A(f'v_cvt_pk_bf16_f32 v76, v{r}, v{r+1}'); A(f'v_cvt_pk_bf16_f32 v77, v{r+2}, v{r+3}')
        h = HR + 4*i
        A(f'v_lshlrev_b32 v{h}, 16, v76'); A(f'v_and_b32 v{h+1}, 0xffff0000, v76')
        A(f'v_lshlrev_b32 v{h+2}, 16, v77'); A(f'v_and_b32 v{h+3}, 0xffff0000, v77')
        for b in range(4):
            A(f'v_add_f32 v{S1}, v{S1}, v{h+b}')
            A(f'v_fmac_f32 v{S2_}, v{h+b}, v{h+b}')
            A(f'v_fmac_f32 v{S3_}, v{h+b}, v{r+4+b}')
    for r in (S1, S2_, S3_, 75): A(f'v_mov_b32 v{r}, 0')
    tile(0); tile(1)
    T2 = A.newlabel('NOT2')
    proc(0); proc(1)
    A('s_cmp_lg_u32 s57, 0'); A(f's_cbranch_scc1 {T2}')
    tile(2); proc(2)
    A.label(T2); A.hist = []; A('s_nop 1')
    K.xsum_g([S1, S2_, S3_], 76)
    A('s_lshl_b32 s46, s56, 2'); A('s_add_u32 s46, s46, s57'); A('s_lshl_b32 s46, s46, 8'); A(f's_add_u32 s46, s46, {L_STAT}')
    A('v_lshlrev_b32 v8, 4, v2'); A('v_add_u32 v8, s46, v8')
    A('s_mov_b64 exec, 0xffff')
    A(f'ds_write_b128 v8, v[{S1}:{S1+3}]', 'st')
    A('s_mov_b64 exec, -1')
    K.barrier()
    K.stamp('stat')
    NP = A.newlabel('NOPUB')
    A('s_cmp_lg_u32 s57, 0'); A(f's_cbranch_scc1 {NP}')
    A('s_lshl_b32 s46, s56, 10'); A(f's_add_u32 s46, s46, {L_STAT}')
    A('v_lshlrev_b32 v8, 8, v3'); A('v_lshl_add_u32 v8, v2, 4, v8'); A('v_add_u32 v8, s46, v8')
    A('ds_read_b128 v[76:79], v8', 'sr'); A.wait_lg()
    K.xsum_g([76, 77, 78], 80)
    A('s_lshl_b32 s46, s42, 1'); A('s_add_u32 s46, s46, s56'); A('s_lshl_b32 s46, s46, 2'); A('s_add_u32 s46, s46, s43')
    A('s_lshl_b32 s46, s46, 8'); A(f's_add_u32 s46, s46, {STP_OFF}')
    A('v_lshlrev_b32 v8, 4, v2'); A('v_add_u32 v8, s46, v8')
    A('v_mov_b32 v79, 0')
    A('s_mov_b64 exec, 0xffff')
    A('buffer_store_dwordx4 v[76:79], v8, s[16:19], 0 offen sc1')
    A('s_mov_b64 exec, -1')
    A.label(NP); A.hist = []
    ND = A.newlabel('NODN')
    if os.environ.get('NOGU'): A(f's_branch {ND}')
    A('s_cmp_lt_u32 s3, 4'); A(f's_cbranch_scc1 {ND}')
    A('s_cmp_ge_u32 s2, 144'); A(f's_cbranch_scc1 {ND}')
    A('s_mul_i32 s46, s61, 36864'); A('s_mul_i32 s47, s55, 9216'); A('s_add_u32 s46, s46, s47')
    A('v_add_u32 v9, s46, v1')
    for i in range(9):
        if i % 4 == 0:
            A(f's_add_u32 m0, s47, {L_DN + (i//4)*4096}'); A(f's_mov_b32 s48, {(i//4)*4096}')
        A(f'buffer_load_dwordx4 v9, s[36:39], s48 offen offset:{(i%4)*1024} lds')
    A.label(ND)
    A.vm = []
    A('s_lshl_b32 s46, s42, 1'); A('s_add_u32 s46, s46, s56'); A('s_lshl_b32 s46, s46, 10'); A(f's_add_u32 s46, s46, {STP_OFF}')
    A('v_lshlrev_b32 v8, 8, v3'); A('v_lshl_add_u32 v8, v2, 4, v8'); A('v_add_u32 v8, s46, v8')
    L = K.poll_begin()
    A('buffer_load_dwordx4 v[76:79], v8, s[16:19], 0 offen sc1')
    K.waitall_vm()
    A('v_add_f32 v80, v76, v77'); A('v_add_f32 v80, v80, v78')
    A('v_cmp_u_f32 vcc, v80, v80')
    K.poll_end(L)
    K.stamp('h3')
    K.xsum_g([76, 77, 78], 80)
    MEAN, RSTD, RV, KEY = 72, 73, 74, 75
    A('s_mov_b32 s46, 0x3AE38E39')
    A(f'v_mul_f32 v{MEAN}, s46, v76'); A('v_mul_f32 v77, s46, v77')
    A(f'v_fma_f32 v77, -v{MEAN}, v{MEAN}, v77'); A('v_add_f32 v77, 0x3727c5ac, v77')
    A(f'v_rsq_f32 v{RSTD}, v77')
    A(f'v_mul_f32 v{RV}, v78, v{RSTD}')
    A(f'v_ashrrev_i32 v76, 31, v{RV}'); A('v_or_b32 v76, 0x80000000, v76'); A(f'v_xor_b32 v76, v76, v{RV}')
    A('s_mov_b32 s46, 0xfffff800')
    A(f'v_and_or_b32 v{KEY}, v76, s46, v5')
    NR = A.newlabel('NORR')
    A('s_or_b32 s46, s43, s57'); A('s_cmp_lg_u32 s46, 0'); A(f's_cbranch_scc1 {NR}')
    A('v_lshlrev_b32 v8, 2, v5'); A(f'v_add_u32 v8, {RR_OFF}, v8')
    A('s_mov_b64 exec, 0xffff')
    A(f'buffer_store_dword v{KEY}, v8, s[16:19], 0 offen sc1')
    A('s_mov_b64 exec, -1')
    A.label(NR); A.hist = []
    LN = 12
    A(f'v_mul_f32 v76, v{MEAN}, v{RSTD}'); A('v_sub_f32 v76, 0, v76')
    for q in range(12): A(f'v_fma_f32 v{LN+q}, v{HR+q}, v{RSTD}, v76')
    KQ, OWN = 80, 84
    A('v_lshlrev_b32 v8, 4, v4'); A(f'v_add_u32 v8, {RR_OFF}, v8')
    A('s_lshl_b32 s46, s42, 7'); A(f's_add_u32 s46, s46, {RR_OFF}')
    A('v_lshlrev_b32 v9, 2, v0'); A('v_add_u32 v9, s46, v9')
    A(f'v_mov_b32 v10, {BIG}'); A('v_cmp_gt_u32 vcc, 32, v0'); A('v_cndmask_b32 v9, v10, v9, vcc')
    A.vm = []
    L = K.poll_begin()
    A(f'buffer_load_dwordx4 v[{KQ}:{KQ+3}], v8, s[16:19], 0 offen sc1')
    A(f'buffer_load_dword v{OWN}, v9, s[16:19], 0 offen sc1')
    K.waitall_vm()
    A(f'v_max3_u32 v85, v{KQ}, v{KQ+1}, v{KQ+2}'); A(f'v_max_u32 v85, v85, v{KQ+3}')
    A(f'v_max_u32 v86, v85, v{OWN}')
    A('v_cmp_eq_u32 vcc, -1, v86')
    K.poll_end(L)
    K.stamp('h4')
    for mod in ('quad_perm:[1,0,3,2]', 'quad_perm:[2,3,0,1]', 'row_half_mirror', 'row_mirror'):
        A(f'v_max_u32_dpp v85, v85, v85 {mod} row_mask:0xf bank_mask:0xf')
    A('v_mov_b32 v86, v85'); A('v_permlane16_swap_b32 v85, v86'); A('v_max_u32 v85, v85, v86')
    A('v_mov_b32 v86, v85'); A('v_permlane32_swap_b32 v85, v86'); A('v_max_u32 v85, v85, v86')
    A('s_lshl_b32 s46, s3, 2'); A(f's_add_u32 s46, s46, {L_WMAX}'); A('v_mov_b32 v86, s46')
    A('s_mov_b64 exec, 1'); A('ds_write_b32 v86, v85', 'wm'); A('s_mov_b64 exec, -1')
    K.barrier()
    A(f'v_mov_b32 v86, {L_WMAX}')
    A('ds_read_b128 v[88:91], v86', 'wm'); A('ds_read_b128 v[92:95], v86 offset:16', 'wm'); A.wait_lg()
    A('v_min3_u32 v88, v88, v89, v90'); A('v_min3_u32 v91, v91, v92, v93'); A('v_min3_u32 v88, v88, v94, v95'); A('v_min_u32 v88, v88, v91')
    TAU = 88
    A(f'v_cmp_ge_u32 vcc, v{OWN}, v{TAU}')
    A('s_mov_b64 s[50:51], vcc')
    CL = A.newlabel('CAND'); CD = A.newlabel('CANDD')
    A.label(CL)
    A('s_cmp_eq_u32 s50, 0'); A(f's_cbranch_scc1 {CD}')
    A('s_ff1_i32_b32 s46, s50')
    A('s_bitset0_b32 s50, s46')
    A(f'v_readlane_b32 s47, v{OWN}, s46')
    A('s_nop 3')
    A('s_mov_b32 s48, 0')
    for q in range(4):
        A(f'v_cmp_lt_u32 vcc, s47, v{KQ+q}')
        A('s_bcnt1_i32_b64 s49, vcc'); A('s_add_u32 s48, s48, s49')
    A('s_lshl_b32 s46, s46, 2'); A(f's_add_u32 s46, s46, {L_RANK}')
    A('v_mov_b32 v86, s46'); A('v_mov_b32 v87, s48')
    A('s_mov_b64 exec, 1'); A('ds_add_u32 v86, v87', 'rk'); A('s_mov_b64 exec, -1')
    A(f's_branch {CL}')
    A.label(CD); A.hist = []
    K.barrier()
    K.stamp('rank')
    A('s_lshl_b32 s46, s56, 6'); A(f's_add_u32 s46, s46, {L_RANK}')
    A('v_lshlrev_b32 v86, 2, v2'); A('v_add_u32 v86, s46, v86')
    A('ds_read_b32 v87, v86', 'rk'); A.wait_lg()
    RK = 87
    A(f'v_cmp_ge_u32 s[50:51], v{KEY}, v{TAU}'); A(f'v_cmp_gt_u32 vcc, 8, v{RK}'); A('s_and_b64 s[50:51], s[50:51], vcc')
    BS, PK = 24, 36
    for q in range(0, 12, 2): A(f'v_pk_add_f32 v[{BS+q}:{BS+q+1}], v[{HR+q}:{HR+q+1}], v[{LN+q}:{LN+q+1}]')
    for q in range(6): A(f'v_cvt_pk_bf16_f32 v{PK+q}, v{BS+2*q}, v{BS+2*q+1}')
    for q in range(6): A(f'v_cvt_pk_bf16_f32 v{PK+6+q}, v{LN+2*q}, v{LN+2*q+1}')
    A(f'v_mul_u32_u24 v8, 1152, v{RK}'); A('v_lshl_add_u32 v8, v7, 1, v8'); A(f'v_add_u32 v8, {XSEL_OFF}, v8')
    A(f'v_mul_u32_u24 v9, 2304, v{RK}'); A('v_lshl_add_u32 v9, v7, 2, v9'); A(f'v_add_u32 v9, {BASE_OFF}, v9')
    A(f'v_lshlrev_b32 v10, 3, v{RK}'); A(f'v_add_u32 v10, {META_OFF}, v10')
    A('v_mov_b32 v48, v5'); A(f'v_mov_b32 v49, v{RV}')
    def sel_stores(ntile):
        SK = A.newlabel('NOSEL')
        A('s_and_saveexec_b64 s[52:53], s[50:51]'); A(f's_cbranch_execz {SK}')
        for i in range(ntile):
            A(f'buffer_store_dwordx2 v[{PK+6+2*i}:{PK+7+2*i}], v8, s[16:19], 0 offen offset:{32*i} sc1')
            A(f'buffer_store_dwordx4 v[{BS+4*i}:{BS+4*i+3}], v9, s[16:19], 0 offen offset:{64*i} sc1')
        A.label(SK)
        A('s_mov_b64 exec, s[52:53]')
    def out_stores(ntile):
        A('s_andn2_b64 exec, exec, s[50:51]')
        SK2 = A.newlabel('NOOUT')
        A(f's_cbranch_execz {SK2}')
        for i in range(ntile):
            A(f'buffer_store_dwordx2 v[{PK+2*i}:{PK+2*i+1}], v6, s[24:27], 0 offen offset:{32*i}')
        A.label(SK2)
        A('s_mov_b64 exec, -1')
    S3T = A.newlabel('ST3'); SJ = A.newlabel('STJ')
    A('s_cmp_eq_u32 s57, 0'); A(f's_cbranch_scc1 {S3T}')
    sel_stores(2)
    A(f's_branch {SJ}')
    A.label(S3T)
    sel_stores(3)
    NM = A.newlabel('NOMETA')
    A('s_cmp_lg_u32 s43, 0'); A(f's_cbranch_scc1 {NM}')
    A('s_and_b64 s[52:53], s[50:51], 0xffff')
    A('s_and_saveexec_b64 s[48:49], s[52:53]'); A(f's_cbranch_execz {NM}_R')
    A('buffer_store_dwordx2 v[48:49], v10, s[16:19], 0 offen sc1')
    A.label(NM + '_R')
    A('s_mov_b64 exec, -1')
    A.label(NM)
    A.label(SJ); A.hist = []
    A('s_mov_b64 exec, -1')
    K.bar()
    O3 = A.newlabel('OUT3'); OJ = A.newlabel('OUTJ')
    A('s_cmp_eq_u32 s57, 0'); A(f's_cbranch_scc1 {O3}')
    out_stores(2)
    A(f's_branch {OJ}')
    A.label(O3)
    out_stores(3)
    A.label(OJ); A.hist = []
    K.stamp('sel')
    if stop == 'sel': return
    s5(K)

def s5(K):
    A = K.A
    A.vm = []; A.lg = []
    FIN = A.newlabel('FINAL')
    A('s_cmp_ge_u32 s2, 144'); A(f's_cbranch_scc1 {FIN}')
    A('s_mul_i32 s46, s3, 3'); A('s_lshl_b32 s47, s3, 1'); A('s_add_u32 s47, s47, 2'); A('s_cmp_lt_u32 s3, 2'); A('s_cselect_b32 s46, s46, s47')
    A('v_and_b32 v8, 7, v2'); A('v_mul_u32_u24 v8, 1152, v8'); A('v_lshl_add_u32 v8, v3, 4, v8')
    A('s_lshl_b32 s47, s46, 6'); A(f's_add_u32 s47, s47, {XSEL_OFF}'); A('v_add_u32 v8, s47, v8')
    A('v_lshrrev_b32 v9, 2, v2'); A('v_lshl_add_u32 v9, v3, 3, v9'); A('v_lshlrev_b32 v9, 6, v9')
    A('v_and_b32 v10, 3, v2'); A('v_lshl_add_u32 v9, v10, 3, v9')
    A('s_lshl_b32 s47, s46, 11'); A(f's_add_u32 s47, s47, {L_GU}'); A('v_add_u32 v9, s47, v9'); A('v_add_u32 v10, 36864, v9')
    XB = 12
    L = K.poll_begin()
    for i in range(3): A(f'buffer_load_dwordx4 v[{XB+4*i}:{XB+4*i+3}], v8, s[16:19], 0 offen offset:{64*i} sc1')
    K.waitall_vm()
    A(f'v_max3_u32 v11, v{XB}, v{XB+1}, v{XB+2}')
    for r in range(XB+3, XB+7, 2): A(f'v_max3_u32 v11, v11, v{r}, v{r+1}')
    A(f'v_max_u32 v11, v11, v{XB+7}')
    A(f'v_max3_u32 v24, v{XB+8}, v{XB+9}, v{XB+10}'); A(f'v_max_u32 v24, v24, v{XB+11}')
    A('s_cmp_lt_u32 s3, 2'); A('s_cselect_b32 s47, -1, 0'); A('v_and_b32 v24, s47, v24'); A('v_max_u32 v11, v11, v24')
    A('v_cmp_eq_u32 vcc, -1, v11')
    K.poll_end(L)
    K.stamp('xsel')
    AFG, DG = 28, 76
    def gu(nst):
        for i in range(nst):
            for ch in range(4):
                mat, ft = ch >> 1, ch & 1
                for h in range(2):
                    r = AFG + (i*4+ch)*4 + 2*h
                    A(f'ds_read_b64_tr_b16 v[{r}:{r+1}], v{9+mat} offset:{i*2048 + h*256 + ft*32}', ('gu', i))
            A.wait_lg(('gu', i))
            for ch in range(4):
                r = AFG + (i*4+ch)*4; d = DG + 4*ch
                c = '0' if i == 0 else f'v[{d}:{d+3}]'
                A(f'v_mfma_f32_16x16x32_bf16 v[{d}:{d+3}], v[{r}:{r+3}], v[{XB+4*i}:{XB+4*i+3}], {c}')
    G2 = A.newlabel('GU2'); GJ = A.newlabel('GUJ')
    A('s_cmp_ge_u32 s3, 2'); A(f's_cbranch_scc1 {G2}')
    gu(3); A('s_nop 7'); A(f's_branch {GJ}')
    A.label(G2); A.hist = []
    gu(2); A('s_nop 7')
    A.label(GJ); A.hist = []
    A('s_lshl_b32 s46, s3, 12'); A(f's_add_u32 s46, s46, {L_R2}'); A('v_add_u32 v11, s46, v1')
    for ch in range(4): A(f'ds_write_b128 v11, v[{DG+4*ch}:{DG+4*ch+3}] offset:{ch*1024}', 'r2')
    K.barrier()
    AS = A.newlabel('ASKIP')
    A('s_cmp_ge_u32 s3, 4'); A(f's_cbranch_scc1 {AS}')
    A('v_and_b32 v12, 31, v4'); A('v_lshrrev_b32 v13, 5, v4')
    A('v_lshrrev_b32 v14, 4, v12'); A('v_lshlrev_b32 v14, 10, v14')
    A('v_bfe_u32 v15, v12, 2, 2'); A('v_lshl_add_u32 v15, v15, 4, v13'); A('v_lshl_add_u32 v14, v15, 4, v14')
    A('v_and_b32 v15, 3, v12'); A('v_lshl_add_u32 v14, v15, 2, v14'); A(f'v_add_u32 v14, {L_R2}, v14')
    for w in range(8):
        A(f'ds_read_b32 v{16+w}, v14 offset:{w*4096}', 'g')
    A.wait_lg()
    for w in range(8):
        A(f'ds_read_b32 v{24+w}, v14 offset:{w*4096 + 2048}', 'u')
    for base in (16,):
        A('v_add_f32 v16, v16, v17'); A('v_add_f32 v18, v18, v19'); A('v_add_f32 v20, v20, v21'); A('v_add_f32 v22, v22, v23')
        A('v_add_f32 v16, v16, v18'); A('v_add_f32 v20, v20, v22'); A('v_add_f32 v16, v16, v20')
    A('v_mul_f32 v17, 0xbfb8aa3b, v16'); A('v_exp_f32 v17, v17'); A('v_add_f32 v17, 1.0, v17'); A('v_rcp_f32 v17, v17'); A('v_mul_f32 v16, v16, v17')
    A.wait_lg()
    A('v_add_f32 v24, v24, v25'); A('v_add_f32 v26, v26, v27'); A('v_add_f32 v28, v28, v29'); A('v_add_f32 v30, v30, v31')
    A('v_add_f32 v24, v24, v26'); A('v_add_f32 v28, v28, v30'); A('v_add_f32 v24, v24, v28')
    A('v_mul_f32 v16, v16, v24'); A('v_cvt_pk_bf16_f32 v16, v16, v16')
    A('v_lshlrev_b32 v14, 6, v13'); A('v_lshl_add_u32 v14, v12, 1, v14'); A(f'v_add_u32 v14, {L_AIMG}, v14')
    A('ds_write_b16 v14, v16', 'a'); A.wait_lg()
    A.label(AS); A.hist = []
    K.barrier()
    A('s_mul_i32 s46, s3, 5'); A('s_lshl_b32 s47, s3, 2'); A('s_add_u32 s47, s47, 4'); A('s_cmp_lt_u32 s3, 4'); A('s_cselect_b32 s46, s46, s47')
    A('v_and_b32 v8, 7, v2'); A('v_lshlrev_b32 v8, 6, v8'); A('v_lshl_add_u32 v8, v3, 4, v8'); A(f'v_add_u32 v8, {L_AIMG}, v8')
    A('ds_read_b128 v[12:15], v8', 'ab')
    A('v_lshrrev_b32 v9, 2, v2'); A('v_lshl_add_u32 v9, v3, 3, v9'); A('v_mul_u32_u24 v9, 1152, v9')
    A('v_and_b32 v10, 3, v2'); A('v_lshl_add_u32 v9, v10, 3, v9')
    A('s_lshl_b32 s47, s46, 5'); A(f's_add_u32 s47, s47, {L_DN}'); A('v_add_u32 v9, s47, v9')
    A('v_mul_u32_u24 v10, %d, v2' % (18*144*64)); A('v_lshl_add_u32 v10, v3, 3, v10')
    A('s_lshl_b32 s47, s61, 6'); A(f's_add_u32 s47, s47, {YP_OFF}'); A('v_add_u32 v10, s47, v10')
    A(f'v_mov_b32 v11, {BIG}'); A('v_cmp_gt_u32 vcc, 8, v2'); A('v_cndmask_b32 v10, v11, v10, vcc')
    def dn(n):
        for i in range(n):
            for h in range(2):
                r = 16 + 4*i + 2*h
                A(f'ds_read_b64_tr_b16 v[{r}:{r+1}], v9 offset:{i*32 + h*4*1152}', ('dn', i))
        for i in range(n):
            A.wait_lg([('dn', i), 'ab'])
            A(f'v_mfma_f32_16x16x32_bf16 v[{40+4*i}:{43+4*i}], v[{16+4*i}:{19+4*i}], v[12:15], 0')
        for i in range(n):
            d = 40 + 4*i
            A(f's_add_u32 s47, s46, {i}'); A('s_lshr_b32 s48, s47, 1'); A(f's_mul_i32 s48, s48, {144*64}')
            A('s_and_b32 s47, s47, 1'); A('s_lshl_b32 s47, s47, 5'); A('s_add_u32 s48, s48, s47')
            A(f'v_cvt_pk_bf16_f32 v{d}, v{d}, v{d+1}'); A(f'v_cvt_pk_bf16_f32 v{d+1}, v{d+2}, v{d+3}')
            A(f'buffer_store_dwordx2 v[{d}:{d+1}], v10, s[16:19], s48 offen sc1')
    D4 = A.newlabel('DN4'); DJ = A.newlabel('DNJ')
    A('s_cmp_ge_u32 s3, 4'); A(f's_cbranch_scc1 {D4}')
    lg0 = list(A.lg)
    dn(5); A(f's_branch {DJ}')
    A.label(D4); A.hist = []; A.lg = lg0
    dn(4)
    A.label(DJ); A.hist = []
    K.bar()
    K.stamp('ypub')
    A.label(FIN); A.hist = []; A.vm = []; A.lg = []
    A('s_cmp_lt_u32 s2, 112'); A('s_cbranch_scc1 K1_FIN')
    A('s_sub_u32 s46, s2, 112')
    A('s_mul_hi_u32 s47, s46, 0x%x' % ((1 << 32)//18 + 1))
    A('s_mul_i32 s48, s47, 18'); A('s_sub_u32 s48, s46, s48')
    A('v_and_b32 v8, 15, v4'); A('v_lshrrev_b32 v9, 4, v4')
    A(f's_mul_i32 s49, s46, {144*64}'); A(f's_add_u32 s49, s49, {YP_OFF}')
    A('v_lshlrev_b32 v10, 6, v9'); A('v_lshl_add_u32 v10, v8, 2, v10'); A('v_add_u32 v10, s49, v10')
    A(f'v_add_u32 v11, {4*2048}, v10'); A(f'v_mov_b32 v12, {BIG}'); A('v_cmp_gt_u32 vcc, 16, v9'); A('v_cndmask_b32 v11, v12, v11, vcc')
    A('s_mul_i32 s49, s47, 2304'); A('s_lshl_b32 s50, s48, 7'); A('s_add_u32 s49, s49, s50'); A(f's_add_u32 s49, s49, {BASE_OFF}')
    A('v_lshlrev_b32 v13, 3, v8'); A('v_add_u32 v13, s49, v13')
    A('s_lshl_b32 s49, s47, 3'); A(f's_add_u32 s49, s49, {META_OFF}'); A('v_mov_b32 v14, s49')
    L = K.poll_begin()
    A('s_mov_b32 s49, 4096')
    for i in range(4):
        A(f'buffer_load_dword v{16+i}, v10, s[16:19], {"s49" if i >= 2 else "0"} offen offset:{(i&1)*2048} sc1')
    A('buffer_load_dword v20, v11, s[16:19], 0 offen sc1')
    A('buffer_load_dwordx2 v[22:23], v13, s[16:19], 0 offen sc1')
    A('buffer_load_dwordx2 v[24:25], v14, s[16:19], 0 offen sc1')
    K.waitall_vm()
    A('v_max3_u32 v15, v16, v17, v18'); A('v_max3_u32 v15, v15, v19, v20'); A('v_max3_u32 v15, v15, v22, v23'); A('v_max_u32 v15, v15, v24')
    A('v_cmp_eq_u32 vcc, -1, v15')
    K.poll_end(L)
    K.stamp('h6')
    A('v_mov_b32 v26, 0'); A('v_mov_b32 v27, 0')
    for i in range(5):
        A(f'v_lshlrev_b32 v28, 16, v{16+i}'); A(f'v_and_b32 v29, 0xffff0000, v{16+i}')
        A('v_pk_add_f32 v[26:27], v[26:27], v[28:29]')
    K.xsum_g([26, 27], 28)
    A('s_lshl_b32 s49, s3, 7'); A(f's_add_u32 s49, s49, {L_FIN}')
    A('v_lshlrev_b32 v28, 3, v8'); A('v_add_u32 v28, s49, v28')
    A('s_mov_b64 exec, 0xffff'); A('ds_write_b64 v28, v[26:27]', 'f'); A('s_mov_b64 exec, -1')
    K.barrier()
    A('s_cmp_lg_u32 s3, 0'); A('s_cbranch_scc1 K1_FIN')
    A('v_lshlrev_b32 v28, 3, v8'); A(f'v_add_u32 v28, {L_FIN}, v28')
    for w in range(8): A(f'ds_read_b64 v[{32+2*w}:{33+2*w}], v28 offset:{w*128}', 'f')
    A.wait_lg()
    for st in (1, 2, 4):
        for w in range(0, 8, 2*st): A(f'v_pk_add_f32 v[{32+2*w}:{33+2*w}], v[{32+2*w}:{33+2*w}], v[{32+2*(w+st)}:{33+2*(w+st)}]')
    A('v_mul_f32 v26, 0xbfb8aa3b, v25'); A('v_exp_f32 v26, v26'); A('v_add_f32 v26, 1.0, v26'); A('v_rcp_f32 v26, v26')
    A('v_fma_f32 v22, v32, v26, v22'); A('v_fma_f32 v23, v33, v26, v23')
    A('v_cvt_pk_bf16_f32 v22, v22, v23')
    A('v_mul_u32_u24 v28, 1152, v24'); A('v_lshl_add_u32 v28, v8, 2, v28'); A('s_lshl_b32 s49, s48, 6'); A('v_add_u32 v28, s49, v28')
    A('s_mov_b64 exec, 0xffff')
    A('buffer_store_dword v22, v28, s[24:27], 0 offen')
    A('s_mov_b64 exec, -1')
```

```python
import os
from asmlib import *
from layout import *
BIG = 0x40000000
RAWF = os.environ.get('RAWF', '')
LOG2E = 0x3FB8AA3B

def srd(A, d, lo, hi, size):
    A(f's_mov_b32 s{d}, s{lo}'); A(f's_mov_b32 s{d+1}, s{hi}')
    A(f's_mov_b32 s{d+2}, {size}'); A(f's_mov_b32 s{d+3}, 0x20000')

def moe_prefetch_wave(K, pol):
    A = K.A
    srd(A, 20, 8, 9, 576*9216); srd(A, 24, 10, 11, 576*9216); srd(A, 28, 12, 13, 4608*1152)
    A('s_mul_i32 s46, s45, 162')
    for i in range(3):
        t = 20 + 4*i
        A(f'v_add_u32 v{t}, {64*i}, v0'); A(f'v_cmp_gt_u32 vcc, 162, v{t}'); A(f'v_add_u32 v{t}, s46, v{t}')
        A(f'v_mul_u32_u24 v{t+1}, 7282, v{t}'); A(f'v_lshrrev_b32 v{t+1}, 16, v{t+1}')
        A(f'v_mul_u32_u24 v{t+2}, 9, v{t+1}'); A(f'v_sub_u32 v{t+2}, v{t}, v{t+2}')
        A(f'v_mul_u32_u24 v{t+1}, 9216, v{t+1}'); A(f'v_lshl_add_u32 v{t+1}, v{t+2}, 7, v{t+1}')
        A('s_mul_i32 s47, s44, 1152'); A(f'v_add_u32 v{t+1}, s47, v{t+1}')
        A(f'v_lshlrev_b32 v{t+2}, 7, v{t}'); A(f's_mul_i32 s47, s44, {18*36864}'); A(f'v_add_u32 v{t+2}, s47, v{t+2}')
        A(f'v_mov_b32 v{t+3}, {BIG}')
        A(f'v_cndmask_b32 v{t+1}, v{t+3}, v{t+1}, vcc'); A(f'v_cndmask_b32 v{t+2}, v{t+3}, v{t+2}, vcc')
        A(f'buffer_load_dword a143, v{t+1}, s[20:23], 0 offen {pol}')
        A(f'buffer_load_dword a143, v{t+1}, s[24:27], 0 offen {pol}')
        A(f'buffer_load_dword a143, v{t+2}, s[28:31], 0 offen {pol}')

def s0(K, code_sym, code_kb):
    A = K.A
    JOIN = 'S0_JOIN'
    def fills():
        srd(A, 28, 6, 7, FILL_END)
        A('s_lshl_b32 s46, s2, 3'); A('s_add_u32 s46, s46, s3'); A('s_lshl_b32 s46, s46, 11'); A(f's_add_u32 s46, s46, {FILL_OFF}')
        for r in range(8, 12): A(f'v_mov_b32 v{r}, -1')
        A('v_add_u32 v12, s46, v1')
        A('buffer_store_dwordx4 v[8:11], v12, s[28:31], 0 offen sc1', 'fill')
        A('buffer_store_dwordx4 v[8:11], v12, s[28:31], 0 offen offset:1024 sc1', 'fill')
        A('s_lshl_b32 s46, s41, 4'); A('s_add_u32 s46, s46, s40'); A(f's_mul_i32 s46, s46, {KVP_ONE}')
        A('s_mul_i32 s47, s3, 960'); A('s_add_u32 s46, s46, s47'); A(f's_add_u32 s46, s46, {KVP_OFF}')
        A('v_add_u32 v12, s46, v1'); A(f'v_mov_b32 v13, {BIG}'); A('v_cmp_gt_u32 vcc, 60, v0'); A('v_cndmask_b32 v12, v13, v12, vcc')
        A('buffer_store_dwordx4 v[8:11], v12, s[28:31], 0 offen sc1', 'fill')
    A('s_cmp_eq_u32 s3, 7'); A('s_cbranch_scc1 S0_E')
    A('s_cmp_eq_u32 s3, 5'); A('s_cbranch_scc1 S0_M')
    A('s_cmp_eq_u32 s3, 4'); A('s_cbranch_scc1 S0_O')
    A('s_sub_u32 s46, s3, 1'); A('s_cmp_lt_u32 s46, 3'); A('s_cbranch_scc1 S0_W')

    A.label('S0_X'); A.vm = []; A.hist = []
    srd(A, 20, 4, 5, 2048*1152)
    A('s_lshl_b32 s46, s40, 7'); A('s_lshl_b32 s47, s41, 3'); A('s_add_u32 s46, s46, s47')
    A('s_cmp_eq_u32 s3, 6'); A('s_cselect_b32 s47, 4, 0'); A('s_add_u32 s46, s46, s47')
    A('v_add_u32 v14, s46, v3')
    A('v_mul_u32_u24 v15, 1152, v14'); A('v_lshl_add_u32 v15, v2, 4, v15')
    A(f'v_mov_b32 v13, {BIG}'); A('v_cmp_gt_u32 vcc, 8, v2'); A('v_cndmask_b32 v36, v13, v15, vcc')
    X = 16
    for i in range(4):
        A(f'buffer_load_dwordx4 v[{X+4*i}:{X+4*i+3}], v15, s[20:23], 0 offen offset:{i*256} {RAWF}', 'x')
    A(f'buffer_load_dwordx4 v[{X+16}:{X+19}], v36, s[20:23], 0 offen offset:1024 {RAWF}', 'x')
    A('v_lshrrev_b32 v37, 4, v14'); A('v_mul_u32_u24 v37, 18432, v37')
    A('v_and_b32 v14, 15, v14'); A('v_lshl_add_u32 v37, v14, 4, v37')
    A('v_lshrrev_b32 v14, 2, v2'); A('v_lshl_add_u32 v37, v14, 10, v37')
    A('v_and_b32 v14, 3, v2'); A('v_lshl_add_u32 v37, v14, 8, v37')
    A('v_add_u32 v38, 16384, v37'); A('v_cmp_gt_u32 vcc, 8, v2'); A('v_cndmask_b32 v38, v13, v38, vcc')
    A('s_mov_b32 s46, 0x3f803f80')
    for r in range(40, 48): A(f'v_mov_b32 v{r}, 0')
    K.stamp('s0iss')
    A.wait_vm('x')
    K.stamp('s0ld')
    for k in range(20):
        A(f'v_dot2c_f32_bf16 v{40+(k&3)}, s46, v{X+k}')
        A(f'v_dot2c_f32_bf16 v{44+(k&3)}, v{X+k}, v{X+k}')
    A('v_add_f32 v40, v40, v41'); A('v_add_f32 v42, v42, v43'); A('v_add_f32 v44, v44, v45'); A('v_add_f32 v46, v46, v47')
    A('v_add_f32 v40, v40, v42'); A('v_add_f32 v44, v44, v46')
    for mod in ('quad_perm:[1,0,3,2]', 'quad_perm:[2,3,0,1]', 'row_half_mirror', 'row_mirror'):
        A(f'v_add_f32_dpp v40, v40, v40 {mod} row_mask:0xf bank_mask:0xf')
        A(f'v_add_f32_dpp v44, v44, v44 {mod} row_mask:0xf bank_mask:0xf')
    A('s_mov_b32 s46, 0x3AE38E39')
    A('v_mul_f32 v40, s46, v40'); A('v_mul_f32 v44, s46, v44')
    A('v_fma_f32 v44, -v40, v40, v44'); A('v_add_f32 v44, 0x3727c5ac, v44'); A('v_rsq_f32 v44, v44')
    A('v_mul_f32 v40, v40, v44'); A('v_sub_f32 v40, 0, v40')
    A('v_mov_b32 v45, v44'); A('v_mov_b32 v41, v40')
    for i in range(5):
        for k in range(4):
            r = X + 4*i + k
            A(f'v_lshlrev_b32 v48, 16, v{r}'); A(f'v_and_b32 v49, 0xffff0000, v{r}')
            A('v_pk_fma_f32 v[48:49], v[48:49], v[44:45], v[40:41]')
            A(f'v_cvt_pk_bf16_f32 v{r}, v48, v49')
        if i < 4:
            A(f's_mov_b32 s46, {i*4096}')
            A(f'buffer_store_dwordx4 v[{X+4*i}:{X+4*i+3}], v37, s[16:19], s46 offen sc1', 'st')
        else:
            A(f'buffer_store_dwordx4 v[{X+16}:{X+19}], v38, s[16:19], 0 offen sc1', 'st')
    A(f's_branch {JOIN}')

    A.label('S0_W'); A.vm = []; A.hist = []
    A('s_sub_u32 s48, s3, 1'); A('s_lshl_b32 s48, s48, 4'); A('s_add_u32 s48, s48, s40')
    A('s_cmp_ge_u32 s48, 36'); A('s_cbranch_scc1 S0_M')
    srd(A, 24, 34, 35, 32*648)
    srd(A, 20, 32, 33, 576*3456)
    PH = 16
    A('v_mul_u32_u24 v14, 36, v2'); A('v_lshl_add_u32 v14, v3, 4, v14')
    A('s_mul_i32 s46, s41, 1296'); A('v_add_u32 v14, s46, v14')
    A(f'v_mov_b32 v13, {BIG}'); A('v_add_u32 v15, 576, v14'); A('v_cmp_gt_u32 vcc, 2, v2'); A('v_cndmask_b32 v15, v13, v15, vcc')
    for hd in range(2):
        A(f'buffer_load_dwordx4 v[{PH+8*hd}:{PH+8*hd+3}], v14, s[24:27], 0 offen offset:{hd*648} {RAWF}', 'b')
        A(f'buffer_load_dwordx4 v[{PH+8*hd+4}:{PH+8*hd+7}], v15, s[24:27], 0 offen offset:{hd*648} {RAWF}', 'b')
    A('s_lshl_b32 s46, s48, 4')
    A('v_add_u32 v14, s46, v2'); A('v_mul_u32_u24 v14, 3456, v14')
    A('s_mul_i32 s46, s41, 72'); A('v_add_u32 v14, s46, v14')
    A('v_lshl_add_u32 v15, v3, 3, v14')
    A('v_lshl_add_u32 v14, v3, 4, v14')
    AF = 32
    for sec in range(2):
        for hd in range(2):
            r = AF + (sec*2+hd)*4
            A(f'buffer_load_dwordx2 v[{r}:{r+1}], v15, s[20:23], 0 offen offset:{sec*1152+hd*36} {RAWF}', 'a')
            A(f'buffer_load_dwordx2 v[{r+2}:{r+3}], v15, s[20:23], 0 offen offset:{sec*1152+hd*36+32} {RAWF}', 'a')
    for hd in range(2):
        r = AF + (4+hd)*4
        A(f'buffer_load_dwordx4 v[{r}:{r+3}], v14, s[20:23], 0 offen offset:{2*1152+hd*36} {RAWF}', 'a')
    K.stamp('s0iss')
    ID, BF = 56, 64
    A('v_lshlrev_b32 v97, 3, v3'); A('v_sub_u32 v97, v2, v97')
    A('v_mov_b32 v98, 100'); A('v_cmp_gt_u32 vcc, 9, v2'); A('v_cndmask_b32 v97, v98, v97, vcc')
    A('v_mov_b32 v98, 0x3f80'); A('v_mov_b32 v99, 0x3f800000'); A('v_mov_b32 v100, 0')
    for p in range(2):
        if p == 1: A('v_add_u32 v97, 9, v97')
        for m in range(4):
            r = ID + p*4 + m
            A(f'v_cmp_eq_u32 vcc, {2*m}, v97'); A(f'v_cndmask_b32 v{r}, v100, v98, vcc')
            A(f'v_cmp_eq_u32 vcc, {2*m+1}, v97'); A(f'v_cndmask_b32 v{r}, v{r}, v99, vcc')
    A('s_lshr_b32 s46, s48, 1'); A('s_mul_i32 s47, s46, 5120')
    A('s_lshl_b32 s49, s46, 11'); A('s_add_u32 s49, s49, %d' % (92160 - 5*1024))
    A(f's_mul_i32 s50, s41, {WP_J}'); A(f's_add_u32 s50, s50, {WP_OFF}')
    A('s_and_b32 s51, s48, 1'); A('s_lshl_b32 s51, s51, 9'); A('s_add_u32 s50, s50, s51')
    A('v_lshrrev_b32 v104, 1, v3'); A('v_lshlrev_b32 v104, 8, v104'); A('v_and_b32 v105, 1, v3'); A('v_lshl_add_u32 v104, v105, 3, v104')
    A('v_add_u32 v104, s50, v104')
    for base, r in ((0, 101), (9, 102), (18, 103)):
        A(f'v_add_u32 v105, {base}, v2'); A('v_lshrrev_b32 v106, 2, v105'); A('v_and_b32 v105, 3, v105')
        A('v_lshlrev_b32 v105, 4, v105'); A('v_lshl_add_u32 v105, v106, 10, v105')
        A('v_mov_b32 v107, s47'); A('v_mov_b32 v108, s49')
        A('v_cmp_gt_u32 vcc, 5, v106'); A('v_cndmask_b32 v107, v108, v107, vcc')
        A('v_add3_u32 v105, v105, v107, v104')
        A('v_cmp_gt_u32 vcc, 9, v2'); A(f'v_cndmask_b32 v{r}, v13, v105, vcc')
    A('s_mov_b32 s46, 0x%08x' % LOG2E); A('v_mov_b32 v110, s46')
    A.wait_vm('b')
    T0 = 80
    for hd in range(2):
        for p in range(2):
            for t in range(2):
                d = T0 + (p*2+t)*4
                A(f'v_mfma_f32_16x16x32_bf16 v[{d}:{d+3}], v[{PH+8*hd+4*t}:{PH+8*hd+4*t+3}], v[{ID+4*p}:{ID+4*p+3}], 0')
        for p in range(2):
            b = BF + (hd*2+p)*4
            for t in range(2):
                d = T0 + (p*2+t)*4
                A(f'v_cvt_pk_bf16_f32 v{b+2*t}, v{d}, v{d+1}'); A(f'v_cvt_pk_bf16_f32 v{b+2*t+1}, v{d+2}, v{d+3}')
    A.wait_vm('a')
    K.stamp('s0ld')
    order = [(sec, hd, p) for sec in (1, 2, 0) for hd in range(2) for p in range(2)]
    for grp in range(3):
        part = order[4*grp:4*grp+4]
        for t, (sec, hd, p) in enumerate(part):
            d = T0 + 4*t if grp != 1 else 16 + 4*t
            af = AF + (sec*2+hd)*4
            bf = (ID + p*4) if sec == 2 else BF + (hd*2+p)*4
            A(f'v_mfma_f32_16x16x32_bf16 v[{d}:{d+3}], v[{af}:{af+3}], v[{bf}:{bf+3}], 0')
        for t, (sec, hd, p) in enumerate(part):
            d = T0 + 4*t if grp != 1 else 16 + 4*t
            ar = {1: 101, 2: 102, 0: 103}[sec]
            if sec != 2:
                A(f'v_pk_mul_f32 v[{d}:{d+1}], v[{d}:{d+1}], v[110:111] op_sel_hi:[1,0]')
                A(f'v_pk_mul_f32 v[{d+2}:{d+3}], v[{d+2}:{d+3}], v[110:111] op_sel_hi:[1,0]')
            A(f'v_cvt_pk_bf16_f32 v{d}, v{d}, v{d+1}'); A(f'v_cvt_pk_bf16_f32 v{d+1}, v{d+2}, v{d+3}')
            A(f'buffer_store_dwordx2 v[{d}:{d+1}], v{ar}, s[16:19], 0 offen offset:{64*(2*hd+p)} sc1', 'st')
    A(f's_branch {JOIN}')

    A.label('S0_O'); A.vm = []; A.hist = []
    A('s_cmp_ge_u32 s2, 72'); A('s_cbranch_scc1 S0_M')
    srd(A, 20, 36, 37, 576*1152)
    A('s_and_b32 s48, s2, 3'); A('s_lshr_b32 s49, s2, 2')
    A('v_lshrrev_b32 v14, 3, v2'); A('s_lshl_b32 s46, s48, 3'); A('v_add_u32 v14, s46, v14'); A('v_mul_u32_u24 v14, 18, v14')
    A('v_bfe_u32 v15, v2, 2, 1'); A('v_mad_u32_u24 v14, v15, 9, v14')
    A('v_and_b32 v15, 3, v2')
    A('v_mad_u32_u24 v12, v15, 36, v14'); A('v_add_u32 v12, 8, v12')
    A('v_add_u32 v14, v14, v15')
    A('v_mul_u32_u24 v14, 1152, v14'); A('v_mul_u32_u24 v12, 1152, v12')
    A('s_lshl_b32 s46, s49, 6'); A('v_lshl_add_u32 v15, v3, 4, s46')
    A('v_add_u32 v14, v14, v15'); A('v_add_u32 v12, v12, v15')
    OA = 16
    for u in range(4):
        for h in range(2):
            A(f's_mov_b32 s{50+h}, {(36*u+4*h)*1152}')
            r = OA + (u*2+h)*4
            A(f'buffer_load_dwordx4 v[{r}:{r+3}], v14, s[20:23], s{50+h} offen {RAWF}', 'o')
    A(f'buffer_load_dwordx4 v[{OA+32}:{OA+35}], v12, s[20:23], 0 offen {RAWF}', 'o')
    K.stamp('s0iss')
    OI = 52
    A('v_lshlrev_b32 v97, 3, v3'); A('v_sub_u32 v97, v2, v97')
    A('v_mov_b32 v98, 0x3f80'); A('v_mov_b32 v99, 0x3f800000'); A('v_mov_b32 v100, 0')
    for t in range(2):
        if t == 1: A('v_add_u32 v97, 16, v97')
        for m in range(4):
            r = OI + t*4 + m
            A(f'v_cmp_eq_u32 vcc, {2*m}, v97'); A(f'v_cndmask_b32 v{r}, v100, v98, vcc')
            A(f'v_cmp_eq_u32 vcc, {2*m+1}, v97'); A(f'v_cndmask_b32 v{r}, v{r}, v99, vcc')
    for t in range(2):
        A('s_lshl_b32 s46, s49, 1'); A(f's_add_u32 s46, s46, {t}')
        A('s_mul_hi_u32 s47, s46, 0x%x' % ((1 << 32)//9 + 1)); A('s_mul_i32 s50, s47, 9'); A('s_sub_u32 s50, s46, s50')
        A('s_lshl_b32 s47, s47, 2'); A('s_add_u32 s47, s47, s48'); A('s_mul_i32 s47, s47, 9'); A('s_add_u32 s47, s47, s50')
        A('s_mul_i32 s47, s47, 5120'); A(f's_add_u32 s47, s47, {WOP_OFF}')
        A(f'v_add_u32 v{10+t}, s47, v1')
    A.wait_vm('o')
    K.stamp('s0ld')
    for t in range(2):
        D = 60
        for q in range(9):
            A(f'v_mfma_f32_16x16x32_bf16 v[{D+4*q}:{D+4*q+3}], v[{OA+4*q}:{OA+4*q+3}], v[{OI+4*t}:{OI+4*t+3}], 0')
        for u in range(4):
            x_, y_ = D + 8*u, D + 8*u + 4
            A(f'v_cvt_pk_bf16_f32 v{x_}, v{x_}, v{x_+1}'); A(f'v_cvt_pk_bf16_f32 v{x_+1}, v{x_+2}, v{x_+3}')
            A(f'v_cvt_pk_bf16_f32 v{x_+2}, v{y_}, v{y_+1}'); A(f'v_cvt_pk_bf16_f32 v{x_+3}, v{y_+2}, v{y_+3}')
            A(f'buffer_store_dwordx4 v[{x_}:{x_+3}], v{10+t}, s[16:19], 0 offen offset:{u*1024} sc1', 'st')
        z = D + 32
        for i in range(4): A(f'v_cvt_pk_bf16_f32 v{z+i}, v{z+i}, 0')
        A('s_mov_b32 s46, 4096')
        A(f'buffer_store_dwordx4 v[{z}:{z+3}], v{10+t}, s[16:19], s46 offen sc1', 'st')
        A('s_nop 1')
    A(f's_branch {JOIN}')

    A.label('S0_E'); A.vm = []; A.hist = []
    A(f'v_mov_b32 v14, {EPOCH_OFF}')
    A('buffer_load_dword v20, v14, s[16:19], 0 offen sc1', 'ep')
    A.wait_vm('ep')
    A('v_add_u32 v20, 1, v20')
    A('v_readfirstlane_b32 s63, v20')
    A(f's_branch {JOIN}')


    A.label('S0_M'); A.vm = []; A.hist = []
    A('s_cmp_lg_u32 s2, 200'); A(f's_cbranch_scc1 {JOIN}')
    A('s_cmp_lg_u32 s3, 5'); A(f's_cbranch_scc1 {JOIN}')
    srd(A, 20, 38, 39, 1152)
    A('v_lshlrev_b32 v14, 2, v0')
    for i in range(5): A(f'buffer_load_dword v{16+i}, v14, s[20:23], 0 offen offset:{i*256}', 'm')
    A('s_mov_b32 s46, 0x3f803f80'); A('v_mov_b32 v24, 0')
    A.wait_vm('m')
    for i in range(5): A(f'v_dot2c_f32_bf16 v24, s46, v{16+i}')
    for mod in ('quad_perm:[1,0,3,2]', 'quad_perm:[2,3,0,1]', 'row_half_mirror', 'row_mirror'):
        A(f'v_add_f32_dpp v24, v24, v24 {mod} row_mask:0xf bank_mask:0xf')
    A('v_mov_b32 v25, v24'); A('v_permlane16_swap_b32 v24, v25'); A('v_add_f32 v24, v24, v25')
    A('v_mov_b32 v25, v24'); A('v_permlane32_swap_b32 v24, v25'); A('v_add_f32 v24, v24, v25')
    A('s_mov_b32 s46, 0x3AE38E39'); A('v_mul_f32 v24, s46, v24')
    A('v_lshlrev_b32 v14, 3, v0'); A(f'v_add_u32 v14, {WRC_OFF}, v14')
    for i in range(5):
        A(f'v_lshlrev_b32 v26, 16, v{16+i}'); A(f'v_and_b32 v27, 0xffff0000, v{16+i}')
        A('v_sub_f32 v26, v26, v24'); A('v_sub_f32 v27, v27, v24')
        A(f'buffer_store_dwordx2 v[26:27], v14, s[16:19], 0 offen offset:{i*512} sc1', 'st')
        A('s_nop 1')

    A.label(JOIN); A.hist = []
    K.stamp('s0work')
    fills()
    K.waitall_vm()
    K.stamp('s0ack')
    if os.environ.get('PFS0'):
        NOP5 = A.newlabel('S0_NOPF')
        A('s_cmp_lg_u32 s3, 5'); A(f's_cbranch_scc1 {NOP5}')
        moe_prefetch_wave(K, os.environ.get('PFPOL', ''))
        A.label(NOP5); A.hist = []
    A('s_barrier')
    NPOLL = A.newlabel('S0_NP')
    A('s_cmp_lg_u32 s3, 7'); A(f's_cbranch_scc1 {NPOLL}')
    A('s_lshl_b32 s46, s2, 7'); A(f's_add_u32 s46, s46, {FLAG_OFF}')
    A('v_mov_b32 v14, s46'); A('v_mov_b32 v15, s63')
    A('s_mov_b64 exec, 1')
    A('buffer_store_dword v15, v14, s[16:19], 0 offen sc1')
    A('s_mov_b64 exec, -1')
    A('v_and_b32 v16, 15, v0'); A('v_bfe_u32 v17, v0, 4, 1')
    A('v_mov_b32 v18, s40'); A('v_mov_b32 v19, s41')
    A('v_cmp_eq_u32 vcc, 0, v17')
    A('v_cndmask_b32 v18, v16, v18, vcc')
    A('v_cndmask_b32 v19, v19, v16, vcc')
    A('v_and_b32 v20, 3, v18'); A('v_lshlrev_b32 v20, 3, v20'); A('v_and_b32 v21, 7, v19'); A('v_or_b32 v20, v20, v21'); A('v_lshlrev_b32 v20, 3, v20')
    A('v_lshrrev_b32 v21, 2, v18'); A('v_lshl_or_b32 v20, v21, 1, v20'); A('v_lshrrev_b32 v21, 3, v19'); A('v_or_b32 v20, v20, v21')
    A('v_lshlrev_b32 v20, 7, v20'); A(f'v_add_u32 v20, {FLAG_OFF}, v20')
    L = K.poll_begin()
    A('buffer_load_dword v21, v20, s[16:19], 0 offen sc1')
    K.waitall_vm()
    A('v_cmp_ne_u32 vcc, s63, v21')
    K.poll_end(L)
    A.label(NPOLL); A.hist = []
    A('s_barrier')
    K.stamp('s0flag')
```

```python
import os
from asmlib import *
from layout import *
from s0 import srd, BIG, s0, group_flag_addr

SPIN = 3000
LOG2E = 0x3FB8AA3B

L_W    = 0
L_IMG  = 0
L_RED  = 0
L_GU   = 73728
L_DN   = 0
L_R2   = 36864
L_KVT  = 147456
L_ZERO = L_KVT + 48*96
L_STAT = L_ZERO + 64
L_WMAX = L_STAT + 2048
L_RANK = L_WMAX + 64
L_AIMG = L_RANK + 128
L_FIN  = L_AIMG + 512
L_TOK  = L_FIN + 1024
LDS_BYTES = 163840
assert L_TOK + 512 <= LDS_BYTES

NV = 112
ACC = 16
def acc(T, tt): return ACC + (T*2+tt)*4
WF = 72
NCT_H = 6

class K1:
    def __init__(self, stop=None, prof=False):
        self.A = Asm(); self.stop = stop; self.prof = prof; self.stamps = []
        self.PF = int(os.environ.get('PF', 5))
        self.nbar = 0

    def stamp(self, name):
        if not self.prof: return
        if name in os.environ.get('NOSTAMP', '').split(','): return
        if name in self.stamps: i = self.stamps.index(name)
        else:
            i = len(self.stamps); assert i < 19
            self.stamps.append(name)
        op = 's_memtime' if os.environ.get('CYC') else 's_memrealtime'
        self.A(f'{op} s[{64+2*i}:{65+2*i}]')
    def poll_begin(self):
        A = self.A
        L = A.newlabel('POLL')
        A(f's_mov_b32 s62, {SPIN}')
        A.label(L)
        return L
    def poll_end(self, L):
        A = self.A
        D = A.newlabel('PDONE')
        A(f's_cbranch_vccz {D}')
        A('s_sub_u32 s62, s62, 1')
        A(f's_cbranch_scc1 {D}')
        A('s_sleep %s' % os.environ.get('SLEEP', '1'))
        A(f's_branch {L}')
        A.label(D)
    def waitall_vm(self):
        self.A('s_waitcnt vmcnt(0)'); self.A.vm = []
    def bar(self):
        self.A('s_barrier'); self.nbar += 1
    def barrier(self):
        self.A.wait_lg(); self.bar()
    def xsum_g(self, regs, tmp):
        A = self.A
        for swap in ('v_permlane16_swap_b32', 'v_permlane32_swap_b32'):
            for i, r in enumerate(regs): A(f'v_mov_b32 v{tmp+i}, v{r}')
            for i, r in enumerate(regs): A(f'{swap} v{r}, v{tmp+i}')
            for i, r in enumerate(regs): A(f'v_add_f32 v{r}, v{r}, v{tmp+i}')

    def prologue(self):
        A = self.A
        A('s_cmp_ge_u32 s2, 256'); A('s_cbranch_scc1 K1_END')
        A('s_getpc_b64 s[46:47]')
        A('v_lshlrev_b32 v5, 4, v0')
        A('global_load_dwordx4 a[140:143], v5, s[46:47]', 'pf')
        A('s_load_dwordx2 s[6:7], s[0:1], 88')
        A('s_load_dwordx2 s[4:5], s[0:1], 0')
        A('s_load_dwordx4 s[32:35], s[0:1], 8')
        A('s_load_dwordx2 s[36:37], s[0:1], 24')
        A('s_load_dwordx2 s[38:39], s[0:1], 40')
        A('s_load_dwordx4 s[8:11], s[0:1], 48')
        A('s_load_dwordx4 s[12:15], s[0:1], 64')
        npieces = int(os.environ.get('CODE4K', 7)) - 2
        A('s_lshr_b32 s48, s2, 3'); A(f's_mul_hi_u32 s49, s48, {(1 << 32)//npieces + 1}'); A(f's_mul_i32 s49, s49, {npieces}')
        A('s_sub_u32 s48, s48, s49'); A('s_add_u32 s48, s48, 2'); A('s_lshl_b32 s48, s48, 12')
        A('v_and_b32 v5, 0xfff, v5'); A('v_add_u32 v5, s48, v5')
        A('global_load_dwordx4 a[136:139], v5, s[46:47]', 'pf')
        A('v_mov_b32 v4, v0')
        A('v_lshrrev_b32 v1, 6, v0')
        A('v_and_b32 v0, 63, v0')
        A('v_readfirstlane_b32 s3, v1')
        A('v_lshlrev_b32 v1, 4, v0')
        A('s_and_b32 s44, s2, 7'); A('s_lshr_b32 s45, s2, 3')
        A('s_lshr_b32 s40, s44, 1'); A('s_lshl_b32 s40, s40, 2'); A('s_lshr_b32 s46, s45, 3'); A('s_add_u32 s40, s40, s46')
        A('s_and_b32 s41, s44, 1'); A('s_lshl_b32 s41, s41, 3'); A('s_and_b32 s46, s45, 7'); A('s_add_u32 s41, s41, s46')
        A('s_lshl_b32 s42, s40, 2'); A('s_lshr_b32 s46, s41, 2'); A('s_add_u32 s42, s42, s46')
        A('s_and_b32 s43, s41, 3')
        A('s_and_b32 s55, s3, 3')
        A('v_and_b32 v2, 15, v0')
        A('v_lshrrev_b32 v3, 4, v0')
        A('s_waitcnt lgkmcnt(0)')
        srd(A, 16, 6, 7, WS_USED)

    def other_srds(self):
        A = self.A
        srd(A, 20, 4, 5, 2048*1152)
        srd(A, 24, 14, 15, 2048*1152)
        srd(A, 28, 8, 9, 576*9216)
        srd(A, 32, 10, 11, 576*9216)
        srd(A, 36, 12, 13, 4608*1152)

    steps_for_chunk = [[0,1,2],[3,4,5],[6,7,8],[9,10,11],[12,13,14,15],[16,17]]

    def c_gemm1(self):
        A = self.A
        A('s_lshl_b32 s46, s40, 3'); A('s_lshl_b32 s47, s55, 1'); A('s_add_u32 s46, s46, s47')
        A('s_mul_i32 s46, s46, 18432')
        A('v_add_u32 v5, s46, v1')
        def xload1(s_, tt):
            A(f's_mov_b32 s49, {tt*18432 + (s_//4)*4096}')
            r = (tt*18+s_)*4
            A(f'buffer_load_dwordx4 a[{r}:{r+3}], v5, s[16:19], s49 offen offset:{(s_%4)*1024}', ('x', s_))
        todo = [(s_, tt) for s_ in range(18) for tt in range(2)]
        P = self.PF
        def issue_upto(step, maxn=None):
            n = 0
            while todo and todo[0][0] <= step and (maxn is None or n < maxn):
                xload1(*todo.pop(0)); n += 1
        issue_upto(P - 1)
        self.other_srds()
        A('v_add_u32 v6, 0x10000, v1')
        def wread(frag, dst, tag):
            if frag < 64: A(f'ds_read_b128 v[{dst}:{dst+3}], v1 offset:{frag*1024}', tag)
            else: A(f'ds_read_b128 v[{dst}:{dst+3}], v6 offset:{(frag-64)*1024}', tag)
        self.wread = wread
        chunk_of = {}
        for c, ss in enumerate(self.steps_for_chunk):
            for s_ in ss: chunk_of[s_] = c
        fill = self.c_setup_list()
        self.stamp('issued')
        self.bar()
        self.stamp('chunk0')
        for T in range(5): wread(T, WF + 4*T, ('r', 0, T))
        for s_ in range(18):
            buf = WF + (s_ & 1)*20; nbuf = WF + ((s_+1) & 1)*20
            for T in range(5):
                A.wait_lg(('r', s_, T))
                if T == 0: A.wait_vm(('x', s_))
                for tt in range(2):
                    d = acc(T, tt); x = (tt*18+s_)*4
                    c = '0' if s_ == 0 else f'v[{d}:{d+3}]'
                    A(f'v_mfma_f32_16x16x32_bf16 v[{d}:{d+3}], v[{buf+4*T}:{buf+4*T+3}], a[{x}:{x+3}], {c}')
                if s_ + 1 < 18:
                    if T == 0 and chunk_of[s_+1] != chunk_of[s_]: self.bar()
                    wread((s_+1)*5+T, nbuf + 4*T, ('r', s_+1, T))
                if T in (1, 3): issue_upto(s_ + P, 1)
                if T in (2, 4) and fill and s_ >= 1: A(fill.pop(0))
            issue_upto(s_ + P)
        for f in fill: A(f)

    def c_setup_list(self):
        f = []
        f += ['v_and_b32 v14, 1, v3', 'v_cmp_eq_u32 vcc, 0, v14', 'v_mov_b32 v15, 1.0', 's_nop 0', 'v_cndmask_b32 v7, 0, v15, vcc']
        f += ['s_lshl_b32 s46, s55, 5', 'v_add_u32 v8, s46, v2', 'v_mul_u32_u24 v8, 288, v8', 'v_lshl_add_u32 v8, v3, 6, v8']
        return f

    def c_setup2(self):
        A = self.A
        t0, t1, t2, t3, t4 = 100, 101, 102, 103, 104
        A(f'v_lshrrev_b32 v{t0}, 2, v2')
        A(f'v_and_b32 v{t1}, 3, v2')
        A(f'v_lshrrev_b32 v{t2}, 1, v{t0}')
        A(f'v_and_b32 v{t0}, 1, v{t0}')
        A(f'v_lshrrev_b32 v{t3}, 1, v3')
        A(f'v_cmp_eq_u32 s[52:53], v{t2}, v{t3}')
        A(f'v_mul_u32_u24 v{t2}, 24, v{t2}')
        A(f'v_and_b32 v{t3}, 1, v3'); A(f'v_mul_u32_u24 v{t3}, 48, v{t3}')
        A(f'v_add_u32 v{t3}, {L_KVT}, v{t3}')
        A(f'v_mov_b32 v{t4}, {L_ZERO}')
        for To in range(3):
            A(f'v_add_u32 v14, {4*To}, v{t1}')
            A(f'v_mad_u32_u24 v15, v{t0}, 12, v14')
            A('v_cmp_eq_u32 vcc, 9, v14'); A('v_cndmask_b32 v15, v15, v14, vcc')
            A(f'v_add_u32 v15, v{t2}, v15'); A('v_mul_u32_u24 v15, 96, v15'); A(f'v_add_u32 v15, v15, v{t3}')
            A('v_cmp_ge_u32 vcc, 9, v14'); A('s_and_b64 vcc, vcc, s[52:53]')
            A(f'v_cndmask_b32 v{9+To}, v{t4}, v15, vcc')
        A('s_lshl_b32 s46, s40, 3'); A('s_lshl_b32 s47, s55, 1'); A('s_add_u32 s46, s46, s47')
        A('s_lshl_b32 s46, s46, 4'); A('s_add_u32 s46, s46, s41')
        A('s_lshl_b32 s47, s46, 10'); A(f's_add_u32 s47, s47, {OPM_OFF}'); A('v_add_u32 v12, s47, v1')
        A('s_lshl_b32 s47, s46, 8'); A(f's_add_u32 s47, s47, {OPT_OFF}'); A('v_lshlrev_b32 v13, 2, v0'); A('v_add_u32 v13, s47, v13')

    def c_part2(self):
        A = self.A; wread = self.wread
        for T in range(2): wread(90 + T, WF + 4*T, ('r2', 0, T))
        for s_ in range(18):
            buf = WF + (s_ & 1)*8; nbuf = WF + ((s_+1) & 1)*8
            for T in range(2):
                A.wait_lg(('r2', s_, T))
                for tt in range(2):
                    d = acc(5+T, tt); x = (tt*18+s_)*4
                    c = '0' if s_ == 0 else f'v[{d}:{d+3}]'
                    A(f'v_mfma_f32_16x16x32_bf16 v[{d}:{d+3}], v[{buf+4*T}:{buf+4*T+3}], a[{x}:{x+3}], {c}')
                if s_ + 1 < 18: wread(90 + (s_+1)*2+T, nbuf + 4*T, ('r2', s_+1, T))

    def softmax9(self, r, out, t0):
        A = self.A
        ep = [t0 + 2*i for i in range(9)]; em = [t0 + 2*i + 1 for i in range(9)]
        mx, mn, t1, t2 = t0+18, t0+19, t0+20, t0+21
        assert t0 % 2 == 0
        A(f'v_max3_f32 v{mx}, v{r[0]}, v{r[1]}, v{r[2]}'); A(f'v_min3_f32 v{mn}, v{r[0]}, v{r[1]}, v{r[2]}')
        A(f'v_max3_f32 v{t1}, v{r[3]}, v{r[4]}, v{r[5]}'); A(f'v_min3_f32 v{t2}, v{r[3]}, v{r[4]}, v{r[5]}')
        A(f'v_max3_f32 v{mx}, v{mx}, v{r[6]}, v{r[7]}'); A(f'v_min3_f32 v{mn}, v{mn}, v{r[6]}, v{r[7]}')
        A(f'v_max3_f32 v{mx}, v{mx}, v{t1}, v{r[8]}'); A(f'v_min3_f32 v{mn}, v{mn}, v{t2}, v{r[8]}')
        A(f'v_mov_b32 v{t1}, v{mx}'); A(f'v_mov_b32 v{t2}, v{mn}')
        A(f'v_permlane16_swap_b32 v{mx}, v{t1}'); A(f'v_permlane16_swap_b32 v{mn}, v{t2}')
        A(f'v_max_f32 v{mx}, v{mx}, v{t1}'); A(f'v_min_f32 v{mn}, v{mn}, v{t2}')
        for i in range(9):
            A(f'v_sub_f32 v{ep[i]}, v{r[i]}, v{mx}'); A(f'v_sub_f32 v{em[i]}, v{mn}, v{r[i]}')
        for i in range(9):
            A(f'v_exp_f32 v{ep[i]}, v{ep[i]}'); A(f'v_exp_f32 v{em[i]}, v{em[i]}')
        A(f'v_pk_add_f32 v[{mx}:{mn}], v[{ep[0]}:{em[0]}], v[{ep[1]}:{em[1]}]')
        A(f'v_pk_add_f32 v[{t1}:{t2}], v[{ep[2]}:{em[2]}], v[{ep[3]}:{em[3]}]')
        for i in (4, 6):
            A(f'v_pk_add_f32 v[{mx}:{mn}], v[{mx}:{mn}], v[{ep[i]}:{em[i]}]')
            A(f'v_pk_add_f32 v[{t1}:{t2}], v[{t1}:{t2}], v[{ep[i+1]}:{em[i+1]}]')
        A(f'v_pk_add_f32 v[{mx}:{mn}], v[{mx}:{mn}], v[{ep[8]}:{em[8]}]')
        A(f'v_pk_add_f32 v[{mx}:{mn}], v[{mx}:{mn}], v[{t1}:{t2}]')
        A(f'v_mov_b32 v{t1}, v{mx}'); A(f'v_mov_b32 v{t2}, v{mn}')
        A(f'v_permlane16_swap_b32 v{mx}, v{t1}'); A(f'v_permlane16_swap_b32 v{mn}, v{t2}')
        A(f'v_pk_add_f32 v[{mx}:{mn}], v[{mx}:{mn}], v[{t1}:{t2}]')
        A(f'v_rcp_f32 v{mx}, v{mx}'); A(f'v_rcp_f32 v{mn}, v{mn}')
        for i in range(9):
            A(f'v_pk_mul_f32 v[{ep[i]}:{em[i]}], v[{ep[i]}:{em[i]}], v[{mx}:{mn}]')
        for k, e in enumerate((ep, em)):
            for m in range(4): A(f'v_cvt_pk_bf16_f32 v{out+5*k+m}, v{e[2*m]}, v{e[2*m+1]}')
            A(f'v_cvt_pk_bf16_f32 v{out+5*k+4}, v{e[8]}, 0')

    def kregs(self, tt, base):
        return [acc((base+i) >> 2, tt) + ((base+i) & 3) for i in range(9)]

    def c_program(self):
        A = self.A
        self.c_gemm1()
        self.stamp('gemm1')
        self.bar()
        B, TMP = 72, 88
        for tt in range(2):
            self.softmax9(self.kregs(tt, 0), B, TMP)
            vv = self.kregs(tt, 9)
            for m in range(4): A(f'v_cvt_pk_bf16_f32 v{B+10+m}, v{vv[2*m]}, v{vv[2*m+1]}')
            A(f'v_cvt_pk_bf16_f32 v{B+14}, v{vv[8]}, v7')
            A(f'v_mov_b32 v{B+15}, 0')
            for q in range(4):
                A(f'ds_write_b128 v8, v[{B+4*q}:{B+4*q+3}] offset:{L_IMG + tt*16*288 + 16*q}', 'img')
            if tt == 0: A.wait_lg()
        self.stamp('softk')
        self.barrier()
        if os.environ.get('PFAT', 'BA') == 'BB': self.moe_prefetch('v4', 0, 100, ('v110', 'v111'))
        self.c_part2()
        self.stamp('gemm2')
        self.c_setup2()
        for tt in range(2):
            P = 16 + 12*tt
            self.softmax9(self.kregs(tt, 18), P, 88)
            A(f'v_mov_b32 v{P+10}, 0'); A(f'v_mov_b32 v{P+11}, 0')
        self.stamp('softq')
        self.wo_loads(NCT_H, 9 - NCT_H)
        self.bar()
        self.stamp('h1')
        AF, D = 40, 76
        for To in range(3):
            for s2 in range(3):
                a_ = AF + (To*3+s2)*4
                A(f'ds_read_b128 v[{a_}:{a_+3}], v{9+To} offset:{16*s2}', ('s2', To))
        for tt in range(2):
            P = 16 + 12*tt; Dt = D + 12*tt
            for To in range(3):
                if tt == 0: A.wait_lg(('s2', To))
                for s2 in range(3):
                    a_ = AF + (To*3+s2)*4; d = Dt + 4*To
                    c = '0' if s2 == 0 else f'v[{d}:{d+3}]'
                    A(f'v_mfma_f32_16x16x32_bf16 v[{d}:{d+3}], v[{a_}:{a_+3}], v[{P+4*s2}:{P+4*s2+3}], {c}')
        for tt in range(2):
            Dt = D + 12*tt; O = 100 + 6*tt
            A(f'v_add_f32 v14, 0x358637bd, v{Dt+9}')
            A('v_rcp_f32 v14, v14')
            for i in range(9): A(f'v_mul_f32 v{Dt+i}, v{Dt+i}, v14')
            O = 40 + 8*tt
            for m in range(4): A(f'v_cvt_pk_bf16_f32 v{O+m}, v{Dt+2*m}, v{Dt+2*m+1}')
            A(f'v_cvt_pk_bf16_f32 v{O+4}, v{Dt+8}, 0')
            A(f's_mov_b32 s46, {tt*16384}'); A(f's_mov_b32 s47, {tt*4096}')
            A(f'buffer_store_dwordx4 v[{O}:{O+3}], v12, s[16:19], s46 offen sc1', 'op')
            A(f'buffer_store_dword v{O+4}, v13, s[16:19], s47 offen sc1', 'op')
        self.stamp('opub')

    def moe_prefetch(self, vtid, w0, t, dst):
        A = self.A
        if os.environ.get('NOPF'): return
        pol = os.environ.get('MPFPOL', '')
        A('s_mul_i32 s46, s45, 162')
        A(f'v_add_u32 v{t}, s46, {vtid}')
        A(f'v_mul_u32_u24 v{t+1}, 7282, v{t}'); A(f'v_lshrrev_b32 v{t+1}, 16, v{t+1}')
        A(f'v_mul_u32_u24 v{t+2}, 9, v{t+1}'); A(f'v_sub_u32 v{t+2}, v{t}, v{t+2}')
        A(f'v_mul_u32_u24 v{t+1}, 9216, v{t+1}'); A(f'v_lshl_add_u32 v{t+1}, v{t+2}, 7, v{t+1}')
        A('s_mul_i32 s46, s44, 1152'); A(f'v_add_u32 v{t+1}, s46, v{t+1}')
        A(f'v_lshlrev_b32 v{t+2}, 7, v{t}'); A(f's_mul_i32 s46, s44, {18*36864}'); A(f'v_add_u32 v{t+2}, s46, v{t+2}')
        A(f'v_mov_b32 v{t+3}, {BIG}'); A(f'v_cmp_gt_u32 vcc, 162, {vtid}')
        A(f'v_cndmask_b32 v{t+1}, v{t+3}, v{t+1}, vcc'); A(f'v_cndmask_b32 v{t+2}, v{t+3}, v{t+2}, vcc')
        A(f'buffer_load_dword {dst[0]}, v{t+1}, s[28:31], 0 offen {pol}', 'mpf')
        A(f'buffer_load_dword {dst[1]}, v{t+1}, s[32:35], 0 offen {pol}', 'mpf')
        A(f'buffer_load_dword {dst[1]}, v{t+2}, s[36:39], 0 offen {pol}', 'mpf')

    def wo_loads(self, ct0, n, i0=0, i1=None, areg=14):
        A = self.A
        if i1 is None: i1 = n*5
        if i0 == 0:
            A('s_lshl_b32 s46, s43, 2'); A('s_add_u32 s46, s46, s55'); A('s_mul_i32 s46, s46, 9'); A(f's_add_u32 s46, s46, {ct0}')
            A('s_mul_i32 s46, s46, 5120'); A(f's_add_u32 s46, s46, {WOP_OFF}')
            A(f'v_add_u32 v{areg}, s46, v1')
        for i in range(i0, i1):
            if i % 4 == 0 or i == i0: A(f's_mov_b32 s47, {(i//4)*4096}')
            A(f'buffer_load_dwordx4 a[{4*i}:{4*i+3}], v{areg}, s[16:19], s47 offen offset:{(i%4)*1024}', 'wo')

    def h_program(self):
        A = self.A
        A(f's_mul_i32 s46, s41, {WP_J}'); A(f's_add_u32 s46, s46, {WP_OFF}')
        A('s_lshl_b32 s54, s55, 12'); A('s_add_u32 s46, s46, s54')
        A('v_add_u32 v5, s46, v1')
        def dma(c):
            A(f's_add_u32 m0, s54, {c*16384}')
            A(f's_mov_b32 s48, {c*16384}')
            for i in range(4):
                A(f'buffer_load_dwordx4 v5, s[16:19], s48 offen offset:{i*1024} lds', ('w', c))
        LA = int(os.environ.get('LA', 3))
        for c in range(LA): dma(c)
        self.other_srds()
        n16 = (L_AIMG - L_KVT)//16
        for r in range(8, 12): A(f'v_mov_b32 v{r}, 0')
        A('v_subrev_u32 v12, 256, v4')
        A('v_lshlrev_b32 v13, 4, v12'); A(f'v_add_u32 v13, {L_KVT}, v13')
        A('ds_write_b128 v13, v[8:11]', 'z')
        A(f'v_cmp_gt_u32 vcc, {n16-256}, v12')
        A('s_and_saveexec_b64 s[50:51], vcc')
        A('ds_write_b128 v13, v[8:11] offset:4096', 'z')
        A('s_mov_b64 exec, s[50:51]')
        A.wait_lg()
        self.stamp('issued')
        for c in range(6):
            A.wait_vm(('w', c)); self.bar()
            if c == 0: self.stamp('chunk0')
            if c + LA < 6: dma(c + LA)
            if c == 0: self.h_fills()
            if c == 5:
                assert LA <= 3
                NF = A.newlabel('NOF2')
                A('s_cmp_lg_u32 s3, 7'); A(f's_cbranch_scc1 {NF}')
                A('s_lshl_b32 s46, s2, 7'); A(f's_add_u32 s46, s46, {FLAG2_OFF}')
                A('v_mov_b32 v26, s46'); A('v_mov_b32 v27, s63')
                A('s_mov_b64 exec, 1')
                A('buffer_store_dword v27, v26, s[16:19], 0 offen sc1')
                A('s_mov_b64 exec, -1')
                A.vm.pop()
                A.label(NF)
        self.h_setup()
        self.stamp('gemm1')
        self.bar()
        dma(6); dma(7)
        W1 = int(os.environ.get('W1', 8))
        self.wo_loads(0, NCT_H, 0, W1, areg=25)
        if os.environ.get('PFAT', 'BA') == 'BA': self.moe_prefetch('v12', 4, 26, ('a142', 'a143'))
        A.wait_vm([('w', 6), ('w', 7)])
        NF = A.newlabel('NOF2P')
        A('s_cmp_lg_u32 s3, 7'); A(f's_cbranch_scc1 {NF}')
        group_flag_addr(A, 32, FLAG2_OFF)
        vm_save = list(A.vm)
        L = self.poll_begin()
        A('buffer_load_dword v33, v32, s[16:19], 0 offen sc1')
        A('s_waitcnt vmcnt(0)')
        A('v_cmp_ne_u32 vcc, s63, v33')
        self.poll_end(L)
        A.vm = vm_save
        A.label(NF); A.hist = []
        self.stamp('softk')
        self.bar()
        AFr, BFr, D = 32, 80, 96
        for ks in range(4):
            rl = []
            for h in range(2):
                b = BFr + 4*ks + 2*h
                rl.append((f'ds_read_b64_tr_b16 v[{b}:{b+1}], v17 offset:{L_IMG + ks*9216 + h*4608}', ('kb', ks)))
            for T in range(3):
                for h in range(2):
                    a_ = AFr + (ks*3+T)*4 + 2*h
                    rl.append((f'ds_read_b64_tr_b16 v[{a_}:{a_+1}], v{14+T} offset:{L_IMG + ks*9216 + h*4608}', ('ka', ks)))
            for x in rl[:4]: A(*x)
            if ks >= 1: self._kvm(ks-1, AFr, BFr, D)
            for x in rl[4:]: A(*x)
        self._kvm(3, AFr, BFr, D)
        for T in range(3):
            A(f'buffer_store_dwordx4 v[{D+4*T}:{D+4*T+3}], v{19 if T == 2 else 18}, s[16:19], 0 offen offset:{64*T} sc1', 'kvp')
        self.stamp('gemm2')
        self.wo_loads(0, NCT_H, W1, None, areg=25)
        LD = 32
        L1 = [96, 100, 104, 108, 24-0, 28, 8, 14+0]
        L1 = [96, 100, 104, 108, 28, 8, 14, 16]
        L1 = [96, 100, 104, 108, 28, 8, 14, 26]
        L1 = [96, 100, 104, 108, 28, 8, 14, 24]
        L = self.poll_begin()
        for m in range(16):
            A(f's_mov_b32 s{46+(m&1)}, {m*KVP_ONE}')
            A(f'buffer_load_dwordx4 v[{LD+4*m}:{LD+4*m+3}], v20, s[16:19], s{46+(m&1)} offen sc1', 'kv')
        for m in range(8):
            A(f's_mov_b32 s{46+(m&1)}, {m*KVP_ONE}')
            A(f'buffer_load_dwordx4 v[{L1[m]}:{L1[m]+3}], v22, s[16:19], s{46+(m&1)} offen sc1', 'kv')
        self.waitall_vm()
        def padd(d, s_):
            for b in (0, 2): A(f'v_pk_add_f32 v[{d+b}:{d+b+1}], v[{d+b}:{d+b+1}], v[{s_+b}:{s_+b+1}]')
        for st in (1, 2, 4, 8):
            for m in range(0, 16, 2*st): padd(LD+4*m, LD+4*(m+st))
        for st in (1, 2, 4):
            for m in range(0, 8, 2*st): padd(L1[m], L1[m+st])
        E = L1[0]
        for b in range(4): A(f'v_add_f32_dpp v{E+b}, v{E+b}, v{E+b} quad_perm:[1,0,3,2] row_mask:0xf bank_mask:0xf')
        A(f'v_add_f32 v18, v{LD}, v{LD+1}'); A(f'v_add_f32 v19, v{LD+2}, v{LD+3}'); A('v_add_f32 v18, v18, v19')
        A(f'v_add_f32 v19, v{E}, v{E+1}'); A('v_add_f32 v18, v18, v19'); A(f'v_add_f32 v19, v{E+2}, v{E+3}'); A('v_add_f32 v18, v18, v19')
        A('v_cmp_u_f32 vcc, v18, v18')
        self.poll_end(L)
        A(f'v_cvt_pk_bf16_f32 v18, v{LD}, v{LD+1}'); A(f'v_cvt_pk_bf16_f32 v19, v{LD+2}, v{LD+3}')
        A('ds_write_b64 v21, v[18:19]', 'kvt')
        A(f'v_cvt_pk_bf16_f32 v26, v{E}, v{E+1}'); A(f'v_cvt_pk_bf16_f32 v27, v{E+2}, v{E+3}')
        A('v_cmp_gt_u32 vcc, 248, v12')
        A('s_and_saveexec_b64 s[50:51], vcc')
        A('ds_write_b64 v23, v[26:27]', 'kvt')
        A('s_mov_b64 exec, s[50:51]')
        A.wait_lg()
        self.stamp('softq')
        self.bar()
        self.stamp('h1')
        NE = A.newlabel('NOEP')
        A('s_cmp_lg_u32 s2, 0'); A(f's_cbranch_scc1 {NE}')
        A('s_cmp_lg_u32 s3, 7'); A(f's_cbranch_scc1 {NE}')
        A(f'v_mov_b32 v8, {EPOCH_OFF}'); A('v_mov_b32 v9, s63')
        A('s_mov_b64 exec, 1')
        A('buffer_store_dword v9, v8, s[16:19], 0 offen sc1')
        A('s_mov_b64 exec, -1')
        A.label(NE)
        self.stamp('opub')

    def h_fills(self):
        A = self.A
        srd(A, 48, 6, 7, FILL_END)
        A('s_lshl_b32 s46, s2, 2'); A('s_add_u32 s46, s46, s55'); A('s_lshl_b32 s46, s46, 12'); A(f's_add_u32 s46, s46, {FILL_OFF}')
        for r in range(28, 32): A(f'v_mov_b32 v{r}, -1')
        A('v_add_u32 v26, s46, v1')
        for i in range(4): A(f'buffer_store_dwordx4 v[28:31], v26, s[48:51], 0 offen offset:{i*1024} sc1', 'fill')
        A('s_lshl_b32 s46, s41, 4'); A('s_add_u32 s46, s46, s40'); A(f's_mul_i32 s46, s46, {KVP_ONE}')
        A('s_mul_i32 s47, s55, 1920'); A('s_add_u32 s46, s46, s47'); A(f's_add_u32 s46, s46, {KVP_OFF}')
        A('v_add_u32 v26, s46, v1'); A(f'v_mov_b32 v27, {BIG}'); A('v_cmp_gt_u32 vcc, 56, v0'); A('v_cndmask_b32 v27, v27, v26, vcc')
        A('buffer_store_dwordx4 v[28:31], v26, s[48:51], 0 offen sc1', 'fill')
        A('buffer_store_dwordx4 v[28:31], v27, s[48:51], 0 offen offset:1024 sc1', 'fill')

    def _kvm(self, ks, AFr, BFr, D):
        A = self.A
        A.wait_lg([('kb', ks), ('ka', ks)])
        for T in range(3):
            a_ = AFr + (ks*3+T)*4; b = BFr + 4*ks; d = D + 4*T
            c = '0' if ks == 0 else f'v[{d}:{d+3}]'
            A(f'v_mfma_f32_16x16x32_bf16 v[{d}:{d+3}], v[{a_}:{a_+3}], v[{b}:{b+3}], {c}')

    def h_setup(self):
        A = self.A
        A('v_lshrrev_b32 v9, 2, v0')
        A('v_mul_u32_u24 v9, 288, v9')
        A('s_lshr_b32 s46, s55, 1'); A('s_lshl_b32 s47, s46, 7')
        A('v_add_u32 v9, s47, v9')
        A('v_and_b32 v10, 3, v0')
        for T in range(3):
            A(f'v_add_u32 v11, {4*T}, v10'); A('v_lshlrev_b32 v24, 3, v11'); A('v_add_u32 v13, 24, v24')
            A('v_cmp_gt_u32 vcc, 5, v11'); A('v_cndmask_b32 v24, v13, v24, vcc')
            A(f'v_add_u32 v{14+T}, v9, v24')
        A('s_and_b32 s48, s55, 1'); A('s_lshl_b32 s47, s48, 2')
        A('v_add_u32 v11, s47, v10'); A('v_lshlrev_b32 v24, 3, v11')
        A('v_add_u32 v13, 80, v24'); A('v_add_u32 v24, 40, v24')
        A('v_cmp_gt_u32 vcc, 3, v11'); A('v_cndmask_b32 v24, v13, v24, vcc')
        A('v_mov_b32 v13, 40'); A('v_cmp_gt_u32 vcc, 6, v11'); A('v_cndmask_b32 v24, v13, v24, vcc')
        A('v_add_u32 v17, v9, v24')
        A('s_lshl_b32 s47, s48, 4')
        A('v_add_u32 v11, s47, v2')
        A('s_mul_i32 s48, s46, 24')
        A('v_add_u32 v24, s48, v11'); A('v_mul_u32_u24 v24, 10, v24'); A('v_add_u32 v24, v24, v3'); A('v_lshlrev_b32 v24, 4, v24')
        A('s_lshl_b32 s48, s41, 4'); A('s_add_u32 s48, s48, s40'); A(f's_mul_i32 s48, s48, {KVP_ONE}'); A(f's_add_u32 s48, s48, {KVP_OFF}')
        A('v_add_u32 v24, s48, v24')
        A(f'v_mov_b32 v13, {BIG}')
        A('v_subrev_u32 v19, 12, v11')
        A('v_cmp_gt_u32 s[52:53], 9, v19'); A('v_cmp_gt_u32 vcc, 10, v11'); A('s_or_b64 vcc, vcc, s[52:53]')
        A('v_cndmask_b32 v18, v13, v24, vcc')
        A('v_cmp_gt_u32 vcc, 2, v3'); A('v_cndmask_b32 v19, v13, v18, vcc')
        A(f's_mul_i32 s46, s41, {16*KVP_ONE}'); A(f's_add_u32 s46, s46, {KVP_OFF}')
        for rnd in range(2):
            ga, la = (20, 21) if rnd == 0 else (22, 23)
            if rnd == 0: A('v_mov_b32 v24, v12')
            else:
                A('v_lshrrev_b32 v24, 1, v12'); A('v_add_u32 v24, 256, v24'); A('v_min_u32 v24, 379, v24')
            A('v_mul_u32_u24 v8, 6554, v24'); A('v_lshrrev_b32 v8, 16, v8')
            A('v_mul_u32_u24 v9, 10, v8'); A('v_sub_u32 v9, v24, v9')
            A('v_cmp_le_u32 vcc, 19, v8'); A('v_cndmask_b32 v10, 0, 1, vcc')
            A('v_mul_u32_u24 v11, 19, v10'); A('v_sub_u32 v11, v8, v11')
            A('v_cmp_le_u32 vcc, 10, v11'); A('v_cndmask_b32 v13, 0, 2, vcc'); A('v_add_u32 v11, v11, v13')
            A('v_mad_u32_u24 v11, v10, 24, v11')
            A(f'v_mad_u32_u24 v{ga}, v11, 10, v9'); A(f'v_lshlrev_b32 v{ga}, 4, v{ga}')
            A(f'v_add_u32 v{ga}, s46, v{ga}')
            if rnd == 1:
                A('v_and_b32 v13, 1, v12'); A(f'v_mul_u32_u24 v13, {8*KVP_ONE}, v13'); A(f'v_add_u32 v{ga}, v{ga}, v13')
            A(f'v_mul_u32_u24 v{la}, 96, v11'); A(f'v_lshl_add_u32 v{la}, v9, 3, v{la}')
            A('v_cmp_le_u32 vcc, 5, v9'); A('v_cndmask_b32 v13, 0, 8, vcc'); A(f'v_add_u32 v{la}, v{la}, v13')
            A(f'v_add_u32 v{la}, {L_KVT}, v{la}')

    def dump(self, regs, slot):
        A = self.A
        A('s_lshl_b32 s60, s2, 3'); A('s_add_u32 s60, s60, s3'); A('s_mul_i32 s60, s60, 4096'); A(f's_add_u32 s60, s60, {DBG_OFF}')
        A('v_lshlrev_b32 v111, 2, v0'); A('v_add_u32 v111, s60, v111')
        for i, r in enumerate(regs):
            off = (slot+i)*256
            assert off < 4096
            if r[0] == 'a':
                A(f'v_accvgpr_read_b32 v110, {r}'); r = 'v110'
            A(f'buffer_store_dword {r}, v111, s[16:19], 0 offen offset:{off}')
            A('s_nop 1')

    def finish(self):
        A = self.A
        A.label('K1_FIN')
        if self.prof:
            self.stamp('end')
            A('s_waitcnt lgkmcnt(0)')
            A('s_lshl_b32 s60, s2, 3'); A('s_add_u32 s60, s60, s3'); A('s_lshl_b32 s60, s60, 7')
            A(f's_add_u32 s60, s60, {DBG_OFF + (8<<20)}')
            A('v_mov_b32 v110, s60')
            for i in range(len(self.stamps)):
                A(f'v_mov_b32 v111, s{64+2*i}')
                A(f'buffer_store_dword v111, v110, s[16:19], 0 offen offset:{4*i}')
        if os.environ.get('DIAG') and self.prof:
            A('s_load_dwordx2 s[4:5], s[0:1], 80'); A('s_waitcnt lgkmcnt(0)')
            A('s_cmp_lg_u32 s2, %s' % os.environ.get('DIAGWG', '0')); A('s_cbranch_scc1 K1_END')
            A('s_cmp_lg_u32 s3, %s' % os.environ.get('DIAGWAVE', '1')); A('s_cbranch_scc1 K1_END')
            srd(A, 24, 4, 5, 256)
            A('v_mov_b32 v110, 0')
            sel = os.environ['DIAG'].split(',')
            for k, nm in enumerate(sel):
                i = self.stamps.index(nm)
                A(f'v_mov_b32 v111, s{64+2*i}')
                A(f'buffer_store_dword v111, v110, s[24:27], 0 offen offset:{4*k}')
        A.label('K1_END'); A('s_endpgm')
        return A.text()

def gen_k1(stop=None, prof=False):
    K = K1(stop, prof)
    global LAST; LAST = K
    A = K.A
    K.stamp('start')
    K.prologue()
    K.stamp('prolog')
    s0(K, 'main_kernel', int(os.environ.get('CODEKB', 26)))
    A('s_cmp_ge_u32 s3, 4'); A('s_cbranch_scc1 K1_H')
    vm0, lg0 = list(A.vm), list(A.lg)
    K.nbar = 0
    K.c_program()
    nb_c = K.nbar
    A('s_branch K1_JOIN')
    A.label('K1_H')
    A.vm, A.lg, A.hist = list(vm0), list(lg0), []
    K.nbar = 0
    K.h_program()
    assert K.nbar == nb_c, (K.nbar, nb_c)
    A.label('K1_JOIN')
    A('s_nop 7')
    A.vm = ['?']*0; A.lg = []
    if stop == 'o': return K.finish()
    import k1b
    k1b.rest(K)
    return K.finish()
```

```python
import os
from asmlib import *
from layout import *
from s0 import BIG
from k1 import *

def rest(K):
    A = K.A
    stop = K.stop
    NH, NC = NCT_H, 9 - NCT_H
    A('s_mul_i32 s61, s44, 18'); A('s_add_u32 s61, s61, s45')
    A('s_and_b32 s56, s3, 1'); A('s_lshr_b32 s57, s3, 1')
    A('s_lshl_b32 s58, s57, 1'); A('s_add_u32 s58, s58, 1'); A('s_cmp_eq_u32 s57, 0'); A('s_cselect_b32 s58, 0, s58')
    A('s_mul_i32 s59, s43, 144'); A('s_lshl_b32 s46, s58, 4'); A('s_add_u32 s59, s59, s46')
    A('s_lshl_b32 s46, s42, 5'); A('s_lshl_b32 s47, s56, 4'); A('s_add_u32 s46, s46, s47')
    A('v_add_u32 v5, s46, v2')
    A('v_mul_u32_u24 v6, 1152, v5')
    A('v_lshlrev_b32 v7, 2, v3'); A('v_add_u32 v7, s59, v7')
    A('v_lshl_add_u32 v6, v7, 1, v6')
    A(f'v_lshlrev_b32 v8, 2, v7'); A(f'v_add_u32 v8, {WRC_OFF}, v8')
    for i in range(3):
        A(f'buffer_load_dwordx2 a[{120+2*i}:{121+2*i}], v6, s[20:23], 0 offen offset:{32*i}', 'xr')
        A(f'buffer_load_dwordx4 a[{128+4*i}:{131+4*i}], v8, s[16:19], 0 offen offset:{64*i}', 'xr')
    if os.environ.get('PFTEST'):
        from s0 import moe_prefetch_wave
        NT_ = A.newlabel('PFT')
        A('s_cmp_lg_u32 s3, 5'); A(f's_cbranch_scc1 {NT_}')
        moe_prefetch_wave(K, os.environ.get('PFPOL', ''))
        K.other_srds()
        A.label(NT_)
        K.waitall_vm()
        K.stamp('pft0')
        K.bar()
        for _ in range(int(os.environ['PFTEST'])): A('s_sleep 100')
        K.bar()
        K.stamp('pft1')
    A.vm = []
    BQ, AC = 12, 52
    A('s_lshl_b32 s46, s42, 5'); A('s_lshl_b32 s47, s55, 2'); A('s_add_u32 s46, s46, s47')
    A('s_lshl_b32 s47, s46, 10'); A(f's_add_u32 s47, s47, {OPM_OFF}'); A('v_add_u32 v9, s47, v1')
    A('s_lshl_b32 s47, s46, 8'); A(f's_add_u32 s47, s47, {OPT_OFF}'); A('v_lshlrev_b32 v10, 2, v0'); A('v_add_u32 v10, s47, v10')
    K.stamp('s3pre')
    if os.environ.get('BARPOLL'): K.bar()
    L = K.poll_begin()
    A('s_mov_b32 s46, 16384'); A('s_mov_b32 s47, 4096')
    for tt in range(2):
        for u in range(4):
            r = BQ + (tt*5+u)*4
            A(f'buffer_load_dwordx4 v[{r}:{r+3}], v9, s[16:19], {"s46" if tt else "0"} offen offset:{u*1024} sc1')
        for i in range(4):
            r = BQ + (tt*5+4)*4 + i
            A(f'buffer_load_dword v{r}, v10, s[16:19], {"s47" if tt else "0"} offen offset:{i*256} sc1')
    K.waitall_vm()
    A(f'v_max3_u32 v11, v{BQ}, v{BQ+1}, v{BQ+2}')
    for r in range(BQ+3, BQ+39, 2): A(f'v_max3_u32 v11, v11, v{r}, v{r+1}')
    A(f'v_max_u32 v11, v11, v{BQ+39}')
    A('v_cmp_eq_u32 vcc, -1, v11')
    K.poll_end(L)
    K.stamp('opoll')
    def mm(n):
        for u in range(5):
            for i in range(n):
                for tt in range(2):
                    d = AC + (i*2+tt)*4; a_ = (i*5+u)*4; b = BQ + (tt*5+u)*4
                    c = '0' if u == 0 else f'v[{d}:{d+3}]'
                    A(f'v_mfma_f32_16x16x32_bf16 v[{d}:{d+3}], a[{a_}:{a_+3}], v[{b}:{b+3}], {c}')
    A('s_mul_i32 s46, s55, 18432')
    A('v_add_u32 v11, s46, v1')
    CM = A.newlabel('S3C'); JM = A.newlabel('S3J')
    A('s_cmp_lt_u32 s3, 4'); A(f's_cbranch_scc1 {CM}')
    mm(NH)
    for i in range(NH):
        for tt in range(2):
            d = AC + (i*2+tt)*4
            A(f'ds_write_b128 v11, v[{d}:{d+3}] offset:{L_RED + (i*2+tt)*1024}', 'red')
    A.wait_lg()
    A(f's_branch {JM}')
    A.label(CM); A.hist = []
    mm(NC)
    for i in range(NC):
        for tt in range(2):
            d = AC + (i*2+tt)*4
            A(f'ds_write_b128 v11, v[{d}:{d+3}] offset:{L_RED + ((NH+i)*2+tt)*1024}', 'red')
    A.wait_lg()
    A.label(JM); A('s_nop 1')
    K.bar()
    K.stamp('s3mm')
    A('s_lshl_b32 s46, s58, 1'); A('s_add_u32 s46, s46, s56'); A('s_lshl_b32 s46, s46, 10')
    A('v_add_u32 v11, s46, v1')
    PR, HR = 12, 60
    S1, S2_, S3_ = 72, 73, 74
    def tile(i):
        for kq in range(4):
            r = PR + (i*4+kq)*4
            A(f'ds_read_b128 v[{r}:{r+3}], v11 offset:{L_RED + kq*18432 + i*2048}', ('pr', i))
    def proc(i):
        r = PR + i*16
        A.wait_lg(('pr', i))
        for b in (0, 2):
            A(f'v_pk_add_f32 v[{r+b}:{r+b+1}], v[{r+b}:{r+b+1}], v[{r+4+b}:{r+5+b}]')
            A(f'v_pk_add_f32 v[{r+8+b}:{r+9+b}], v[{r+8+b}:{r+9+b}], v[{r+12+b}:{r+13+b}]')
        A(f'v_accvgpr_read_b32 v76, a{120+2*i}'); A(f'v_accvgpr_read_b32 v77, a{121+2*i}')
        for b in (0, 2):
            A(f'v_pk_add_f32 v[{r+b}:{r+b+1}], v[{r+b}:{r+b+1}], v[{r+8+b}:{r+9+b}]')
        for b in range(4): A(f'v_accvgpr_read_b32 v{r+4+b}, a{128+4*i+b}')
        A('v_lshlrev_b32 v78, 16, v76'); A('v_and_b32 v79, 0xffff0000, v76')
        A('v_lshlrev_b32 v80, 16, v77'); A('v_and_b32 v81, 0xffff0000, v77')
        A(f'v_pk_add_f32 v[{r}:{r+1}], v[{r}:{r+1}], v[78:79]'); A(f'v_pk_add_f32 v[{r+2}:{r+3}], v[{r+2}:{r+3}], v[80:81]')
        A(f'v_cvt_pk_bf16_f32 v76, v{r}, v{r+1}'); A(f'v_cvt_pk_bf16_f32 v77, v{r+2}, v{r+3}')
        h = HR + 4*i
        A(f'v_lshlrev_b32 v{h}, 16, v76'); A(f'v_and_b32 v{h+1}, 0xffff0000, v76')
        A(f'v_lshlrev_b32 v{h+2}, 16, v77'); A(f'v_and_b32 v{h+3}, 0xffff0000, v77')
        for b in range(4):
            A(f'v_add_f32 v{S1}, v{S1}, v{h+b}')
            A(f'v_fmac_f32 v{S2_}, v{h+b}, v{h+b}')
            A(f'v_fmac_f32 v{S3_}, v{h+b}, v{r+4+b}')
    for r in (S1, S2_, S3_, 75): A(f'v_mov_b32 v{r}, 0')
    tile(0); tile(1)
    T2 = A.newlabel('NOT2')
    proc(0); proc(1)
    A('s_cmp_lg_u32 s57, 0'); A(f's_cbranch_scc1 {T2}')
    tile(2); proc(2)
    A.label(T2); A.hist = []; A('s_nop 1')
    K.xsum_g([S1, S2_, S3_], 76)
    A('s_lshl_b32 s46, s56, 2'); A('s_add_u32 s46, s46, s57'); A('s_lshl_b32 s46, s46, 8'); A(f's_add_u32 s46, s46, {L_STAT}')
    A('v_lshlrev_b32 v8, 4, v2'); A('v_add_u32 v8, s46, v8')
    A('s_mov_b64 exec, 0xffff')
    A(f'ds_write_b128 v8, v[{S1}:{S1+3}]', 'st')
    A('s_mov_b64 exec, -1')
    K.barrier()
    K.stamp('stat')
    NP = A.newlabel('NOPUB')
    A('s_cmp_lg_u32 s57, 0'); A(f's_cbranch_scc1 {NP}')
    A('s_lshl_b32 s46, s56, 10'); A(f's_add_u32 s46, s46, {L_STAT}')
    A('v_lshlrev_b32 v8, 8, v3'); A('v_lshl_add_u32 v8, v2, 4, v8'); A('v_add_u32 v8, s46, v8')
    A('ds_read_b128 v[76:79], v8', 'sr'); A.wait_lg()
    K.xsum_g([76, 77, 78], 80)
    A('s_lshl_b32 s46, s42, 1'); A('s_add_u32 s46, s46, s56'); A('s_lshl_b32 s46, s46, 2'); A('s_add_u32 s46, s46, s43')
    A('s_lshl_b32 s46, s46, 8'); A(f's_add_u32 s46, s46, {STP_OFF}')
    A('v_lshlrev_b32 v8, 4, v2'); A('v_add_u32 v8, s46, v8')
    A('v_mov_b32 v79, 0')
    A('s_mov_b64 exec, 0xffff')
    A('buffer_store_dwordx4 v[76:79], v8, s[16:19], 0 offen sc1')
    A('s_mov_b64 exec, -1')
    A.label(NP); A.hist = []
    NOGU = A.newlabel('NOGU')
    if os.environ.get('NOGU'): A(f's_branch {NOGU}')
    A('s_cmp_lt_u32 s3, 4'); A(f's_cbranch_scc1 {NOGU}')
    A('s_cmp_ge_u32 s2, 144'); A(f's_cbranch_scc1 {NOGU}')
    A('v_lshrrev_b32 v9, 2, v0'); A('v_mul_u32_u24 v9, 9216, v9')
    A('v_and_b32 v10, 3, v0'); A('v_lshl_add_u32 v9, v10, 4, v9')
    A('s_lshl_b32 s46, s61, 6'); A('v_add_u32 v9, s46, v9')
    A('s_lshr_b32 s46, s55, 1'); A('s_and_b32 s47, s55, 1')
    A('s_mul_i32 s48, s46, 36864'); A('s_mul_i32 s49, s47, 18432'); A('s_add_u32 s48, s48, s49'); A(f's_add_u32 s48, s48, {L_GU}')
    A(f's_mul_i32 s49, s47, {18*147456}')
    if os.environ.get('PRIO'): A('s_setprio 3')
    G2 = A.newlabel('GUUP'); G3 = A.newlabel('GUDONE')
    A('s_cmp_eq_u32 s46, 1'); A(f's_cbranch_scc1 {G2}')
    for srd_, lab in ((28, None), (32, G2)):
        if lab: A.label(lab)
        for i in range(18):
            A(f's_add_u32 m0, s48, {i*1024}')
            A(f's_add_u32 s50, s49, {i*147456}')
            A(f'buffer_load_dwordx4 v9, s[{srd_}:{srd_+3}], s50 offen lds')
        if lab is None: A(f's_branch {G3}')
    A.label(G3)
    if os.environ.get('PRIO'): A('s_setprio 0')
    A.label(NOGU)
    ND = A.newlabel('NODN')
    if os.environ.get('NOGU'): A(f's_branch {ND}')
    A('s_cmp_lt_u32 s3, 4'); A(f's_cbranch_scc1 {ND}')
    A('s_cmp_ge_u32 s2, 144'); A(f's_cbranch_scc1 {ND}')
    A('s_mul_i32 s46, s61, 36864'); A('s_mul_i32 s47, s55, 9216'); A('s_add_u32 s46, s46, s47')
    A('v_add_u32 v9, s46, v1')
    for i in range(9):
        if i % 4 == 0:
            A(f's_add_u32 m0, s47, {L_DN + (i//4)*4096}'); A(f's_mov_b32 s48, {(i//4)*4096}')
        A(f'buffer_load_dwordx4 v9, s[36:39], s48 offen offset:{(i%4)*1024} lds')
    A.label(ND)
    A.vm = []
    MEAN, RSTD, RV, KEY = 72, 73, 74, 75
    NH3 = A.newlabel('NOH3')
    A('s_cmp_lg_u32 s57, 0'); A(f's_cbranch_scc1 {NH3}')
    A('s_lshl_b32 s46, s42, 1'); A('s_add_u32 s46, s46, s56'); A('s_lshl_b32 s46, s46, 10'); A(f's_add_u32 s46, s46, {STP_OFF}')
    A('v_lshlrev_b32 v8, 8, v3'); A('v_lshl_add_u32 v8, v2, 4, v8'); A('v_add_u32 v8, s46, v8')
    L = K.poll_begin()
    A('buffer_load_dwordx4 v[76:79], v8, s[16:19], 0 offen sc1')
    K.waitall_vm()
    A('v_add_f32 v80, v76, v77'); A('v_add_f32 v80, v80, v78')
    A('v_cmp_u_f32 vcc, v80, v80')
    K.poll_end(L)
    K.stamp('h3')
    K.xsum_g([76, 77, 78], 80)
    A('s_mov_b32 s46, 0x3AE38E39')
    A(f'v_mul_f32 v{MEAN}, s46, v76'); A('v_mul_f32 v77, s46, v77')
    A(f'v_fma_f32 v77, -v{MEAN}, v{MEAN}, v77'); A('v_add_f32 v77, 0x3727c5ac, v77')
    A(f'v_rsq_f32 v{RSTD}, v77')
    A(f'v_mul_f32 v{RV}, v78, v{RSTD}')
    A(f'v_ashrrev_i32 v76, 31, v{RV}'); A('v_or_b32 v76, 0x80000000, v76'); A(f'v_xor_b32 v76, v76, v{RV}')
    A('s_mov_b32 s46, 0xfffff800')
    A(f'v_and_or_b32 v{KEY}, v76, s46, v5')
    A('v_lshlrev_b32 v8, 2, v5'); A(f'v_add_u32 v8, {RR_OFF}, v8')
    A(f'v_mov_b32 v9, {BIG}'); A('s_cmp_eq_u32 s43, 0'); A('s_cselect_b64 vcc, -1, 0'); A('v_cndmask_b32 v8, v9, v8, vcc')
    A('s_lshl_b32 s46, s56, 8'); A(f's_add_u32 s46, s46, {L_TOK}'); A('v_lshlrev_b32 v9, 4, v2'); A('v_add_u32 v9, s46, v9')
    A('s_mov_b64 exec, 0xffff')
    A(f'buffer_store_dword v{KEY}, v8, s[16:19], 0 offen sc1')
    A(f'ds_write_b128 v9, v[{MEAN}:{MEAN+3}]', 'tok')
    A('s_mov_b64 exec, -1')
    A.wait_lg()
    A.label(NH3); A.hist = []
    KQ, OWN = 80, 84
    A('v_lshlrev_b32 v8, 4, v4'); A(f'v_add_u32 v8, {RR_OFF}, v8')
    A('s_lshl_b32 s46, s42, 7'); A(f's_add_u32 s46, s46, {RR_OFF}')
    A('v_lshlrev_b32 v9, 2, v0'); A('v_add_u32 v9, s46, v9')
    A(f'v_mov_b32 v10, {BIG}'); A('v_cmp_gt_u32 vcc, 32, v0'); A('v_cndmask_b32 v9, v10, v9, vcc')
    A.vm = []
    L = K.poll_begin()
    A(f'buffer_load_dwordx4 v[{KQ}:{KQ+3}], v8, s[16:19], 0 offen sc1')
    A(f'buffer_load_dword v{OWN}, v9, s[16:19], 0 offen sc1')
    K.waitall_vm()
    A(f'v_max3_u32 v85, v{KQ}, v{KQ+1}, v{KQ+2}'); A(f'v_max_u32 v85, v85, v{KQ+3}')
    A(f'v_max_u32 v86, v85, v{OWN}')
    A('v_cmp_eq_u32 vcc, -1, v86')
    K.poll_end(L)
    K.stamp('h4')
    for mod in ('quad_perm:[1,0,3,2]', 'quad_perm:[2,3,0,1]', 'row_half_mirror', 'row_mirror'):
        A(f'v_max_u32_dpp v85, v85, v85 {mod} row_mask:0xf bank_mask:0xf')
    A('v_mov_b32 v86, v85'); A('v_permlane16_swap_b32 v85, v86'); A('v_max_u32 v85, v85, v86')
    A('v_mov_b32 v86, v85'); A('v_permlane32_swap_b32 v85, v86'); A('v_max_u32 v85, v85, v86')
    A('s_lshl_b32 s46, s3, 2'); A(f's_add_u32 s46, s46, {L_WMAX}'); A('v_mov_b32 v86, s46')
    A('s_mov_b64 exec, 1'); A('ds_write_b32 v86, v85', 'wm'); A('s_mov_b64 exec, -1')
    K.barrier()
    A(f'v_mov_b32 v86, {L_WMAX}')
    A('ds_read_b128 v[88:91], v86', 'wm'); A('ds_read_b128 v[92:95], v86 offset:16', 'wm'); A.wait_lg()
    A('v_min3_u32 v88, v88, v89, v90'); A('v_min3_u32 v91, v91, v92, v93'); A('v_min3_u32 v88, v88, v94, v95'); A('v_min_u32 v88, v88, v91')
    TAU = 88
    LN = 12
    A('s_lshl_b32 s46, s56, 8'); A(f's_add_u32 s46, s46, {L_TOK}'); A('v_lshlrev_b32 v86, 4, v2'); A('v_add_u32 v86, s46, v86')
    A(f'ds_read_b128 v[{MEAN}:{MEAN+3}], v86', 'tok')
    A(f'v_cmp_ge_u32 vcc, v{OWN}, v{TAU}')
    A('s_mov_b64 s[50:51], vcc')
    CL = A.newlabel('CAND'); CD = A.newlabel('CANDD')
    A.label(CL)
    A('s_cmp_eq_u32 s50, 0'); A(f's_cbranch_scc1 {CD}')
    A('s_ff1_i32_b32 s46, s50')
    A('s_bitset0_b32 s50, s46')
    A(f'v_readlane_b32 s47, v{OWN}, s46')
    A('s_nop 3')
    A('s_mov_b32 s48, 0')
    for q in range(4):
        A(f'v_cmp_lt_u32 vcc, s47, v{KQ+q}')
        A('s_bcnt1_i32_b64 s49, vcc'); A('s_add_u32 s48, s48, s49')
    A('s_lshl_b32 s46, s46, 2'); A(f's_add_u32 s46, s46, {L_RANK}')
    A('v_mov_b32 v86, s46'); A('v_mov_b32 v87, s48')
    A('s_mov_b64 exec, 1'); A('ds_add_u32 v86, v87', 'rk'); A('s_mov_b64 exec, -1')
    A(f's_branch {CL}')
    A.label(CD); A.hist = []
    A.wait_lg()
    A(f'v_mul_f32 v76, v{MEAN}, v{RSTD}'); A('v_sub_f32 v76, 0, v76'); A('v_mov_b32 v77, v76')
    A(f'v_mov_b32 v78, v{RSTD}'); A(f'v_mov_b32 v79, v{RSTD}')
    for q in range(0, 12, 2): A(f'v_pk_fma_f32 v[{LN+q}:{LN+q+1}], v[{HR+q}:{HR+q+1}], v[78:79], v[76:77]')
    K.barrier()
    K.stamp('rank')
    A('s_lshl_b32 s46, s56, 6'); A(f's_add_u32 s46, s46, {L_RANK}')
    A('v_lshlrev_b32 v86, 2, v2'); A('v_add_u32 v86, s46, v86')
    A('ds_read_b32 v87, v86', 'rk'); A.wait_lg()
    RK = 87
    A(f'v_cmp_ge_u32 s[50:51], v{KEY}, v{TAU}'); A(f'v_cmp_gt_u32 vcc, 8, v{RK}'); A('s_and_b64 s[50:51], s[50:51], vcc')
    BS, PK = 24, 36
    for q in range(0, 12, 2): A(f'v_pk_add_f32 v[{BS+q}:{BS+q+1}], v[{HR+q}:{HR+q+1}], v[{LN+q}:{LN+q+1}]')
    for q in range(6): A(f'v_cvt_pk_bf16_f32 v{PK+q}, v{BS+2*q}, v{BS+2*q+1}')
    for q in range(6): A(f'v_cvt_pk_bf16_f32 v{PK+6+q}, v{LN+2*q}, v{LN+2*q+1}')
    A(f'v_mul_u32_u24 v8, 1152, v{RK}'); A('v_lshl_add_u32 v8, v7, 1, v8'); A(f'v_add_u32 v8, {XSEL_OFF}, v8')
    A(f'v_mul_u32_u24 v9, 2304, v{RK}'); A('v_lshl_add_u32 v9, v7, 2, v9'); A(f'v_add_u32 v9, {BASE_OFF}, v9')
    A(f'v_lshlrev_b32 v10, 3, v{RK}'); A(f'v_add_u32 v10, {META_OFF}, v10')
    A('v_mov_b32 v48, v5'); A(f'v_mov_b32 v49, v{RV}')
    def sel_stores(ntile):
        SK = A.newlabel('NOSEL')
        A('s_and_saveexec_b64 s[52:53], s[50:51]'); A(f's_cbranch_execz {SK}')
        for i in range(ntile):
            A(f'buffer_store_dwordx2 v[{PK+6+2*i}:{PK+7+2*i}], v8, s[16:19], 0 offen offset:{32*i} sc1')
            A(f'buffer_store_dwordx4 v[{BS+4*i}:{BS+4*i+3}], v9, s[16:19], 0 offen offset:{64*i} sc1')
        A.label(SK)
        A('s_mov_b64 exec, s[52:53]')
    def out_stores(ntile):
        A('s_andn2_b64 exec, exec, s[50:51]')
        SK2 = A.newlabel('NOOUT')
        A(f's_cbranch_execz {SK2}')
        for i in range(ntile):
            A(f'buffer_store_dwordx2 v[{PK+2*i}:{PK+2*i+1}], v6, s[24:27], 0 offen offset:{32*i}')
        A.label(SK2)
        A('s_mov_b64 exec, -1')
    S3T = A.newlabel('ST3'); SJ = A.newlabel('STJ')
    A('s_cmp_eq_u32 s57, 0'); A(f's_cbranch_scc1 {S3T}')
    sel_stores(2)
    A(f's_branch {SJ}')
    A.label(S3T)
    sel_stores(3)
    NM = A.newlabel('NOMETA')
    A('s_cmp_lg_u32 s43, 0'); A(f's_cbranch_scc1 {NM}')
    A('s_and_b64 s[52:53], s[50:51], 0xffff')
    A('s_and_saveexec_b64 s[48:49], s[52:53]'); A(f's_cbranch_execz {NM}_R')
    A('buffer_store_dwordx2 v[48:49], v10, s[16:19], 0 offen sc1')
    A.label(NM + '_R')
    A('s_mov_b64 exec, -1')
    A.label(NM)
    A.label(SJ); A.hist = []
    A('s_mov_b64 exec, -1')
    K.bar()
    O3 = A.newlabel('OUT3'); OJ = A.newlabel('OUTJ')
    A('s_cmp_eq_u32 s57, 0'); A(f's_cbranch_scc1 {O3}')
    out_stores(2)
    A(f's_branch {OJ}')
    A.label(O3)
    out_stores(3)
    A.label(OJ); A.hist = []
    K.stamp('sel')
    if stop == 'sel': return
    s5(K)

def s5(K):
    A = K.A
    A.vm = []; A.lg = []
    FIN = A.newlabel('FINAL')
    A('s_cmp_ge_u32 s2, 144'); A(f's_cbranch_scc1 {FIN}')
    A('s_mul_i32 s46, s3, 3'); A('s_lshl_b32 s47, s3, 1'); A('s_add_u32 s47, s47, 2'); A('s_cmp_lt_u32 s3, 2'); A('s_cselect_b32 s46, s46, s47')
    A('v_and_b32 v8, 7, v2'); A('v_mul_u32_u24 v8, 1152, v8'); A('v_lshl_add_u32 v8, v3, 4, v8')
    A('s_lshl_b32 s47, s46, 6'); A(f's_add_u32 s47, s47, {XSEL_OFF}'); A('v_add_u32 v8, s47, v8')
    A('v_lshrrev_b32 v9, 2, v2'); A('v_lshl_add_u32 v9, v3, 3, v9'); A('v_lshlrev_b32 v9, 6, v9')
    A('v_and_b32 v10, 3, v2'); A('v_lshl_add_u32 v9, v10, 3, v9')
    A('s_lshl_b32 s47, s46, 11'); A(f's_add_u32 s47, s47, {L_GU}'); A('v_add_u32 v9, s47, v9'); A('v_add_u32 v10, 36864, v9')
    XB = 12
    L = K.poll_begin()
    for i in range(3): A(f'buffer_load_dwordx4 v[{XB+4*i}:{XB+4*i+3}], v8, s[16:19], 0 offen offset:{64*i} sc1')
    K.waitall_vm()
    A(f'v_max3_u32 v11, v{XB}, v{XB+1}, v{XB+2}')
    for r in range(XB+3, XB+7, 2): A(f'v_max3_u32 v11, v11, v{r}, v{r+1}')
    A(f'v_max_u32 v11, v11, v{XB+7}')
    A(f'v_max3_u32 v24, v{XB+8}, v{XB+9}, v{XB+10}'); A(f'v_max_u32 v24, v24, v{XB+11}')
    A('s_cmp_lt_u32 s3, 2'); A('s_cselect_b32 s47, -1, 0'); A('v_and_b32 v24, s47, v24'); A('v_max_u32 v11, v11, v24')
    A('v_cmp_eq_u32 vcc, -1, v11')
    K.poll_end(L)
    K.stamp('xsel')
    AFG, DG = 28, 76
    def gu(nst):
        for i in range(nst):
            for ch in range(4):
                mat, ft = ch >> 1, ch & 1
                for h in range(2):
                    r = AFG + (i*4+ch)*4 + 2*h
                    A(f'ds_read_b64_tr_b16 v[{r}:{r+1}], v{9+mat} offset:{i*2048 + h*256 + ft*32}', ('gu', i))
            A.wait_lg(('gu', i))
            for ch in range(4):
                r = AFG + (i*4+ch)*4; d = DG + 4*ch
                c = '0' if i == 0 else f'v[{d}:{d+3}]'
                A(f'v_mfma_f32_16x16x32_bf16 v[{d}:{d+3}], v[{r}:{r+3}], v[{XB+4*i}:{XB+4*i+3}], {c}')
    G2 = A.newlabel('GU2'); GJ = A.newlabel('GUJ')
    A('s_cmp_ge_u32 s3, 2'); A(f's_cbranch_scc1 {G2}')
    gu(3); A('s_nop 7'); A(f's_branch {GJ}')
    A.label(G2); A.hist = []
    gu(2); A('s_nop 7')
    A.label(GJ); A.hist = []
    A('s_lshl_b32 s46, s3, 12'); A(f's_add_u32 s46, s46, {L_R2}'); A('v_add_u32 v11, s46, v1')
    for ch in range(4): A(f'ds_write_b128 v11, v[{DG+4*ch}:{DG+4*ch+3}] offset:{ch*1024}', 'r2')
    K.barrier()
    AS = A.newlabel('ASKIP')
    A('s_cmp_ge_u32 s3, 4'); A(f's_cbranch_scc1 {AS}')
    A('v_and_b32 v12, 31, v4'); A('v_lshrrev_b32 v13, 5, v4')
    A('v_lshrrev_b32 v14, 4, v12'); A('v_lshlrev_b32 v14, 10, v14')
    A('v_bfe_u32 v15, v12, 2, 2'); A('v_lshl_add_u32 v15, v15, 4, v13'); A('v_lshl_add_u32 v14, v15, 4, v14')
    A('v_and_b32 v15, 3, v12'); A('v_lshl_add_u32 v14, v15, 2, v14'); A(f'v_add_u32 v14, {L_R2}, v14')
    for w in range(8):
        A(f'ds_read_b32 v{16+w}, v14 offset:{w*4096}', 'g')
    A.wait_lg()
    for w in range(8):
        A(f'ds_read_b32 v{24+w}, v14 offset:{w*4096 + 2048}', 'u')
    for base in (16,):
        A('v_add_f32 v16, v16, v17'); A('v_add_f32 v18, v18, v19'); A('v_add_f32 v20, v20, v21'); A('v_add_f32 v22, v22, v23')
        A('v_add_f32 v16, v16, v18'); A('v_add_f32 v20, v20, v22'); A('v_add_f32 v16, v16, v20')
    A('v_mul_f32 v17, 0xbfb8aa3b, v16'); A('v_exp_f32 v17, v17'); A('v_add_f32 v17, 1.0, v17'); A('v_rcp_f32 v17, v17'); A('v_mul_f32 v16, v16, v17')
    A.wait_lg()
    A('v_add_f32 v24, v24, v25'); A('v_add_f32 v26, v26, v27'); A('v_add_f32 v28, v28, v29'); A('v_add_f32 v30, v30, v31')
    A('v_add_f32 v24, v24, v26'); A('v_add_f32 v28, v28, v30'); A('v_add_f32 v24, v24, v28')
    A('v_mul_f32 v16, v16, v24'); A('v_cvt_pk_bf16_f32 v16, v16, v16')
    A('v_lshlrev_b32 v14, 6, v13'); A('v_lshl_add_u32 v14, v12, 1, v14'); A(f'v_add_u32 v14, {L_AIMG}, v14')
    A('ds_write_b16 v14, v16', 'a'); A.wait_lg()
    A.label(AS); A.hist = []
    K.barrier()
    A('s_mul_i32 s46, s3, 5'); A('s_lshl_b32 s47, s3, 2'); A('s_add_u32 s47, s47, 4'); A('s_cmp_lt_u32 s3, 4'); A('s_cselect_b32 s46, s46, s47')
    A('v_and_b32 v8, 7, v2'); A('v_lshlrev_b32 v8, 6, v8'); A('v_lshl_add_u32 v8, v3, 4, v8'); A(f'v_add_u32 v8, {L_AIMG}, v8')
    A('ds_read_b128 v[12:15], v8', 'ab')
    A('v_lshrrev_b32 v9, 2, v2'); A('v_lshl_add_u32 v9, v3, 3, v9'); A('v_mul_u32_u24 v9, 1152, v9')
    A('v_and_b32 v10, 3, v2'); A('v_lshl_add_u32 v9, v10, 3, v9')
    A('s_lshl_b32 s47, s46, 5'); A(f's_add_u32 s47, s47, {L_DN}'); A('v_add_u32 v9, s47, v9')
    A('v_mul_u32_u24 v10, %d, v2' % (18*144*64)); A('v_lshl_add_u32 v10, v3, 3, v10')
    A('s_lshl_b32 s47, s61, 6'); A(f's_add_u32 s47, s47, {YP_OFF}'); A('v_add_u32 v10, s47, v10')
    A(f'v_mov_b32 v11, {BIG}'); A('v_cmp_gt_u32 vcc, 8, v2'); A('v_cndmask_b32 v10, v11, v10, vcc')
    def dn(n):
        for i in range(n):
            for h in range(2):
                r = 16 + 4*i + 2*h
                A(f'ds_read_b64_tr_b16 v[{r}:{r+1}], v9 offset:{i*32 + h*4*1152}', ('dn', i))
        for i in range(n):
            A.wait_lg([('dn', i), 'ab'])
            A(f'v_mfma_f32_16x16x32_bf16 v[{40+4*i}:{43+4*i}], v[{16+4*i}:{19+4*i}], v[12:15], 0')
        for i in range(n):
            d = 40 + 4*i
            A(f's_add_u32 s47, s46, {i}'); A('s_lshr_b32 s48, s47, 1'); A(f's_mul_i32 s48, s48, {144*64}')
            A('s_and_b32 s47, s47, 1'); A('s_lshl_b32 s47, s47, 5'); A('s_add_u32 s48, s48, s47')
            A(f'v_cvt_pk_bf16_f32 v{d}, v{d}, v{d+1}'); A(f'v_cvt_pk_bf16_f32 v{d+1}, v{d+2}, v{d+3}')
            A(f'buffer_store_dwordx2 v[{d}:{d+1}], v10, s[16:19], s48 offen sc1')
    D4 = A.newlabel('DN4'); DJ = A.newlabel('DNJ')
    A('s_cmp_ge_u32 s3, 4'); A(f's_cbranch_scc1 {D4}')
    lg0 = list(A.lg)
    dn(5); A(f's_branch {DJ}')
    A.label(D4); A.hist = []; A.lg = lg0
    dn(4)
    A.label(DJ); A.hist = []
    K.bar()
    K.stamp('ypub')
    A.label(FIN); A.hist = []; A.vm = []; A.lg = []
    A('s_cmp_lt_u32 s2, 112'); A('s_cbranch_scc1 K1_FIN')
    A('s_sub_u32 s46, s2, 112')
    A('s_mul_hi_u32 s47, s46, 0x%x' % ((1 << 32)//18 + 1))
    A('s_mul_i32 s48, s47, 18'); A('s_sub_u32 s48, s46, s48')
    A('v_and_b32 v8, 15, v4'); A('v_lshrrev_b32 v9, 4, v4')
    A(f's_mul_i32 s49, s46, {144*64}'); A(f's_add_u32 s49, s49, {YP_OFF}')
    A('v_lshlrev_b32 v10, 6, v9'); A('v_lshl_add_u32 v10, v8, 2, v10'); A('v_add_u32 v10, s49, v10')
    A(f'v_add_u32 v11, {4*2048}, v10'); A(f'v_mov_b32 v12, {BIG}'); A('v_cmp_gt_u32 vcc, 16, v9'); A('v_cndmask_b32 v11, v12, v11, vcc')
    A('s_mul_i32 s49, s47, 2304'); A('s_lshl_b32 s50, s48, 7'); A('s_add_u32 s49, s49, s50'); A(f's_add_u32 s49, s49, {BASE_OFF}')
    A('v_lshlrev_b32 v13, 3, v8'); A('v_add_u32 v13, s49, v13')
    A('s_lshl_b32 s49, s47, 3'); A(f's_add_u32 s49, s49, {META_OFF}'); A('v_mov_b32 v14, s49')
    L = K.poll_begin()
    A('s_mov_b32 s49, 4096')
    for i in range(4):
        A(f'buffer_load_dword v{16+i}, v10, s[16:19], {"s49" if i >= 2 else "0"} offen offset:{(i&1)*2048} sc1')
    A('buffer_load_dword v20, v11, s[16:19], 0 offen sc1')
    A('buffer_load_dwordx2 v[22:23], v13, s[16:19], 0 offen sc1')
    A('buffer_load_dwordx2 v[24:25], v14, s[16:19], 0 offen sc1')
    K.waitall_vm()
    A('v_max3_u32 v15, v16, v17, v18'); A('v_max3_u32 v15, v15, v19, v20'); A('v_max3_u32 v15, v15, v22, v23'); A('v_max_u32 v15, v15, v24')
    A('v_cmp_eq_u32 vcc, -1, v15')
    K.poll_end(L)
    K.stamp('h6')
    A('v_mov_b32 v26, 0'); A('v_mov_b32 v27, 0')
    for i in range(5):
        A(f'v_lshlrev_b32 v28, 16, v{16+i}'); A(f'v_and_b32 v29, 0xffff0000, v{16+i}')
        A('v_pk_add_f32 v[26:27], v[26:27], v[28:29]')
    K.xsum_g([26, 27], 28)
    A('s_lshl_b32 s49, s3, 7'); A(f's_add_u32 s49, s49, {L_FIN}')
    A('v_lshlrev_b32 v28, 3, v8'); A('v_add_u32 v28, s49, v28')
    A('s_mov_b64 exec, 0xffff'); A('ds_write_b64 v28, v[26:27]', 'f'); A('s_mov_b64 exec, -1')
    K.barrier()
    A('s_cmp_lg_u32 s3, 0'); A('s_cbranch_scc1 K1_FIN')
    A('v_lshlrev_b32 v28, 3, v8'); A(f'v_add_u32 v28, {L_FIN}, v28')
    for w in range(8): A(f'ds_read_b64 v[{32+2*w}:{33+2*w}], v28 offset:{w*128}', 'f')
    A.wait_lg()
    for st in (1, 2, 4):
        for w in range(0, 8, 2*st): A(f'v_pk_add_f32 v[{32+2*w}:{33+2*w}], v[{32+2*w}:{33+2*w}], v[{32+2*(w+st)}:{33+2*(w+st)}]')
    A('v_mul_f32 v26, 0xbfb8aa3b, v25'); A('v_exp_f32 v26, v26'); A('v_add_f32 v26, 1.0, v26'); A('v_rcp_f32 v26, v26')
    A('v_fma_f32 v22, v32, v26, v22'); A('v_fma_f32 v23, v33, v26, v23')
    A('v_cvt_pk_bf16_f32 v22, v22, v23')
    A('v_mul_u32_u24 v28, 1152, v24'); A('v_lshl_add_u32 v28, v8, 2, v28'); A('s_lshl_b32 s49, s48, 6'); A('v_add_u32 v28, s49, v28')
    A('s_mov_b64 exec, 0xffff')
    A('buffer_store_dword v22, v28, s[24:27], 0 offen')
    A('s_mov_b64 exec, -1')
```

```python
import os
from asmlib import *
from layout import *
BIG = 0x40000000
FILLAT = os.environ.get('FILLAT', 'late')
RAWF = os.environ.get('RAWF', '')
LOG2E = 0x3FB8AA3B

def srd(A, d, lo, hi, size):
    A(f's_mov_b32 s{d}, s{lo}'); A(f's_mov_b32 s{d+1}, s{hi}')
    A(f's_mov_b32 s{d+2}, {size}'); A(f's_mov_b32 s{d+3}, 0x20000')

def group_flag_addr(A, r, base):
    a, b, c, d = r-4, r-3, r-2, r-1
    A(f'v_and_b32 v{a}, 15, v0'); A(f'v_bfe_u32 v{b}, v0, 4, 1')
    A(f'v_mov_b32 v{c}, s40'); A(f'v_mov_b32 v{d}, s41')
    A(f'v_cmp_eq_u32 vcc, 0, v{b}')
    A(f'v_cndmask_b32 v{c}, v{a}, v{c}, vcc')
    A(f'v_cndmask_b32 v{d}, v{d}, v{a}, vcc')
    A(f'v_and_b32 v{r}, 3, v{c}'); A(f'v_lshlrev_b32 v{r}, 3, v{r}'); A(f'v_and_b32 v{r+1}, 7, v{d}'); A(f'v_or_b32 v{r}, v{r}, v{r+1}'); A(f'v_lshlrev_b32 v{r}, 3, v{r}')
    A(f'v_lshrrev_b32 v{r+1}, 2, v{c}'); A(f'v_lshl_or_b32 v{r}, v{r+1}, 1, v{r}'); A(f'v_lshrrev_b32 v{r+1}, 3, v{d}'); A(f'v_or_b32 v{r}, v{r}, v{r+1}')
    A(f'v_lshlrev_b32 v{r}, 7, v{r}'); A(f'v_add_u32 v{r}, {base}, v{r}')

def moe_prefetch_wave(K, pol):
    A = K.A
    srd(A, 20, 8, 9, 576*9216); srd(A, 24, 10, 11, 576*9216); srd(A, 28, 12, 13, 4608*1152)
    A('s_mul_i32 s46, s45, 162')
    for i in range(3):
        t = 20 + 4*i
        A(f'v_add_u32 v{t}, {64*i}, v0'); A(f'v_cmp_gt_u32 vcc, 162, v{t}'); A(f'v_add_u32 v{t}, s46, v{t}')
        A(f'v_mul_u32_u24 v{t+1}, 7282, v{t}'); A(f'v_lshrrev_b32 v{t+1}, 16, v{t+1}')
        A(f'v_mul_u32_u24 v{t+2}, 9, v{t+1}'); A(f'v_sub_u32 v{t+2}, v{t}, v{t+2}')
        A(f'v_mul_u32_u24 v{t+1}, 9216, v{t+1}'); A(f'v_lshl_add_u32 v{t+1}, v{t+2}, 7, v{t+1}')
        A('s_mul_i32 s47, s44, 1152'); A(f'v_add_u32 v{t+1}, s47, v{t+1}')
        A(f'v_lshlrev_b32 v{t+2}, 7, v{t}'); A(f's_mul_i32 s47, s44, {18*36864}'); A(f'v_add_u32 v{t+2}, s47, v{t+2}')
        A(f'v_mov_b32 v{t+3}, {BIG}')
        A(f'v_cndmask_b32 v{t+1}, v{t+3}, v{t+1}, vcc'); A(f'v_cndmask_b32 v{t+2}, v{t+3}, v{t+2}, vcc')
        A(f'buffer_load_dword a143, v{t+1}, s[20:23], 0 offen {pol}')
        A(f'buffer_load_dword a143, v{t+1}, s[24:27], 0 offen {pol}')
        A(f'buffer_load_dword a143, v{t+2}, s[28:31], 0 offen {pol}')

def s0(K, code_sym, code_kb):
    A = K.A
    JOIN = 'S0_JOIN'
    def fills():
        srd(A, 28, 6, 7, FILL_END)
        A('s_lshl_b32 s46, s2, 3'); A('s_add_u32 s46, s46, s3'); A('s_lshl_b32 s46, s46, 11'); A(f's_add_u32 s46, s46, {FILL_OFF}')
        for r in range(8, 12): A(f'v_mov_b32 v{r}, -1')
        A('v_add_u32 v12, s46, v1')
        A('buffer_store_dwordx4 v[8:11], v12, s[28:31], 0 offen sc1', 'fill')
        A('buffer_store_dwordx4 v[8:11], v12, s[28:31], 0 offen offset:1024 sc1', 'fill')
        A('s_lshl_b32 s46, s41, 4'); A('s_add_u32 s46, s46, s40'); A(f's_mul_i32 s46, s46, {KVP_ONE}')
        A('s_mul_i32 s47, s3, 960'); A('s_add_u32 s46, s46, s47'); A(f's_add_u32 s46, s46, {KVP_OFF}')
        A('v_add_u32 v12, s46, v1'); A(f'v_mov_b32 v13, {BIG}'); A('v_cmp_gt_u32 vcc, 60, v0'); A('v_cndmask_b32 v12, v13, v12, vcc')
        A('buffer_store_dwordx4 v[8:11], v12, s[28:31], 0 offen sc1', 'fill')
    if FILLAT == 'pre': fills()
    A('s_cmp_eq_u32 s3, 7'); A('s_cbranch_scc1 S0_E')
    A('s_cmp_eq_u32 s3, 5'); A('s_cbranch_scc1 S0_M')
    A('s_cmp_eq_u32 s3, 4'); A('s_cbranch_scc1 S0_O')
    A('s_sub_u32 s46, s3, 1'); A('s_cmp_lt_u32 s46, 3'); A('s_cbranch_scc1 S0_W')

    A.label('S0_X'); A.vm = []; A.hist = []
    srd(A, 20, 4, 5, 2048*1152)
    A('s_lshl_b32 s46, s40, 7'); A('s_lshl_b32 s47, s41, 3'); A('s_add_u32 s46, s46, s47')
    A('s_cmp_eq_u32 s3, 6'); A('s_cselect_b32 s47, 4, 0'); A('s_add_u32 s46, s46, s47')
    A('v_add_u32 v14, s46, v3')
    A('v_mul_u32_u24 v15, 1152, v14'); A('v_lshl_add_u32 v15, v2, 4, v15')
    A(f'v_mov_b32 v13, {BIG}'); A('v_cmp_gt_u32 vcc, 8, v2'); A('v_cndmask_b32 v36, v13, v15, vcc')
    X = 16
    for i in range(4):
        A(f'buffer_load_dwordx4 v[{X+4*i}:{X+4*i+3}], v15, s[20:23], 0 offen offset:{i*256} {RAWF}', 'x')
    A(f'buffer_load_dwordx4 v[{X+16}:{X+19}], v36, s[20:23], 0 offen offset:1024 {RAWF}', 'x')
    if FILLAT == 'mid': fills()
    A('v_lshrrev_b32 v37, 4, v14'); A('v_mul_u32_u24 v37, 18432, v37')
    A('v_and_b32 v14, 15, v14'); A('v_lshl_add_u32 v37, v14, 4, v37')
    A('v_lshrrev_b32 v14, 2, v2'); A('v_lshl_add_u32 v37, v14, 10, v37')
    A('v_and_b32 v14, 3, v2'); A('v_lshl_add_u32 v37, v14, 8, v37')
    A('v_add_u32 v38, 16384, v37'); A('v_cmp_gt_u32 vcc, 8, v2'); A('v_cndmask_b32 v38, v13, v38, vcc')
    A('s_mov_b32 s46, 0x3f803f80')
    for r in range(40, 48): A(f'v_mov_b32 v{r}, 0')
    K.stamp('s0iss')
    A.wait_vm('x')
    K.stamp('s0ld')
    for k in range(20):
        A(f'v_dot2c_f32_bf16 v{40+(k&3)}, s46, v{X+k}')
        A(f'v_dot2c_f32_bf16 v{44+(k&3)}, v{X+k}, v{X+k}')
    A('v_add_f32 v40, v40, v41'); A('v_add_f32 v42, v42, v43'); A('v_add_f32 v44, v44, v45'); A('v_add_f32 v46, v46, v47')
    A('v_add_f32 v40, v40, v42'); A('v_add_f32 v44, v44, v46')
    for mod in ('quad_perm:[1,0,3,2]', 'quad_perm:[2,3,0,1]', 'row_half_mirror', 'row_mirror'):
        A(f'v_add_f32_dpp v40, v40, v40 {mod} row_mask:0xf bank_mask:0xf')
        A(f'v_add_f32_dpp v44, v44, v44 {mod} row_mask:0xf bank_mask:0xf')
    A('s_mov_b32 s46, 0x3AE38E39')
    A('v_mul_f32 v40, s46, v40'); A('v_mul_f32 v44, s46, v44')
    A('v_fma_f32 v44, -v40, v40, v44'); A('v_add_f32 v44, 0x3727c5ac, v44'); A('v_rsq_f32 v44, v44')
    A('v_mul_f32 v40, v40, v44'); A('v_sub_f32 v40, 0, v40')
    A('v_mov_b32 v45, v44'); A('v_mov_b32 v41, v40')
    for i in range(5):
        for k in range(4):
            r = X + 4*i + k
            A(f'v_lshlrev_b32 v48, 16, v{r}'); A(f'v_and_b32 v49, 0xffff0000, v{r}')
            A('v_pk_fma_f32 v[48:49], v[48:49], v[44:45], v[40:41]')
            A(f'v_cvt_pk_bf16_f32 v{r}, v48, v49')
        if i < 4:
            A(f's_mov_b32 s46, {i*4096}')
            A(f'buffer_store_dwordx4 v[{X+4*i}:{X+4*i+3}], v37, s[16:19], s46 offen sc1', 'st')
        else:
            A(f'buffer_store_dwordx4 v[{X+16}:{X+19}], v38, s[16:19], 0 offen sc1', 'st')
    A(f's_branch {JOIN}')

    A.label('S0_W'); A.vm = []; A.hist = []
    A('s_sub_u32 s48, s3, 1'); A('s_lshl_b32 s48, s48, 4'); A('s_add_u32 s48, s48, s40')
    A('s_cmp_ge_u32 s48, 36'); A('s_cbranch_scc1 S0_M')
    srd(A, 24, 34, 35, 32*648)
    srd(A, 20, 32, 33, 576*3456)
    PH = 16
    A('v_lshrrev_b32 v14, 2, v2'); A('v_lshlrev_b32 v14, 3, v14'); A('v_and_b32 v15, 3, v2'); A('v_add_u32 v14, v14, v15')
    A(f'v_mov_b32 v13, {BIG}')
    A('v_cmp_gt_u32 vcc, 18, v14'); A('v_add_u32 v12, 4, v14'); A('v_cmp_gt_u32 s[50:51], 18, v12')
    A('v_mul_u32_u24 v14, 36, v14'); A('v_lshl_add_u32 v14, v3, 4, v14')
    A('s_mul_i32 s46, s41, 1296'); A('v_add_u32 v14, s46, v14'); A('v_add_u32 v15, 144, v14')
    A('v_cndmask_b32 v14, v13, v14, vcc'); A('v_cndmask_b32 v15, v13, v15, s[50:51]')
    for hd in range(2):
        A(f'buffer_load_dwordx4 v[{PH+8*hd}:{PH+8*hd+3}], v14, s[24:27], 0 offen offset:{hd*648} {RAWF}', 'b')
        A(f'buffer_load_dwordx4 v[{PH+8*hd+4}:{PH+8*hd+7}], v15, s[24:27], 0 offen offset:{hd*648} {RAWF}', 'b')
    A('s_lshl_b32 s46, s48, 4')
    A('v_add_u32 v14, s46, v2'); A('v_mul_u32_u24 v14, 3456, v14')
    A('s_mul_i32 s46, s41, 72'); A('v_add_u32 v14, s46, v14')
    A('v_lshl_add_u32 v14, v3, 4, v14')
    AF = 32
    for sec in (1, 2, 0):
        for hd in range(2):
            r = AF + (sec*2+hd)*4
            A(f'buffer_load_dwordx4 v[{r}:{r+3}], v14, s[20:23], 0 offen offset:{sec*1152+hd*36} {RAWF}', 'a')
    K.stamp('s0iss')
    if FILLAT == 'mid': fills()
    ID, BF = 56, 64
    A('v_lshlrev_b32 v97, 3, v3'); A('v_sub_u32 v97, v2, v97')
    A('v_mov_b32 v98, 100'); A('v_cmp_gt_u32 vcc, 9, v2'); A('v_cndmask_b32 v97, v98, v97, vcc')
    A('v_mov_b32 v98, 0x3f80'); A('v_mov_b32 v99, 0x3f800000'); A('v_mov_b32 v100, 0')
    for p in range(2):
        if p == 1: A('v_add_u32 v97, 9, v97')
        for m in range(4):
            r = ID + p*4 + m
            A(f'v_cmp_eq_u32 vcc, {2*m}, v97'); A(f'v_cndmask_b32 v{r}, v100, v98, vcc')
            A(f'v_cmp_eq_u32 vcc, {2*m+1}, v97'); A(f'v_cndmask_b32 v{r}, v{r}, v99, vcc')
    A('s_lshr_b32 s46, s48, 1'); A('s_mul_i32 s47, s46, 5120')
    A('s_lshl_b32 s49, s46, 11'); A('s_add_u32 s49, s49, %d' % (92160 - 5*1024))
    A(f's_mul_i32 s50, s41, {WP_J}'); A(f's_add_u32 s50, s50, {WP_OFF}')
    A('s_and_b32 s51, s48, 1'); A('s_lshl_b32 s51, s51, 9'); A('s_add_u32 s50, s50, s51')
    A('v_lshrrev_b32 v104, 1, v3'); A('v_lshlrev_b32 v104, 8, v104'); A('v_and_b32 v105, 1, v3'); A('v_lshl_add_u32 v104, v105, 3, v104')
    A('v_add_u32 v104, s50, v104')
    for base, r in ((0, 101), (9, 102), (18, 103)):
        A(f'v_add_u32 v105, {base}, v2'); A('v_lshrrev_b32 v106, 2, v105'); A('v_and_b32 v105, 3, v105')
        A('v_lshlrev_b32 v105, 4, v105'); A('v_lshl_add_u32 v105, v106, 10, v105')
        A('v_mov_b32 v107, s47'); A('v_mov_b32 v108, s49')
        A('v_cmp_gt_u32 vcc, 5, v106'); A('v_cndmask_b32 v107, v108, v107, vcc')
        A('v_add3_u32 v105, v105, v107, v104')
        A('v_cmp_gt_u32 vcc, 9, v2'); A(f'v_cndmask_b32 v{r}, v13, v105, vcc')
    A('s_mov_b32 s46, 0x%08x' % LOG2E); A('v_mov_b32 v110, s46')
    A.wait_vm('b')
    T0 = 80
    for hd in range(2):
        for p in range(2):
            for t in range(2):
                d = T0 + (p*2+t)*4
                A(f'v_mfma_f32_16x16x32_bf16 v[{d}:{d+3}], v[{PH+8*hd+4*t}:{PH+8*hd+4*t+3}], v[{ID+4*p}:{ID+4*p+3}], 0')
        for p in range(2):
            b = BF + (hd*2+p)*4
            for t in range(2):
                d = T0 + (p*2+t)*4
                A(f'v_cvt_pk_bf16_f32 v{b+2*t}, v{d}, v{d+1}'); A(f'v_cvt_pk_bf16_f32 v{b+2*t+1}, v{d+2}, v{d+3}')
    A.wait_vm('a')
    K.stamp('s0ld')
    order = [(sec, hd, p) for sec in (1, 2, 0) for hd in range(2) for p in range(2)]
    for grp in range(3):
        part = order[4*grp:4*grp+4]
        for t, (sec, hd, p) in enumerate(part):
            d = T0 + 4*t if grp != 1 else 16 + 4*t
            af = AF + (sec*2+hd)*4
            bf = (ID + p*4) if sec == 2 else BF + (hd*2+p)*4
            A(f'v_mfma_f32_16x16x32_bf16 v[{d}:{d+3}], v[{af}:{af+3}], v[{bf}:{bf+3}], 0')
        for t, (sec, hd, p) in enumerate(part):
            d = T0 + 4*t if grp != 1 else 16 + 4*t
            ar = {1: 101, 2: 102, 0: 103}[sec]
            if sec != 2:
                A(f'v_pk_mul_f32 v[{d}:{d+1}], v[{d}:{d+1}], v[110:111] op_sel_hi:[1,0]')
                A(f'v_pk_mul_f32 v[{d+2}:{d+3}], v[{d+2}:{d+3}], v[110:111] op_sel_hi:[1,0]')
            A(f'v_cvt_pk_bf16_f32 v{d}, v{d}, v{d+1}'); A(f'v_cvt_pk_bf16_f32 v{d+1}, v{d+2}, v{d+3}')
            A(f'buffer_store_dwordx2 v[{d}:{d+1}], v{ar}, s[16:19], 0 offen offset:{64*(2*hd+p)} sc1', 'st')
    A(f's_branch {JOIN}')

    A.label('S0_O'); A.vm = []; A.hist = []
    A('s_cmp_ge_u32 s2, 72'); A('s_cbranch_scc1 S0_M')
    srd(A, 20, 36, 37, 576*1152)
    A('s_and_b32 s48, s2, 3'); A('s_lshr_b32 s49, s2, 2')
    A('v_lshrrev_b32 v14, 3, v2'); A('s_lshl_b32 s46, s48, 3'); A('v_add_u32 v14, s46, v14'); A('v_mul_u32_u24 v14, 18, v14')
    A('v_bfe_u32 v15, v2, 2, 1'); A('v_mad_u32_u24 v14, v15, 9, v14')
    A('v_and_b32 v15, 3, v2')
    A('v_mad_u32_u24 v12, v15, 36, v14'); A('v_add_u32 v12, 8, v12')
    A('v_add_u32 v14, v14, v15')
    A('v_mul_u32_u24 v14, 1152, v14'); A('v_mul_u32_u24 v12, 1152, v12')
    A('s_lshl_b32 s46, s49, 6'); A('v_lshl_add_u32 v15, v3, 4, s46')
    A('v_add_u32 v14, v14, v15'); A('v_add_u32 v12, v12, v15')
    OA = 16
    for u in range(4):
        for h in range(2):
            A(f's_mov_b32 s{50+h}, {(36*u+4*h)*1152}')
            r = OA + (u*2+h)*4
            A(f'buffer_load_dwordx4 v[{r}:{r+3}], v14, s[20:23], s{50+h} offen {RAWF}', 'o')
    A(f'buffer_load_dwordx4 v[{OA+32}:{OA+35}], v12, s[20:23], 0 offen {RAWF}', 'o')
    K.stamp('s0iss')
    if FILLAT == 'mid': fills()
    OI = 52
    A('v_lshlrev_b32 v97, 3, v3'); A('v_sub_u32 v97, v2, v97')
    A('v_mov_b32 v98, 0x3f80'); A('v_mov_b32 v99, 0x3f800000'); A('v_mov_b32 v100, 0')
    for t in range(2):
        if t == 1: A('v_add_u32 v97, 16, v97')
        for m in range(4):
            r = OI + t*4 + m
            A(f'v_cmp_eq_u32 vcc, {2*m}, v97'); A(f'v_cndmask_b32 v{r}, v100, v98, vcc')
            A(f'v_cmp_eq_u32 vcc, {2*m+1}, v97'); A(f'v_cndmask_b32 v{r}, v{r}, v99, vcc')
    for t in range(2):
        A('s_lshl_b32 s46, s49, 1'); A(f's_add_u32 s46, s46, {t}')
        A('s_mul_hi_u32 s47, s46, 0x%x' % ((1 << 32)//9 + 1)); A('s_mul_i32 s50, s47, 9'); A('s_sub_u32 s50, s46, s50')
        A('s_lshl_b32 s47, s47, 2'); A('s_add_u32 s47, s47, s48'); A('s_mul_i32 s47, s47, 9'); A('s_add_u32 s47, s47, s50')
        A('s_mul_i32 s47, s47, 5120'); A(f's_add_u32 s47, s47, {WOP_OFF}')
        A(f'v_add_u32 v{10+t}, s47, v1')
    A.wait_vm('o')
    K.stamp('s0ld')
    for t in range(2):
        D = 60
        for q in range(9):
            A(f'v_mfma_f32_16x16x32_bf16 v[{D+4*q}:{D+4*q+3}], v[{OA+4*q}:{OA+4*q+3}], v[{OI+4*t}:{OI+4*t+3}], 0')
        for u in range(4):
            x_, y_ = D + 8*u, D + 8*u + 4
            A(f'v_cvt_pk_bf16_f32 v{x_}, v{x_}, v{x_+1}'); A(f'v_cvt_pk_bf16_f32 v{x_+1}, v{x_+2}, v{x_+3}')
            A(f'v_cvt_pk_bf16_f32 v{x_+2}, v{y_}, v{y_+1}'); A(f'v_cvt_pk_bf16_f32 v{x_+3}, v{y_+2}, v{y_+3}')
            A(f'buffer_store_dwordx4 v[{x_}:{x_+3}], v{10+t}, s[16:19], 0 offen offset:{u*1024} sc1', 'st')
        z = D + 32
        for i in range(4): A(f'v_cvt_pk_bf16_f32 v{z+i}, v{z+i}, 0')
        A('s_mov_b32 s46, 4096')
        A(f'buffer_store_dwordx4 v[{z}:{z+3}], v{10+t}, s[16:19], s46 offen sc1', 'st')
        A('s_nop 1')
    A(f's_branch {JOIN}')

    A.label('S0_E'); A.vm = []; A.hist = []
    A(f'v_mov_b32 v14, {EPOCH_OFF}')
    A('buffer_load_dword v20, v14, s[16:19], 0 offen sc1', 'ep')
    if FILLAT == 'mid': fills()
    A.wait_vm('ep')
    A('v_add_u32 v20, 1, v20')
    A('v_readfirstlane_b32 s63, v20')
    A(f's_branch {JOIN}')


    A.label('S0_M'); A.vm = []; A.hist = []
    if FILLAT == 'mid': fills()
    A('s_cmp_lg_u32 s2, 200'); A(f's_cbranch_scc1 {JOIN}')
    A('s_cmp_lg_u32 s3, 5'); A(f's_cbranch_scc1 {JOIN}')
    srd(A, 20, 38, 39, 1152)
    A('v_lshlrev_b32 v14, 2, v0')
    for i in range(5): A(f'buffer_load_dword v{16+i}, v14, s[20:23], 0 offen offset:{i*256}', 'm')
    A('s_mov_b32 s46, 0x3f803f80'); A('v_mov_b32 v24, 0')
    A.wait_vm('m')
    for i in range(5): A(f'v_dot2c_f32_bf16 v24, s46, v{16+i}')
    for mod in ('quad_perm:[1,0,3,2]', 'quad_perm:[2,3,0,1]', 'row_half_mirror', 'row_mirror'):
        A(f'v_add_f32_dpp v24, v24, v24 {mod} row_mask:0xf bank_mask:0xf')
    A('v_mov_b32 v25, v24'); A('v_permlane16_swap_b32 v24, v25'); A('v_add_f32 v24, v24, v25')
    A('v_mov_b32 v25, v24'); A('v_permlane32_swap_b32 v24, v25'); A('v_add_f32 v24, v24, v25')
    A('s_mov_b32 s46, 0x3AE38E39'); A('v_mul_f32 v24, s46, v24')
    A('v_lshlrev_b32 v14, 3, v0'); A(f'v_add_u32 v14, {WRC_OFF}, v14')
    for i in range(5):
        A(f'v_lshlrev_b32 v26, 16, v{16+i}'); A(f'v_and_b32 v27, 0xffff0000, v{16+i}')
        A('v_sub_f32 v26, v26, v24'); A('v_sub_f32 v27, v27, v24')
        A(f'buffer_store_dwordx2 v[26:27], v14, s[16:19], 0 offen offset:{i*512} sc1', 'st')
        A('s_nop 1')

    A.label(JOIN); A.hist = []
    K.stamp('s0work')
    if FILLAT == 'join': fills()
    K.waitall_vm()
    K.stamp('s0ack')
    if os.environ.get('PFS0'):
        NOP5 = A.newlabel('S0_NOPF')
        A('s_cmp_lg_u32 s3, 5'); A(f's_cbranch_scc1 {NOP5}')
        moe_prefetch_wave(K, os.environ.get('PFPOL', ''))
        A.label(NOP5); A.hist = []
    A('s_barrier')
    NPOLL = A.newlabel('S0_NP')
    A('s_cmp_lg_u32 s3, 7'); A(f's_cbranch_scc1 {NPOLL}')
    A('s_lshl_b32 s46, s2, 7'); A(f's_add_u32 s46, s46, {FLAG_OFF}')
    A('v_mov_b32 v14, s46'); A('v_mov_b32 v15, s63')
    A('s_mov_b64 exec, 1')
    A('buffer_store_dword v15, v14, s[16:19], 0 offen sc1')
    A('s_mov_b64 exec, -1')
    group_flag_addr(A, 20, FLAG_OFF)
    L = K.poll_begin()
    A('buffer_load_dword v21, v20, s[16:19], 0 offen sc1')
    K.waitall_vm()
    A('v_cmp_ne_u32 vcc, s63, v21')
    K.poll_end(L)
    A.label(NPOLL); A.hist = []
    A('s_barrier')
    K.stamp('s0flag')
```

```python
import os
from asmlib import *
from layout import *
from s0 import srd, BIG, s0, group_flag_addr

SPIN = 3000
LOG2E = 0x3FB8AA3B

L_W    = 0
L_IMG  = 0
L_RED  = 0
L_GU   = 73728
L_DN   = 0
L_R2   = 36864
L_KVT  = 147456
L_ZERO = L_KVT + 48*96
L_STAT = L_ZERO + 64
L_WMAX = L_STAT + 2048
L_RANK = L_WMAX + 64
L_AIMG = L_RANK + 128
L_FIN  = L_AIMG + 512
L_KVC  = L_FIN + 1024
L_TOK  = L_KVC + 6144
LDS_BYTES = 163840
assert L_TOK + 512 <= LDS_BYTES

NV = 112
ACC = 16
def acc(T, tt): return ACC + (T*2+tt)*4
WF = 72
NCT_H = 6

class K1:
    def __init__(self, stop=None, prof=False):
        self.A = Asm(); self.stop = stop; self.prof = prof; self.stamps = []
        self.PF = int(os.environ.get('PF', 5))
        self.nbar = 0

    def stamp(self, name):
        if not self.prof: return
        if name in os.environ.get('NOSTAMP', '').split(','): return
        if name in self.stamps: i = self.stamps.index(name)
        else:
            i = len(self.stamps); assert i < 19
            self.stamps.append(name)
        op = 's_memtime' if os.environ.get('CYC') else 's_memrealtime'
        self.A(f'{op} s[{64+2*i}:{65+2*i}]')
    def poll_begin(self):
        A = self.A
        L = A.newlabel('POLL')
        A(f's_mov_b32 s62, {SPIN}')
        A.label(L)
        return L
    def poll_end(self, L, name=None):
        A = self.A
        D = A.newlabel('PDONE')
        A(f's_cbranch_vccz {D}')
        A('s_sub_u32 s62, s62, 1')
        A(f's_cbranch_scc1 {D}')
        A('s_sleep %s' % os.environ.get('SLEEP', '1'))
        A(f's_branch {L}')
        A.label(D)
        if self.prof and os.environ.get('CNT'):
            self.npoll = getattr(self, 'npoll', 0) + 1
            nm = f'cnt{self.npoll}'
            i = len(self.stamps); assert i < 19
            self.stamps.append(nm)
            A(f's_sub_u32 s{64+2*i}, {SPIN}, s62')
    def waitall_vm(self):
        self.A('s_waitcnt vmcnt(0)'); self.A.vm = []
    def bar(self):
        self.A('s_barrier'); self.nbar += 1
    def barrier(self):
        self.A.wait_lg(); self.bar()
    def xsum_g(self, regs, tmp):
        A = self.A
        for swap in ('v_permlane16_swap_b32', 'v_permlane32_swap_b32'):
            for i, r in enumerate(regs): A(f'v_mov_b32 v{tmp+i}, v{r}')
            for i, r in enumerate(regs): A(f'{swap} v{r}, v{tmp+i}')
            for i, r in enumerate(regs): A(f'v_add_f32 v{r}, v{r}, v{tmp+i}')

    def prologue(self):
        A = self.A
        A('s_cmp_ge_u32 s2, 256'); A('s_cbranch_scc1 K1_END')
        A('s_getpc_b64 s[46:47]')
        A('v_lshlrev_b32 v5, 4, v0')
        A('global_load_dwordx4 a[140:143], v5, s[46:47]', 'pf')
        A('s_load_dwordx2 s[6:7], s[0:1], 88')
        A('s_load_dwordx2 s[4:5], s[0:1], 0')
        A('s_load_dwordx4 s[32:35], s[0:1], 8')
        A('s_load_dwordx2 s[36:37], s[0:1], 24')
        A('s_load_dwordx2 s[38:39], s[0:1], 40')
        A('s_load_dwordx4 s[8:11], s[0:1], 48')
        A('s_load_dwordx4 s[12:15], s[0:1], 64')
        npieces = int(os.environ.get('CODE4K', 7)) - 2
        A('s_lshr_b32 s48, s2, 3'); A(f's_mul_hi_u32 s49, s48, {(1 << 32)//npieces + 1}'); A(f's_mul_i32 s49, s49, {npieces}')
        A('s_sub_u32 s48, s48, s49'); A('s_add_u32 s48, s48, 2'); A('s_lshl_b32 s48, s48, 12')
        A('v_and_b32 v5, 0xfff, v5'); A('v_add_u32 v5, s48, v5')
        A('global_load_dwordx4 a[136:139], v5, s[46:47]', 'pf')
        A('v_mov_b32 v4, v0')
        A('v_lshrrev_b32 v1, 6, v0')
        A('v_and_b32 v0, 63, v0')
        A('v_readfirstlane_b32 s3, v1')
        A('v_lshlrev_b32 v1, 4, v0')
        A('s_and_b32 s44, s2, 7'); A('s_lshr_b32 s45, s2, 3')
        A('s_lshr_b32 s40, s44, 1'); A('s_lshl_b32 s40, s40, 2'); A('s_lshr_b32 s46, s45, 3'); A('s_add_u32 s40, s40, s46')
        A('s_and_b32 s41, s44, 1'); A('s_lshl_b32 s41, s41, 3'); A('s_and_b32 s46, s45, 7'); A('s_add_u32 s41, s41, s46')
        A('s_lshl_b32 s42, s40, 2'); A('s_lshr_b32 s46, s41, 2'); A('s_add_u32 s42, s42, s46')
        A('s_and_b32 s43, s41, 3')
        A('s_and_b32 s55, s3, 3')
        A('v_and_b32 v2, 15, v0')
        A('v_lshrrev_b32 v3, 4, v0')
        A('s_waitcnt lgkmcnt(0)')
        srd(A, 16, 6, 7, WS_USED)

    def other_srds(self):
        A = self.A
        srd(A, 20, 4, 5, 2048*1152)
        srd(A, 24, 14, 15, 2048*1152)
        srd(A, 28, 8, 9, 576*9216)
        srd(A, 32, 10, 11, 576*9216)
        srd(A, 36, 12, 13, 4608*1152)

    steps_for_chunk = [[0,1,2],[3,4,5],[6,7,8],[9,10,11],[12,13,14,15],[16,17]]

    def c_gemm1(self):
        A = self.A
        A('s_lshl_b32 s46, s40, 3'); A('s_lshl_b32 s47, s55, 1'); A('s_add_u32 s46, s46, s47')
        A('s_mul_i32 s46, s46, 18432')
        A('v_add_u32 v5, s46, v1')
        def xload1(s_, tt):
            A(f's_mov_b32 s49, {tt*18432 + (s_//4)*4096}')
            r = (tt*18+s_)*4
            A(f'buffer_load_dwordx4 a[{r}:{r+3}], v5, s[16:19], s49 offen offset:{(s_%4)*1024}', ('x', s_))
        todo = [(s_, tt) for s_ in range(18) for tt in range(2)]
        P = self.PF
        def issue_upto(step, maxn=None):
            n = 0
            while todo and todo[0][0] <= step and (maxn is None or n < maxn):
                xload1(*todo.pop(0)); n += 1
        issue_upto(P - 1)
        self.other_srds()
        A('v_add_u32 v6, 0x10000, v1')
        def wread(frag, dst, tag):
            if frag < 64: A(f'ds_read_b128 v[{dst}:{dst+3}], v1 offset:{frag*1024}', tag)
            else: A(f'ds_read_b128 v[{dst}:{dst+3}], v6 offset:{(frag-64)*1024}', tag)
        self.wread = wread
        chunk_of = {}
        for c, ss in enumerate(self.steps_for_chunk):
            for s_ in ss: chunk_of[s_] = c
        fill = self.c_setup_list()
        self.stamp('issued')
        self.bar()
        self.stamp('chunk0')
        for T in range(5): wread(T, WF + 4*T, ('r', 0, T))
        for s_ in range(18):
            buf = WF + (s_ & 1)*20; nbuf = WF + ((s_+1) & 1)*20
            for T in range(5):
                A.wait_lg(('r', s_, T))
                if T == 0: A.wait_vm(('x', s_))
                for tt in range(2):
                    d = acc(T, tt); x = (tt*18+s_)*4
                    c = '0' if s_ == 0 else f'v[{d}:{d+3}]'
                    A(f'v_mfma_f32_16x16x32_bf16 v[{d}:{d+3}], v[{buf+4*T}:{buf+4*T+3}], a[{x}:{x+3}], {c}')
                if s_ + 1 < 18:
                    if T == 0 and chunk_of[s_+1] != chunk_of[s_]: self.bar()
                    wread((s_+1)*5+T, nbuf + 4*T, ('r', s_+1, T))
                if T in (1, 3): issue_upto(s_ + P, 1)
                if T in (2, 4) and fill and s_ >= 1: A(fill.pop(0))
            issue_upto(s_ + P)
        for f in fill: A(f)

    def c_setup_list(self):
        f = []
        f += ['v_and_b32 v14, 1, v3', 'v_cmp_eq_u32 vcc, 0, v14', 'v_mov_b32 v15, 1.0', 's_nop 0', 'v_cndmask_b32 v7, 0, v15, vcc']
        f += ['s_lshl_b32 s46, s55, 5', 'v_add_u32 v8, s46, v2', 'v_mul_u32_u24 v8, 288, v8', 'v_lshl_add_u32 v8, v3, 6, v8']
        return f

    def c_setup2(self):
        A = self.A
        t0, t1, t2, t3, t4 = 100, 101, 102, 103, 104
        A(f'v_lshrrev_b32 v{t0}, 2, v2')
        A(f'v_and_b32 v{t1}, 3, v2')
        A(f'v_lshrrev_b32 v{t2}, 1, v{t0}')
        A(f'v_and_b32 v{t0}, 1, v{t0}')
        A(f'v_lshrrev_b32 v{t3}, 1, v3')
        A(f'v_cmp_eq_u32 s[52:53], v{t2}, v{t3}')
        A(f'v_mul_u32_u24 v{t2}, 24, v{t2}')
        A(f'v_and_b32 v{t3}, 1, v3'); A(f'v_mul_u32_u24 v{t3}, 48, v{t3}')
        A(f'v_add_u32 v{t3}, {L_KVT}, v{t3}')
        A(f'v_mov_b32 v{t4}, {L_ZERO}')
        for To in range(3):
            A(f'v_add_u32 v14, {4*To}, v{t1}')
            A(f'v_mad_u32_u24 v15, v{t0}, 12, v14')
            A('v_cmp_eq_u32 vcc, 9, v14'); A('v_cndmask_b32 v15, v15, v14, vcc')
            A(f'v_add_u32 v15, v{t2}, v15'); A('v_mul_u32_u24 v15, 96, v15'); A(f'v_add_u32 v15, v15, v{t3}')
            A('v_cmp_ge_u32 vcc, 9, v14'); A('s_and_b64 vcc, vcc, s[52:53]')
            A(f'v_cndmask_b32 v{9+To}, v{t4}, v15, vcc')
        A('s_lshl_b32 s46, s40, 3'); A('s_lshl_b32 s47, s55, 1'); A('s_add_u32 s46, s46, s47')
        A('s_lshl_b32 s46, s46, 4'); A('s_add_u32 s46, s46, s41')
        A('s_lshl_b32 s47, s46, 10'); A(f's_add_u32 s47, s47, {OPM_OFF}'); A('v_add_u32 v12, s47, v1')
        A('s_lshl_b32 s47, s46, 8'); A(f's_add_u32 s47, s47, {OPT_OFF}'); A('v_lshlrev_b32 v13, 2, v0'); A('v_add_u32 v13, s47, v13')

    def c_part2(self):
        A = self.A; wread = self.wread
        for T in range(2): wread(90 + T, WF + 4*T, ('r2', 0, T))
        for s_ in range(18):
            buf = WF + (s_ & 1)*8; nbuf = WF + ((s_+1) & 1)*8
            for T in range(2):
                A.wait_lg(('r2', s_, T))
                for tt in range(2):
                    d = acc(5+T, tt); x = (tt*18+s_)*4
                    c = '0' if s_ == 0 else f'v[{d}:{d+3}]'
                    A(f'v_mfma_f32_16x16x32_bf16 v[{d}:{d+3}], v[{buf+4*T}:{buf+4*T+3}], a[{x}:{x+3}], {c}')
                if s_ + 1 < 18: wread(90 + (s_+1)*2+T, nbuf + 4*T, ('r2', s_+1, T))

    def softmax9(self, r, out, t0):
        A = self.A
        ep = [t0 + 2*i for i in range(9)]; em = [t0 + 2*i + 1 for i in range(9)]
        mx, mn, t1, t2 = t0+18, t0+19, t0+20, t0+21
        assert t0 % 2 == 0
        A(f'v_max3_f32 v{mx}, v{r[0]}, v{r[1]}, v{r[2]}'); A(f'v_min3_f32 v{mn}, v{r[0]}, v{r[1]}, v{r[2]}')
        A(f'v_max3_f32 v{t1}, v{r[3]}, v{r[4]}, v{r[5]}'); A(f'v_min3_f32 v{t2}, v{r[3]}, v{r[4]}, v{r[5]}')
        A(f'v_max3_f32 v{mx}, v{mx}, v{r[6]}, v{r[7]}'); A(f'v_min3_f32 v{mn}, v{mn}, v{r[6]}, v{r[7]}')
        A(f'v_max3_f32 v{mx}, v{mx}, v{t1}, v{r[8]}'); A(f'v_min3_f32 v{mn}, v{mn}, v{t2}, v{r[8]}')
        A(f'v_mov_b32 v{t1}, v{mx}'); A(f'v_mov_b32 v{t2}, v{mn}')
        A(f'v_permlane16_swap_b32 v{mx}, v{t1}'); A(f'v_permlane16_swap_b32 v{mn}, v{t2}')
        A(f'v_max_f32 v{mx}, v{mx}, v{t1}'); A(f'v_min_f32 v{mn}, v{mn}, v{t2}')
        for i in range(9):
            A(f'v_sub_f32 v{ep[i]}, v{r[i]}, v{mx}'); A(f'v_sub_f32 v{em[i]}, v{mn}, v{r[i]}')
        for i in range(9):
            A(f'v_exp_f32 v{ep[i]}, v{ep[i]}'); A(f'v_exp_f32 v{em[i]}, v{em[i]}')
        A(f'v_pk_add_f32 v[{mx}:{mn}], v[{ep[0]}:{em[0]}], v[{ep[1]}:{em[1]}]')
        A(f'v_pk_add_f32 v[{t1}:{t2}], v[{ep[2]}:{em[2]}], v[{ep[3]}:{em[3]}]')
        for i in (4, 6):
            A(f'v_pk_add_f32 v[{mx}:{mn}], v[{mx}:{mn}], v[{ep[i]}:{em[i]}]')
            A(f'v_pk_add_f32 v[{t1}:{t2}], v[{t1}:{t2}], v[{ep[i+1]}:{em[i+1]}]')
        A(f'v_pk_add_f32 v[{mx}:{mn}], v[{mx}:{mn}], v[{ep[8]}:{em[8]}]')
        A(f'v_pk_add_f32 v[{mx}:{mn}], v[{mx}:{mn}], v[{t1}:{t2}]')
        A(f'v_mov_b32 v{t1}, v{mx}'); A(f'v_mov_b32 v{t2}, v{mn}')
        A(f'v_permlane16_swap_b32 v{mx}, v{t1}'); A(f'v_permlane16_swap_b32 v{mn}, v{t2}')
        A(f'v_pk_add_f32 v[{mx}:{mn}], v[{mx}:{mn}], v[{t1}:{t2}]')
        A(f'v_rcp_f32 v{mx}, v{mx}'); A(f'v_rcp_f32 v{mn}, v{mn}')
        for i in range(9):
            A(f'v_pk_mul_f32 v[{ep[i]}:{em[i]}], v[{ep[i]}:{em[i]}], v[{mx}:{mn}]')
        for k, e in enumerate((ep, em)):
            for m in range(4): A(f'v_cvt_pk_bf16_f32 v{out+5*k+m}, v{e[2*m]}, v{e[2*m+1]}')
            A(f'v_cvt_pk_bf16_f32 v{out+5*k+4}, v{e[8]}, 0')

    def kregs(self, tt, base):
        return [acc((base+i) >> 2, tt) + ((base+i) & 3) for i in range(9)]

    def c_program(self):
        A = self.A
        self.c_gemm1()
        self.stamp('gemm1')
        self.bar()
        B, TMP = 72, 88
        for tt in range(2):
            self.softmax9(self.kregs(tt, 0), B, TMP)
            vv = self.kregs(tt, 9)
            for m in range(4): A(f'v_cvt_pk_bf16_f32 v{B+10+m}, v{vv[2*m]}, v{vv[2*m+1]}')
            A(f'v_cvt_pk_bf16_f32 v{B+14}, v{vv[8]}, v7')
            A(f'v_mov_b32 v{B+15}, 0')
            for q in range(4):
                A(f'ds_write_b128 v8, v[{B+4*q}:{B+4*q+3}] offset:{L_IMG + tt*16*288 + 16*q}', 'img')
            if tt == 0: A.wait_lg()
        self.stamp('softk')
        self.barrier()
        if os.environ.get('PFAT', 'BA') == 'BB': self.moe_prefetch('v4', 0, 100, ('v110', 'v111'))
        self.c_part2()
        self.stamp('gemm2')
        self.c_setup2()
        for tt in range(2):
            P = 16 + 12*tt
            self.softmax9(self.kregs(tt, 18), P, 88)
            A(f'v_mov_b32 v{P+10}, 0'); A(f'v_mov_b32 v{P+11}, 0')
        self.stamp('softq')
        if os.environ.get('CWO', 'post') == 'pre': self.wo_loads(NCT_H, 9 - NCT_H)
        self.bar()
        self.stamp('h1')
        AF, D = 40, 76
        for To in range(3):
            for s2 in range(3):
                a_ = AF + (To*3+s2)*4
                A(f'ds_read_b128 v[{a_}:{a_+3}], v{9+To} offset:{16*s2}', ('s2', To))
        for tt in range(2):
            P = 16 + 12*tt; Dt = D + 12*tt
            for To in range(3):
                if tt == 0: A.wait_lg(('s2', To))
                for s2 in range(3):
                    a_ = AF + (To*3+s2)*4; d = Dt + 4*To
                    c = '0' if s2 == 0 else f'v[{d}:{d+3}]'
                    A(f'v_mfma_f32_16x16x32_bf16 v[{d}:{d+3}], v[{a_}:{a_+3}], v[{P+4*s2}:{P+4*s2+3}], {c}')
        for tt in range(2):
            Dt = D + 12*tt; O = 100 + 6*tt
            A(f'v_add_f32 v14, 0x358637bd, v{Dt+9}')
            A('v_rcp_f32 v14, v14')
            for i in range(9): A(f'v_mul_f32 v{Dt+i}, v{Dt+i}, v14')
            O = 40 + 8*tt
            for m in range(4): A(f'v_cvt_pk_bf16_f32 v{O+m}, v{Dt+2*m}, v{Dt+2*m+1}')
            A(f'v_cvt_pk_bf16_f32 v{O+4}, v{Dt+8}, 0')
            A(f's_mov_b32 s46, {tt*16384}'); A(f's_mov_b32 s47, {tt*4096}')
            A(f'buffer_store_dwordx4 v[{O}:{O+3}], v12, s[16:19], s46 offen sc1', 'op')
            A(f'buffer_store_dword v{O+4}, v13, s[16:19], s47 offen sc1', 'op')
        self.stamp('opub')
        if os.environ.get('CWO', 'post') != 'pre': self.wo_loads(NCT_H, 9 - NCT_H)

    def moe_prefetch(self, vtid, w0, t, dst):
        A = self.A
        if not os.environ.get('MOEPF'): return
        pol = os.environ.get('MPFPOL', '')
        A('s_mul_i32 s46, s45, 162')
        A(f'v_add_u32 v{t}, s46, {vtid}')
        A(f'v_mul_u32_u24 v{t+1}, 7282, v{t}'); A(f'v_lshrrev_b32 v{t+1}, 16, v{t+1}')
        A(f'v_mul_u32_u24 v{t+2}, 9, v{t+1}'); A(f'v_sub_u32 v{t+2}, v{t}, v{t+2}')
        A(f'v_mul_u32_u24 v{t+1}, 9216, v{t+1}'); A(f'v_lshl_add_u32 v{t+1}, v{t+2}, 7, v{t+1}')
        A('s_mul_i32 s46, s44, 1152'); A(f'v_add_u32 v{t+1}, s46, v{t+1}')
        A(f'v_lshlrev_b32 v{t+2}, 7, v{t}'); A(f's_mul_i32 s46, s44, {18*36864}'); A(f'v_add_u32 v{t+2}, s46, v{t+2}')
        A(f'v_mov_b32 v{t+3}, {BIG}'); A(f'v_cmp_gt_u32 vcc, 162, {vtid}')
        A(f'v_cndmask_b32 v{t+1}, v{t+3}, v{t+1}, vcc'); A(f'v_cndmask_b32 v{t+2}, v{t+3}, v{t+2}, vcc')
        A(f'buffer_load_dword {dst[0]}, v{t+1}, s[28:31], 0 offen {pol}', 'mpf')
        A(f'buffer_load_dword {dst[1]}, v{t+1}, s[32:35], 0 offen {pol}', 'mpf')
        A(f'buffer_load_dword {dst[1]}, v{t+2}, s[36:39], 0 offen {pol}', 'mpf')

    def wo_loads(self, ct0, n, i0=0, i1=None, areg=14, recompute=False):
        A = self.A
        if i1 is None: i1 = n*5
        if i0 == 0 or recompute:
            A('s_lshl_b32 s46, s43, 2'); A('s_add_u32 s46, s46, s55'); A('s_mul_i32 s46, s46, 9'); A(f's_add_u32 s46, s46, {ct0}')
            A('s_mul_i32 s46, s46, 5120'); A(f's_add_u32 s46, s46, {WOP_OFF}')
            A(f'v_add_u32 v{areg}, s46, v1')
        for i in range(i0, i1):
            if i % 4 == 0 or i == i0: A(f's_mov_b32 s47, {(i//4)*4096}')
            A(f'buffer_load_dwordx4 a[{4*i}:{4*i+3}], v{areg}, s[16:19], s47 offen offset:{(i%4)*1024}', 'wo')

    def h_program(self):
        A = self.A
        A(f's_mul_i32 s46, s41, {WP_J}'); A(f's_add_u32 s46, s46, {WP_OFF}')
        A('s_lshl_b32 s54, s55, 12'); A('s_add_u32 s46, s46, s54')
        A('v_add_u32 v5, s46, v1')
        def dma(c):
            A(f's_add_u32 m0, s54, {c*16384}')
            A(f's_mov_b32 s48, {c*16384}')
            for i in range(4):
                A(f'buffer_load_dwordx4 v5, s[16:19], s48 offen offset:{i*1024} lds', ('w', c))
        LA = int(os.environ.get('LA', 3))
        for c in range(LA): dma(c)
        self.other_srds()
        n16 = (L_AIMG - L_KVT)//16
        for r in range(8, 12): A(f'v_mov_b32 v{r}, 0')
        A('v_subrev_u32 v12, 256, v4')
        A('v_lshlrev_b32 v13, 4, v12'); A(f'v_add_u32 v13, {L_KVT}, v13')
        A('ds_write_b128 v13, v[8:11]', 'z')
        A(f'v_cmp_gt_u32 vcc, {n16-256}, v12')
        A('s_and_saveexec_b64 s[50:51], vcc')
        A('ds_write_b128 v13, v[8:11] offset:4096', 'z')
        A('s_mov_b64 exec, s[50:51]')
        A.wait_lg()
        self.stamp('issued')
        for c in range(6):
            A.wait_vm(('w', c)); self.bar()
            if c == 0: self.stamp('chunk0')
            if c + LA < 6: dma(c + LA)
            if c == 0: self.h_fills()
            if c == 5:
                assert LA <= 3
                NF = A.newlabel('NOF2')
                A('s_cmp_lg_u32 s3, 7'); A(f's_cbranch_scc1 {NF}')
                A('s_lshl_b32 s46, s2, 7'); A(f's_add_u32 s46, s46, {FLAG2_OFF}')
                A('v_mov_b32 v26, s46'); A('v_mov_b32 v27, s63')
                A('s_mov_b64 exec, 1')
                A('buffer_store_dword v27, v26, s[16:19], 0 offen sc1')
                A('s_mov_b64 exec, -1')
                A.vm.pop()
                A.label(NF)
        self.h_setup()
        self.stamp('gemm1')
        self.bar()
        dma(6); dma(7)
        W1 = int(os.environ.get('W1', 8))
        self.wo_loads(0, NCT_H, 0, W1, areg=25)
        if os.environ.get('PFAT', 'BA') == 'BA': self.moe_prefetch('v12', 4, 26, ('a142', 'a143'))
        A.wait_vm([('w', 6), ('w', 7)])
        NF = A.newlabel('NOF2P')
        A('s_cmp_lg_u32 s3, 7'); A(f's_cbranch_scc1 {NF}')
        group_flag_addr(A, 32, FLAG2_OFF)
        vm_save = list(A.vm)
        L = self.poll_begin()
        A('buffer_load_dword v33, v32, s[16:19], 0 offen sc1')
        A('s_waitcnt vmcnt(0)')
        A('v_cmp_ne_u32 vcc, s63, v33')
        self.poll_end(L)
        A.vm = vm_save
        A.label(NF); A.hist = []
        self.stamp('softk')
        self.bar()
        AFr, BFr, D = 44, 92, 24
        for ks in range(4):
            rl = []
            for h in range(2):
                b = BFr + 4*ks + 2*h
                rl.append((f'ds_read_b64_tr_b16 v[{b}:{b+1}], v17 offset:{L_IMG + ks*9216 + h*4608}', ('kb', ks)))
            for T in range(3):
                for h in range(2):
                    a_ = AFr + (ks*3+T)*4 + 2*h
                    rl.append((f'ds_read_b64_tr_b16 v[{a_}:{a_+1}], v{14+T} offset:{L_IMG + ks*9216 + h*4608}', ('ka', ks)))
            for x in rl[:4]: A(*x)
            if ks >= 1: self._kvm(ks-1, AFr, BFr, D)
            for x in rl[4:]: A(*x)
        self._kvm(3, AFr, BFr, D)
        for T in range(3):
            A(f'ds_write_b128 v{19 if T == 2 else 18}, v[{D+4*T}:{D+4*T+3}] offset:{64*T if T < 2 else 0}', 'kc')
        A.wait_lg()
        for i in range(3): A(f'ds_read_b128 v[{D+4*i}:{D+4*i+3}], v37 offset:{1024*i}', ('kr', i))
        for i in range(3):
            A.wait_lg(('kr', i))
            A(f'buffer_store_dwordx4 v[{D+4*i}:{D+4*i+3}], v{38+i}, s[16:19], 0 offen offset:{1024*i} sc1', 'kvp')
        self.stamp('gemm2')
        LD = 32
        L1 = [96, 100, 104, 108, 28, 8, 14, 24+0]
        L1 = [96, 100, 104, 108, 28, 8, 14, 24]
        WOAT = os.environ.get('WOAT', 'pre')
        if WOAT == 'pre': self.wo_loads(0, NCT_H, W1, None, areg=42, recompute=True)
        if os.environ.get('LIGHT', '0') == '1':
            A('v_lshrrev_b32 v41, 1, v3'); A('v_mul_u32_u24 v41, 190, v41'); A('v_and_b32 v42, 1, v3'); A('v_mul_u32_u24 v42, 50, v42')
            A('v_add_u32 v41, v41, v42'); A('v_add_u32 v41, 139, v41'); A('v_lshlrev_b32 v41, 4, v41')
            A(f'v_mul_u32_u24 v42, {KVP_ONE}, v2'); A('v_add_u32 v41, v41, v42')
            A(f's_mul_i32 s46, s41, {16*KVP_ONE}'); A(f's_add_u32 s46, s46, {KVP_OFF}'); A('v_add_u32 v41, s46, v41')
            Lp = self.poll_begin()
            A('buffer_load_dword v42, v41, s[16:19], 0 offen sc1')
            self.waitall_vm()
            A('v_cmp_eq_u32 vcc, -1, v42')
            self.poll_end(Lp)
            self.stamp('h1l')
        L = self.poll_begin()
        for m in range(16):
            A(f's_mov_b32 s{46+(m&1)}, {m*KVP_ONE}')
            A(f'buffer_load_dwordx4 v[{LD+4*m}:{LD+4*m+3}], v20, s[16:19], s{46+(m&1)} offen sc1', 'kv')
        for m in range(8):
            A(f's_mov_b32 s{46+(m&1)}, {m*KVP_ONE}')
            A(f'buffer_load_dwordx4 v[{L1[m]}:{L1[m]+3}], v22, s[16:19], s{46+(m&1)} offen sc1', 'kv')
        self.waitall_vm()
        def padd(d, s_):
            for b in (0, 2): A(f'v_pk_add_f32 v[{d+b}:{d+b+1}], v[{d+b}:{d+b+1}], v[{s_+b}:{s_+b+1}]')
        for st in (1, 2, 4, 8):
            for m in range(0, 16, 2*st): padd(LD+4*m, LD+4*(m+st))
        for st in (1, 2, 4):
            for m in range(0, 8, 2*st): padd(L1[m], L1[m+st])
        E = L1[0]
        for b in range(4): A(f'v_add_f32_dpp v{E+b}, v{E+b}, v{E+b} quad_perm:[1,0,3,2] row_mask:0xf bank_mask:0xf')
        A(f'v_add_f32 v18, v{LD}, v{LD+1}'); A(f'v_add_f32 v19, v{LD+2}, v{LD+3}'); A('v_add_f32 v18, v18, v19')
        A(f'v_add_f32 v19, v{E}, v{E+1}'); A('v_add_f32 v18, v18, v19'); A(f'v_add_f32 v19, v{E+2}, v{E+3}'); A('v_add_f32 v18, v18, v19')
        A('v_cmp_u_f32 vcc, v18, v18')
        self.poll_end(L)
        A(f'v_cvt_pk_bf16_f32 v18, v{LD}, v{LD+1}'); A(f'v_cvt_pk_bf16_f32 v19, v{LD+2}, v{LD+3}')
        A('ds_write_b64 v21, v[18:19]', 'kvt')
        A(f'v_cvt_pk_bf16_f32 v26, v{E}, v{E+1}'); A(f'v_cvt_pk_bf16_f32 v27, v{E+2}, v{E+3}')
        A('v_cmp_gt_u32 vcc, 248, v12')
        A('s_and_saveexec_b64 s[50:51], vcc')
        A('ds_write_b64 v23, v[26:27]', 'kvt')
        A('s_mov_b64 exec, s[50:51]')
        A.wait_lg()
        self.stamp('softq')
        self.bar()
        self.stamp('h1')
        NE = A.newlabel('NOEP')
        A('s_cmp_lg_u32 s2, 0'); A(f's_cbranch_scc1 {NE}')
        A('s_cmp_lg_u32 s3, 7'); A(f's_cbranch_scc1 {NE}')
        A(f'v_mov_b32 v8, {EPOCH_OFF}'); A('v_mov_b32 v9, s63')
        A('s_mov_b64 exec, 1')
        A('buffer_store_dword v9, v8, s[16:19], 0 offen sc1')
        A('s_mov_b64 exec, -1')
        A.label(NE)
        if WOAT != 'pre': self.wo_loads(0, NCT_H, W1, None, areg=25, recompute=True)
        self.stamp('opub')

    def h_fills(self):
        A = self.A
        srd(A, 48, 6, 7, FILL_END)
        A('s_lshl_b32 s46, s2, 2'); A('s_add_u32 s46, s46, s55'); A('s_lshl_b32 s46, s46, 12'); A(f's_add_u32 s46, s46, {FILL_OFF}')
        for r in range(28, 32): A(f'v_mov_b32 v{r}, -1')
        A('v_add_u32 v26, s46, v1')
        for i in range(4): A(f'buffer_store_dwordx4 v[28:31], v26, s[48:51], 0 offen offset:{i*1024} sc1', 'fill')
        A('s_lshl_b32 s46, s41, 4'); A('s_add_u32 s46, s46, s40'); A(f's_mul_i32 s46, s46, {KVP_ONE}')
        A('s_mul_i32 s47, s55, 1536'); A('s_add_u32 s46, s46, s47'); A(f's_add_u32 s46, s46, {KVP_OFF}')
        A('v_add_u32 v26, s46, v1'); A(f'v_mov_b32 v27, {BIG}'); A('v_cmp_gt_u32 vcc, 32, v0'); A('v_cndmask_b32 v27, v27, v26, vcc')
        A('buffer_store_dwordx4 v[28:31], v26, s[48:51], 0 offen sc1', 'fill')
        A('buffer_store_dwordx4 v[28:31], v27, s[48:51], 0 offen offset:1024 sc1', 'fill')

    def _kvm(self, ks, AFr, BFr, D):
        A = self.A
        A.wait_lg([('kb', ks), ('ka', ks)])
        for T in range(3):
            a_ = AFr + (ks*3+T)*4; b = BFr + 4*ks; d = D + 4*T
            c = '0' if ks == 0 else f'v[{d}:{d+3}]'
            A(f'v_mfma_f32_16x16x32_bf16 v[{d}:{d+3}], v[{a_}:{a_+3}], v[{b}:{b+3}], {c}')

    def h_setup(self):
        A = self.A
        A('v_lshrrev_b32 v9, 2, v0')
        A('v_mul_u32_u24 v9, 288, v9')
        A('s_lshr_b32 s46, s55, 1'); A('s_lshl_b32 s47, s46, 7')
        A('v_add_u32 v9, s47, v9')
        A('v_and_b32 v10, 3, v0')
        for T in range(3):
            A(f'v_add_u32 v11, {4*T}, v10'); A('v_lshlrev_b32 v24, 3, v11'); A('v_add_u32 v13, 24, v24')
            A('v_cmp_gt_u32 vcc, 5, v11'); A('v_cndmask_b32 v24, v13, v24, vcc')
            A(f'v_add_u32 v{14+T}, v9, v24')
        A('s_and_b32 s48, s55, 1'); A('s_lshl_b32 s47, s48, 2')
        A('v_add_u32 v11, s47, v10'); A('v_lshlrev_b32 v24, 3, v11')
        A('v_add_u32 v13, 80, v24'); A('v_add_u32 v24, 40, v24')
        A('v_cmp_gt_u32 vcc, 3, v11'); A('v_cndmask_b32 v24, v13, v24, vcc')
        A('v_mov_b32 v13, 40'); A('v_cmp_gt_u32 vcc, 6, v11'); A('v_cndmask_b32 v24, v13, v24, vcc')
        A('v_add_u32 v17, v9, v24')
        A('s_lshl_b32 s47, s48, 4')
        A('v_add_u32 v11, s47, v2')
        A('v_subrev_u32 v24, 2, v11'); A('v_cmp_le_u32 vcc, 12, v11'); A('v_cndmask_b32 v24, v11, v24, vcc')
        A('s_mul_i32 s49, s46, 19'); A('v_add_u32 v24, s49, v24'); A('v_mul_u32_u24 v24, 10, v24'); A('v_add_u32 v24, v24, v3'); A('v_lshlrev_b32 v24, 4, v24')
        A(f'v_add_u32 v24, {L_KVC}, v24')
        A(f'v_mov_b32 v13, {L_KVC + 6080}')
        A('v_subrev_u32 v19, 12, v11')
        A('v_cmp_gt_u32 s[52:53], 9, v19'); A('v_cmp_gt_u32 vcc, 10, v11'); A('s_or_b64 vcc, vcc, s[52:53]')
        A('v_cndmask_b32 v18, v13, v24, vcc')
        A('v_cmp_gt_u32 s[52:53], 2, v3'); A('s_and_b64 vcc, vcc, s[52:53]')
        A('v_add_u32 v24, 128, v24'); A('v_cndmask_b32 v19, v13, v24, vcc')
        A('s_mul_i32 s49, s46, 190'); A('s_mul_i32 s50, s48, 140'); A('s_add_u32 s49, s49, s50'); A('s_lshl_b32 s49, s49, 4')
        A(f's_add_u32 s50, s49, {L_KVC}'); A('v_add_u32 v37, s50, v1')
        A('s_lshl_b32 s50, s41, 4'); A('s_add_u32 s50, s50, s40'); A(f's_mul_i32 s50, s50, {KVP_ONE}'); A(f's_add_u32 s50, s50, {KVP_OFF}')
        A('s_add_u32 s50, s50, s49'); A('v_add_u32 v24, s50, v1')
        A('s_cmp_eq_u32 s48, 0'); A('s_cselect_b32 s49, 140, 50')
        A(f'v_mov_b32 v13, {BIG}')
        for i in range(3):
            A(f'v_add_u32 v11, {64*i}, v0'); A('v_cmp_gt_u32 vcc, s49, v11'); A(f'v_cndmask_b32 v{38+i}, v13, v24, vcc')
        A(f's_mul_i32 s46, s41, {16*KVP_ONE}'); A(f's_add_u32 s46, s46, {KVP_OFF}')
        for rnd in range(2):
            ga, la = (20, 21) if rnd == 0 else (22, 23)
            if rnd == 0: A('v_mov_b32 v24, v12')
            else:
                A('v_lshrrev_b32 v24, 1, v12'); A('v_add_u32 v24, 256, v24'); A('v_min_u32 v24, 379, v24')
            A('v_mul_u32_u24 v8, 6554, v24'); A('v_lshrrev_b32 v8, 16, v8')
            A('v_mul_u32_u24 v9, 10, v8'); A('v_sub_u32 v9, v24, v9')
            A('v_cmp_le_u32 vcc, 19, v8'); A('v_cndmask_b32 v10, 0, 1, vcc')
            A('v_mul_u32_u24 v11, 19, v10'); A('v_sub_u32 v11, v8, v11')
            A('v_cmp_le_u32 vcc, 10, v11'); A('v_cndmask_b32 v13, 0, 2, vcc'); A('v_add_u32 v11, v11, v13')
            A('v_mad_u32_u24 v11, v10, 24, v11')
            A(f'v_lshlrev_b32 v{ga}, 4, v24')
            A(f'v_add_u32 v{ga}, s46, v{ga}')
            if rnd == 1:
                A('v_and_b32 v13, 1, v12'); A(f'v_mul_u32_u24 v13, {8*KVP_ONE}, v13'); A(f'v_add_u32 v{ga}, v{ga}, v13')
            A(f'v_mul_u32_u24 v{la}, 96, v11'); A(f'v_lshl_add_u32 v{la}, v9, 3, v{la}')
            A('v_cmp_le_u32 vcc, 5, v9'); A('v_cndmask_b32 v13, 0, 8, vcc'); A(f'v_add_u32 v{la}, v{la}, v13')
            A(f'v_add_u32 v{la}, {L_KVT}, v{la}')

    def dump(self, regs, slot):
        A = self.A
        A('s_lshl_b32 s60, s2, 3'); A('s_add_u32 s60, s60, s3'); A('s_mul_i32 s60, s60, 4096'); A(f's_add_u32 s60, s60, {DBG_OFF}')
        A('v_lshlrev_b32 v111, 2, v0'); A('v_add_u32 v111, s60, v111')
        for i, r in enumerate(regs):
            off = (slot+i)*256
            assert off < 4096
            if r[0] == 'a':
                A(f'v_accvgpr_read_b32 v110, {r}'); r = 'v110'
            A(f'buffer_store_dword {r}, v111, s[16:19], 0 offen offset:{off}')
            A('s_nop 1')

    def finish(self):
        A = self.A
        A.label('K1_FIN')
        if self.prof:
            self.stamp('end')
            A('s_waitcnt lgkmcnt(0)')
            A('s_lshl_b32 s60, s2, 3'); A('s_add_u32 s60, s60, s3'); A('s_lshl_b32 s60, s60, 7')
            A(f's_add_u32 s60, s60, {DBG_OFF + (8<<20)}')
            A('v_mov_b32 v110, s60')
            for i in range(len(self.stamps)):
                A(f'v_mov_b32 v111, s{64+2*i}')
                A(f'buffer_store_dword v111, v110, s[16:19], 0 offen offset:{4*i}')
        if os.environ.get('DIAG') and self.prof:
            A('s_load_dwordx2 s[4:5], s[0:1], 80'); A('s_waitcnt lgkmcnt(0)')
            A('s_cmp_lg_u32 s2, %s' % os.environ.get('DIAGWG', '0')); A('s_cbranch_scc1 K1_END')
            A('s_cmp_lg_u32 s3, %s' % os.environ.get('DIAGWAVE', '1')); A('s_cbranch_scc1 K1_END')
            srd(A, 24, 4, 5, 256)
            A('v_mov_b32 v110, 0')
            sel = os.environ['DIAG'].split(',')
            for k, nm in enumerate(sel):
                i = self.stamps.index(nm)
                A(f'v_mov_b32 v111, s{64+2*i}')
                A(f'buffer_store_dword v111, v110, s[24:27], 0 offen offset:{4*k}')
        A.label('K1_END'); A('s_endpgm')
        return A.text()

def gen_k1(stop=None, prof=False):
    K = K1(stop, prof)
    global LAST; LAST = K
    A = K.A
    K.stamp('start')
    K.prologue()
    K.stamp('prolog')
    s0(K, 'main_kernel', int(os.environ.get('CODEKB', 26)))
    A('s_cmp_ge_u32 s3, 4'); A('s_cbranch_scc1 K1_H')
    vm0, lg0 = list(A.vm), list(A.lg)
    K.nbar = 0
    K.c_program()
    nb_c = K.nbar
    A('s_branch K1_JOIN')
    A.label('K1_H')
    A.vm, A.lg, A.hist = list(vm0), list(lg0), []
    K.nbar = 0
    K.h_program()
    assert K.nbar == nb_c, (K.nbar, nb_c)
    A.label('K1_JOIN')
    A('s_nop 7')
    A.vm = ['?']*0; A.lg = []
    if stop == 'o': return K.finish()
    import k1b
    k1b.rest(K)
    return K.finish()
```

```python
import os
from asmlib import *
from layout import *
from s0 import BIG
from k1 import *

DMAPOL = os.environ.get('DMAPOL', '')

GU_SPLIT = int(os.environ.get('GUSPLIT', 6))
DN_AT = os.environ.get('DNAT', 'b6')

def gu_dma(K, i0, i1):
    A = K.A
    if i0 >= i1 or os.environ.get('NOGU'): return
    NOGU = A.newlabel('NOGU')
    A('s_cmp_lt_u32 s3, 4'); A(f's_cbranch_scc1 {NOGU}')
    A('s_cmp_ge_u32 s2, 144'); A(f's_cbranch_scc1 {NOGU}')
    A('v_lshrrev_b32 v9, 2, v0'); A('v_mul_u32_u24 v9, 9216, v9')
    A('v_and_b32 v10, 3, v0'); A('v_lshl_add_u32 v9, v10, 4, v9')
    A('s_lshl_b32 s46, s61, 6'); A('v_add_u32 v9, s46, v9')
    A('s_lshr_b32 s46, s55, 1'); A('s_and_b32 s47, s55, 1')
    A('s_mul_i32 s48, s46, 36864'); A('s_mul_i32 s49, s47, 18432'); A('s_add_u32 s48, s48, s49'); A(f's_add_u32 s48, s48, {L_GU}')
    A(f's_mul_i32 s49, s47, {18*147456}')
    G2 = A.newlabel('GUUP'); G3 = A.newlabel('GUDONE')
    A('s_cmp_eq_u32 s46, 1'); A(f's_cbranch_scc1 {G2}')
    for srd_, lab in ((28, None), (32, G2)):
        if lab: A.label(lab)
        for i in range(i0, i1):
            A(f's_add_u32 m0, s48, {i*1024}')
            A(f's_add_u32 s50, s49, {i*147456}')
            A(f'buffer_load_dwordx4 v9, s[{srd_}:{srd_+3}], s50 offen {DMAPOL} lds')
        if lab is None: A(f's_branch {G3}')
    A.label(G3)
    A.label(NOGU)

def dn_dma(K):
    A = K.A
    if os.environ.get('NOGU'): return
    ND = A.newlabel('NODN')
    A('s_cmp_lt_u32 s3, 4'); A(f's_cbranch_scc1 {ND}')
    A('s_cmp_ge_u32 s2, 144'); A(f's_cbranch_scc1 {ND}')
    A('s_mul_i32 s46, s61, 36864'); A('s_mul_i32 s47, s55, 9216'); A('s_add_u32 s46, s46, s47')
    A('v_add_u32 v9, s46, v1')
    for i in range(9):
        if i % 4 == 0:
            A(f's_add_u32 m0, s47, {L_DN + (i//4)*4096}'); A(f's_mov_b32 s48, {(i//4)*4096}')
        A(f'buffer_load_dwordx4 v9, s[36:39], s48 offen offset:{(i%4)*1024} {DMAPOL} lds')
    A.label(ND)

def rest(K):
    A = K.A
    stop = K.stop
    NH, NC = NCT_H, 9 - NCT_H
    A('s_mul_i32 s61, s44, 18'); A('s_add_u32 s61, s61, s45')
    A('s_and_b32 s56, s3, 1'); A('s_lshr_b32 s57, s3, 1')
    A('s_lshl_b32 s58, s57, 1'); A('s_add_u32 s58, s58, 1'); A('s_cmp_eq_u32 s57, 0'); A('s_cselect_b32 s58, 0, s58')
    A('s_mul_i32 s59, s43, 144'); A('s_lshl_b32 s46, s58, 4'); A('s_add_u32 s59, s59, s46')
    A('s_lshl_b32 s46, s42, 5'); A('s_lshl_b32 s47, s56, 4'); A('s_add_u32 s46, s46, s47')
    A('v_add_u32 v5, s46, v2')
    A('v_mul_u32_u24 v6, 1152, v5')
    A('v_lshlrev_b32 v7, 2, v3'); A('v_add_u32 v7, s59, v7')
    A('v_lshl_add_u32 v6, v7, 1, v6')
    A(f'v_lshlrev_b32 v8, 2, v7'); A(f'v_add_u32 v8, {WRC_OFF}, v8')
    for i in range(3):
        A(f'buffer_load_dwordx2 a[{120+2*i}:{121+2*i}], v6, s[20:23], 0 offen offset:{32*i}', 'xr')
        A(f'buffer_load_dwordx4 a[{128+4*i}:{131+4*i}], v8, s[16:19], 0 offen offset:{64*i}', 'xr')
    if os.environ.get('PFTEST'):
        from s0 import moe_prefetch_wave
        NT_ = A.newlabel('PFT')
        A('s_cmp_lg_u32 s3, 5'); A(f's_cbranch_scc1 {NT_}')
        moe_prefetch_wave(K, os.environ.get('PFPOL', ''))
        K.other_srds()
        A.label(NT_)
        K.waitall_vm()
        K.stamp('pft0')
        K.bar()
        for _ in range(int(os.environ['PFTEST'])): A('s_sleep 100')
        K.bar()
        K.stamp('pft1')
    A.vm = []
    BQ, AC = 12, 52
    A('s_lshl_b32 s46, s42, 5'); A('s_lshl_b32 s47, s55, 2'); A('s_add_u32 s46, s46, s47')
    A('s_lshl_b32 s47, s46, 10'); A(f's_add_u32 s47, s47, {OPM_OFF}'); A('v_add_u32 v9, s47, v1')
    A('s_lshl_b32 s47, s46, 8'); A(f's_add_u32 s47, s47, {OPT_OFF}'); A('v_lshlrev_b32 v10, 2, v0'); A('v_add_u32 v10, s47, v10')
    K.stamp('s3pre')
    if os.environ.get('BARPOLL'): K.bar()
    L = K.poll_begin()
    A('s_mov_b32 s46, 16384'); A('s_mov_b32 s47, 4096')
    for tt in range(2):
        for u in range(4):
            r = BQ + (tt*5+u)*4
            A(f'buffer_load_dwordx4 v[{r}:{r+3}], v9, s[16:19], {"s46" if tt else "0"} offen offset:{u*1024} sc1')
        for i in range(4):
            r = BQ + (tt*5+4)*4 + i
            A(f'buffer_load_dword v{r}, v10, s[16:19], {"s47" if tt else "0"} offen offset:{i*256} sc1')
    K.waitall_vm()
    A(f'v_max3_u32 v11, v{BQ}, v{BQ+1}, v{BQ+2}')
    for r in range(BQ+3, BQ+39, 2): A(f'v_max3_u32 v11, v11, v{r}, v{r+1}')
    A(f'v_max_u32 v11, v11, v{BQ+39}')
    A('v_cmp_eq_u32 vcc, -1, v11')
    K.poll_end(L)
    K.stamp('opoll')
    def mm(n):
        for u in range(5):
            for i in range(n):
                for tt in range(2):
                    d = AC + (i*2+tt)*4; a_ = (i*5+u)*4; b = BQ + (tt*5+u)*4
                    c = '0' if u == 0 else f'v[{d}:{d+3}]'
                    A(f'v_mfma_f32_16x16x32_bf16 v[{d}:{d+3}], a[{a_}:{a_+3}], v[{b}:{b+3}], {c}')
    A('s_mul_i32 s46, s55, 18432')
    A('v_add_u32 v11, s46, v1')
    CM = A.newlabel('S3C'); JM = A.newlabel('S3J')
    A('s_cmp_lt_u32 s3, 4'); A(f's_cbranch_scc1 {CM}')
    mm(NH)
    for i in range(NH):
        for tt in range(2):
            d = AC + (i*2+tt)*4
            A(f'ds_write_b128 v11, v[{d}:{d+3}] offset:{L_RED + (i*2+tt)*1024}', 'red')
    A.wait_lg()
    A(f's_branch {JM}')
    A.label(CM); A.hist = []
    mm(NC)
    for i in range(NC):
        for tt in range(2):
            d = AC + (i*2+tt)*4
            A(f'ds_write_b128 v11, v[{d}:{d+3}] offset:{L_RED + ((NH+i)*2+tt)*1024}', 'red')
    A.wait_lg()
    A.label(JM); A('s_nop 1')
    gu_dma(K, 0, GU_SPLIT)
    K.bar()
    K.stamp('s3mm')
    A('s_lshl_b32 s46, s58, 1'); A('s_add_u32 s46, s46, s56'); A('s_lshl_b32 s46, s46, 10')
    A('v_add_u32 v11, s46, v1')
    PR, HR = 12, 60
    S1, S2_, S3_ = 72, 73, 74
    def tile(i):
        for kq in range(4):
            r = PR + (i*4+kq)*4
            A(f'ds_read_b128 v[{r}:{r+3}], v11 offset:{L_RED + kq*18432 + i*2048}', ('pr', i))
    def proc(i):
        r = PR + i*16
        A.wait_lg(('pr', i))
        for b in (0, 2):
            A(f'v_pk_add_f32 v[{r+b}:{r+b+1}], v[{r+b}:{r+b+1}], v[{r+4+b}:{r+5+b}]')
            A(f'v_pk_add_f32 v[{r+8+b}:{r+9+b}], v[{r+8+b}:{r+9+b}], v[{r+12+b}:{r+13+b}]')
        A(f'v_accvgpr_read_b32 v76, a{120+2*i}'); A(f'v_accvgpr_read_b32 v77, a{121+2*i}')
        for b in (0, 2):
            A(f'v_pk_add_f32 v[{r+b}:{r+b+1}], v[{r+b}:{r+b+1}], v[{r+8+b}:{r+9+b}]')
        for b in range(4): A(f'v_accvgpr_read_b32 v{r+4+b}, a{128+4*i+b}')
        A('v_lshlrev_b32 v78, 16, v76'); A('v_and_b32 v79, 0xffff0000, v76')
        A('v_lshlrev_b32 v80, 16, v77'); A('v_and_b32 v81, 0xffff0000, v77')
        A(f'v_pk_add_f32 v[{r}:{r+1}], v[{r}:{r+1}], v[78:79]'); A(f'v_pk_add_f32 v[{r+2}:{r+3}], v[{r+2}:{r+3}], v[80:81]')
        A(f'v_cvt_pk_bf16_f32 v76, v{r}, v{r+1}'); A(f'v_cvt_pk_bf16_f32 v77, v{r+2}, v{r+3}')
        h = HR + 4*i
        A(f'v_lshlrev_b32 v{h}, 16, v76'); A(f'v_and_b32 v{h+1}, 0xffff0000, v76')
        A(f'v_lshlrev_b32 v{h+2}, 16, v77'); A(f'v_and_b32 v{h+3}, 0xffff0000, v77')
        for b in range(4):
            A(f'v_add_f32 v{S1}, v{S1}, v{h+b}')
            A(f'v_fmac_f32 v{S2_}, v{h+b}, v{h+b}')
            A(f'v_fmac_f32 v{S3_}, v{h+b}, v{r+4+b}')
    for r in (S1, S2_, S3_, 75): A(f'v_mov_b32 v{r}, 0')
    tile(0); tile(1)
    T2 = A.newlabel('NOT2')
    proc(0); proc(1)
    A('s_cmp_lg_u32 s57, 0'); A(f's_cbranch_scc1 {T2}')
    tile(2); proc(2)
    A.label(T2); A.hist = []; A('s_nop 1')
    K.xsum_g([S1, S2_, S3_], 76)
    A('s_lshl_b32 s46, s56, 2'); A('s_add_u32 s46, s46, s57'); A('s_lshl_b32 s46, s46, 8'); A(f's_add_u32 s46, s46, {L_STAT}')
    A('v_lshlrev_b32 v8, 4, v2'); A('v_add_u32 v8, s46, v8')
    A('s_mov_b64 exec, 0xffff')
    A(f'ds_write_b128 v8, v[{S1}:{S1+3}]', 'st')
    A('s_mov_b64 exec, -1')
    K.barrier()
    K.stamp('stat')
    NP = A.newlabel('NOPUB')
    A('s_cmp_lg_u32 s57, 0'); A(f's_cbranch_scc1 {NP}')
    A('s_lshl_b32 s46, s56, 10'); A(f's_add_u32 s46, s46, {L_STAT}')
    A('v_lshlrev_b32 v8, 8, v3'); A('v_lshl_add_u32 v8, v2, 4, v8'); A('v_add_u32 v8, s46, v8')
    A('ds_read_b128 v[76:79], v8', 'sr'); A.wait_lg()
    K.xsum_g([76, 77, 78], 80)
    A('s_lshl_b32 s46, s42, 1'); A('s_add_u32 s46, s46, s56'); A('s_lshl_b32 s46, s46, 2'); A('s_add_u32 s46, s46, s43')
    A('s_lshl_b32 s46, s46, 8'); A(f's_add_u32 s46, s46, {STP_OFF}')
    A('v_lshlrev_b32 v8, 4, v2'); A('v_add_u32 v8, s46, v8')
    A('v_mov_b32 v79, 0')
    A('s_mov_b64 exec, 0xffff')
    A('buffer_store_dwordx4 v[76:79], v8, s[16:19], 0 offen sc1')
    A('s_mov_b64 exec, -1')
    A.label(NP); A.hist = []
    gu_dma(K, GU_SPLIT, 18)
    if DN_AT == 'b6': dn_dma(K)
    A.vm = []
    MEAN, RSTD, RV, KEY = 72, 73, 74, 75
    NH3 = A.newlabel('NOH3')
    A('s_cmp_lg_u32 s57, 0'); A(f's_cbranch_scc1 {NH3}')
    A('s_lshl_b32 s46, s42, 1'); A('s_add_u32 s46, s46, s56'); A('s_lshl_b32 s46, s46, 10'); A(f's_add_u32 s46, s46, {STP_OFF}')
    A('v_lshlrev_b32 v8, 8, v3'); A('v_lshl_add_u32 v8, v2, 4, v8'); A('v_add_u32 v8, s46, v8')
    L = K.poll_begin()
    A('buffer_load_dwordx4 v[76:79], v8, s[16:19], 0 offen sc1')
    K.waitall_vm()
    A('v_add_f32 v80, v76, v77'); A('v_add_f32 v80, v80, v78')
    A('v_cmp_u_f32 vcc, v80, v80')
    K.poll_end(L)
    K.stamp('h3')
    K.xsum_g([76, 77, 78], 80)
    A('s_mov_b32 s46, 0x3AE38E39')
    A(f'v_mul_f32 v{MEAN}, s46, v76'); A('v_mul_f32 v77, s46, v77')
    A(f'v_fma_f32 v77, -v{MEAN}, v{MEAN}, v77'); A('v_add_f32 v77, 0x3727c5ac, v77')
    A(f'v_rsq_f32 v{RSTD}, v77')
    A(f'v_mul_f32 v{RV}, v78, v{RSTD}')
    A(f'v_ashrrev_i32 v76, 31, v{RV}'); A('v_or_b32 v76, 0x80000000, v76'); A(f'v_xor_b32 v76, v76, v{RV}')
    A('s_mov_b32 s46, 0xfffff800')
    A(f'v_and_or_b32 v{KEY}, v76, s46, v5')
    A('v_lshlrev_b32 v8, 2, v5'); A(f'v_add_u32 v8, {RR_OFF}, v8')
    A(f'v_mov_b32 v9, {BIG}'); A('s_cmp_eq_u32 s43, 0'); A('s_cselect_b64 vcc, -1, 0'); A('v_cndmask_b32 v8, v9, v8, vcc')
    A('s_lshl_b32 s46, s56, 8'); A(f's_add_u32 s46, s46, {L_TOK}'); A('v_lshlrev_b32 v9, 4, v2'); A('v_add_u32 v9, s46, v9')
    A('s_mov_b64 exec, 0xffff')
    A(f'buffer_store_dword v{KEY}, v8, s[16:19], 0 offen sc1')
    A(f'ds_write_b128 v9, v[{MEAN}:{MEAN+3}]', 'tok')
    A('s_mov_b64 exec, -1')
    A.wait_lg()
    A.label(NH3); A.hist = []
    KQ, OWN = 80, 84
    A('v_lshlrev_b32 v8, 4, v4'); A(f'v_add_u32 v8, {RR_OFF}, v8')
    A('s_lshl_b32 s46, s42, 7'); A(f's_add_u32 s46, s46, {RR_OFF}')
    A('v_lshlrev_b32 v9, 2, v0'); A('v_add_u32 v9, s46, v9')
    A(f'v_mov_b32 v10, {BIG}'); A('v_cmp_gt_u32 vcc, 32, v0'); A('v_cndmask_b32 v9, v10, v9, vcc')
    A.vm = []
    L = K.poll_begin()
    A(f'buffer_load_dwordx4 v[{KQ}:{KQ+3}], v8, s[16:19], 0 offen sc1')
    A(f'buffer_load_dword v{OWN}, v9, s[16:19], 0 offen sc1')
    K.waitall_vm()
    A(f'v_max3_u32 v85, v{KQ}, v{KQ+1}, v{KQ+2}'); A(f'v_max_u32 v85, v85, v{KQ+3}')
    A(f'v_max_u32 v86, v85, v{OWN}')
    A('v_cmp_eq_u32 vcc, -1, v86')
    K.poll_end(L)
    K.stamp('h4')
    for mod in ('quad_perm:[1,0,3,2]', 'quad_perm:[2,3,0,1]', 'row_half_mirror', 'row_mirror'):
        A(f'v_max_u32_dpp v85, v85, v85 {mod} row_mask:0xf bank_mask:0xf')
    A('v_mov_b32 v86, v85'); A('v_permlane16_swap_b32 v85, v86'); A('v_max_u32 v85, v85, v86')
    A('v_mov_b32 v86, v85'); A('v_permlane32_swap_b32 v85, v86'); A('v_max_u32 v85, v85, v86')
    A('s_lshl_b32 s46, s3, 2'); A(f's_add_u32 s46, s46, {L_WMAX}'); A('v_mov_b32 v86, s46')
    A('s_mov_b64 exec, 1'); A('ds_write_b32 v86, v85', 'wm'); A('s_mov_b64 exec, -1')
    K.barrier()
    A(f'v_mov_b32 v86, {L_WMAX}')
    A('ds_read_b128 v[88:91], v86', 'wm'); A('ds_read_b128 v[92:95], v86 offset:16', 'wm'); A.wait_lg()
    A('v_min3_u32 v88, v88, v89, v90'); A('v_min3_u32 v91, v91, v92, v93'); A('v_min3_u32 v88, v88, v94, v95'); A('v_min_u32 v88, v88, v91')
    TAU = 88
    LN = 12
    A('s_lshl_b32 s46, s56, 8'); A(f's_add_u32 s46, s46, {L_TOK}'); A('v_lshlrev_b32 v86, 4, v2'); A('v_add_u32 v86, s46, v86')
    A(f'ds_read_b128 v[{MEAN}:{MEAN+3}], v86', 'tok')
    A(f'v_cmp_ge_u32 vcc, v{OWN}, v{TAU}')
    A('s_mov_b64 s[50:51], vcc')
    CL = A.newlabel('CAND'); CD = A.newlabel('CANDD')
    A.label(CL)
    A('s_cmp_eq_u32 s50, 0'); A(f's_cbranch_scc1 {CD}')
    A('s_ff1_i32_b32 s46, s50')
    A('s_bitset0_b32 s50, s46')
    A(f'v_readlane_b32 s47, v{OWN}, s46')
    A('s_nop 3')
    A('s_mov_b32 s48, 0')
    for q in range(4):
        A(f'v_cmp_lt_u32 vcc, s47, v{KQ+q}')
        A('s_bcnt1_i32_b64 s49, vcc'); A('s_add_u32 s48, s48, s49')
    A('s_lshl_b32 s46, s46, 2'); A(f's_add_u32 s46, s46, {L_RANK}')
    A('v_mov_b32 v86, s46'); A('v_mov_b32 v87, s48')
    A('s_mov_b64 exec, 1'); A('ds_add_u32 v86, v87', 'rk'); A('s_mov_b64 exec, -1')
    A(f's_branch {CL}')
    A.label(CD); A.hist = []
    A.wait_lg()
    A(f'v_mul_f32 v76, v{MEAN}, v{RSTD}'); A('v_sub_f32 v76, 0, v76'); A('v_mov_b32 v77, v76')
    A(f'v_mov_b32 v78, v{RSTD}'); A(f'v_mov_b32 v79, v{RSTD}')
    for q in range(0, 12, 2): A(f'v_pk_fma_f32 v[{LN+q}:{LN+q+1}], v[{HR+q}:{HR+q+1}], v[78:79], v[76:77]')
    K.barrier()
    K.stamp('rank')
    A('s_lshl_b32 s46, s56, 6'); A(f's_add_u32 s46, s46, {L_RANK}')
    A('v_lshlrev_b32 v86, 2, v2'); A('v_add_u32 v86, s46, v86')
    A('ds_read_b32 v87, v86', 'rk'); A.wait_lg()
    RK = 87
    A(f'v_cmp_ge_u32 s[50:51], v{KEY}, v{TAU}'); A(f'v_cmp_gt_u32 vcc, 8, v{RK}'); A('s_and_b64 s[50:51], s[50:51], vcc')
    BS, PK = 24, 36
    for q in range(0, 12, 2): A(f'v_pk_add_f32 v[{BS+q}:{BS+q+1}], v[{HR+q}:{HR+q+1}], v[{LN+q}:{LN+q+1}]')
    for q in range(6): A(f'v_cvt_pk_bf16_f32 v{PK+q}, v{BS+2*q}, v{BS+2*q+1}')
    for q in range(6): A(f'v_cvt_pk_bf16_f32 v{PK+6+q}, v{LN+2*q}, v{LN+2*q+1}')
    A(f'v_mul_u32_u24 v8, 1152, v{RK}'); A('v_lshl_add_u32 v8, v7, 1, v8'); A(f'v_add_u32 v8, {XSEL_OFF}, v8')
    A(f'v_mul_u32_u24 v9, 2304, v{RK}'); A('v_lshl_add_u32 v9, v7, 2, v9'); A(f'v_add_u32 v9, {BASE_OFF}, v9')
    A(f'v_lshlrev_b32 v10, 3, v{RK}'); A(f'v_add_u32 v10, {META_OFF}, v10')
    A('v_mov_b32 v48, v5'); A(f'v_mov_b32 v49, v{RV}')
    def sel_stores(ntile):
        SK = A.newlabel('NOSEL')
        A('s_and_saveexec_b64 s[52:53], s[50:51]'); A(f's_cbranch_execz {SK}')
        for i in range(ntile):
            A(f'buffer_store_dwordx2 v[{PK+6+2*i}:{PK+7+2*i}], v8, s[16:19], 0 offen offset:{32*i} sc1')
            A(f'buffer_store_dwordx4 v[{BS+4*i}:{BS+4*i+3}], v9, s[16:19], 0 offen offset:{64*i} sc1')
        A.label(SK)
        A('s_mov_b64 exec, s[52:53]')
    def out_stores(ntile):
        A('s_andn2_b64 exec, exec, s[50:51]')
        SK2 = A.newlabel('NOOUT')
        A(f's_cbranch_execz {SK2}')
        for i in range(ntile):
            A(f'buffer_store_dwordx2 v[{PK+2*i}:{PK+2*i+1}], v6, s[24:27], 0 offen offset:{32*i}')
        A.label(SK2)
        A('s_mov_b64 exec, -1')
    S3T = A.newlabel('ST3'); SJ = A.newlabel('STJ')
    A('s_cmp_eq_u32 s57, 0'); A(f's_cbranch_scc1 {S3T}')
    sel_stores(2)
    A(f's_branch {SJ}')
    A.label(S3T)
    sel_stores(3)
    NM = A.newlabel('NOMETA')
    A('s_cmp_lg_u32 s43, 0'); A(f's_cbranch_scc1 {NM}')
    A('s_and_b64 s[52:53], s[50:51], 0xffff')
    A('s_and_saveexec_b64 s[48:49], s[52:53]'); A(f's_cbranch_execz {NM}_R')
    A('buffer_store_dwordx2 v[48:49], v10, s[16:19], 0 offen sc1')
    A.label(NM + '_R')
    A('s_mov_b64 exec, -1')
    A.label(NM)
    A.label(SJ); A.hist = []
    A('s_mov_b64 exec, -1')
    K.bar()
    if DN_AT == 'b8': dn_dma(K)
    O3 = A.newlabel('OUT3'); OJ = A.newlabel('OUTJ')
    A('s_cmp_eq_u32 s57, 0'); A(f's_cbranch_scc1 {O3}')
    out_stores(2)
    A(f's_branch {OJ}')
    A.label(O3)
    out_stores(3)
    A.label(OJ); A.hist = []
    K.stamp('sel')
    if stop == 'sel': return
    s5(K)

def s5(K):
    A = K.A
    A.vm = []; A.lg = []
    FIN = A.newlabel('FINAL')
    A('s_cmp_ge_u32 s2, 144'); A(f's_cbranch_scc1 {FIN}')
    A('s_mul_i32 s46, s3, 3'); A('s_lshl_b32 s47, s3, 1'); A('s_add_u32 s47, s47, 2'); A('s_cmp_lt_u32 s3, 2'); A('s_cselect_b32 s46, s46, s47')
    A('v_and_b32 v8, 7, v2'); A('v_mul_u32_u24 v8, 1152, v8'); A('v_lshl_add_u32 v8, v3, 4, v8')
    A('s_lshl_b32 s47, s46, 6'); A(f's_add_u32 s47, s47, {XSEL_OFF}'); A('v_add_u32 v8, s47, v8')
    A('v_lshrrev_b32 v9, 2, v2'); A('v_lshl_add_u32 v9, v3, 3, v9'); A('v_lshlrev_b32 v9, 6, v9')
    A('v_and_b32 v10, 3, v2'); A('v_lshl_add_u32 v9, v10, 3, v9')
    A('s_lshl_b32 s47, s46, 11'); A(f's_add_u32 s47, s47, {L_GU}'); A('v_add_u32 v9, s47, v9'); A('v_add_u32 v10, 36864, v9')
    XB = 12
    L = K.poll_begin()
    for i in range(3): A(f'buffer_load_dwordx4 v[{XB+4*i}:{XB+4*i+3}], v8, s[16:19], 0 offen offset:{64*i} sc1')
    K.waitall_vm()
    A(f'v_max3_u32 v11, v{XB}, v{XB+1}, v{XB+2}')
    for r in range(XB+3, XB+7, 2): A(f'v_max3_u32 v11, v11, v{r}, v{r+1}')
    A(f'v_max_u32 v11, v11, v{XB+7}')
    A(f'v_max3_u32 v24, v{XB+8}, v{XB+9}, v{XB+10}'); A(f'v_max_u32 v24, v24, v{XB+11}')
    A('s_cmp_lt_u32 s3, 2'); A('s_cselect_b32 s47, -1, 0'); A('v_and_b32 v24, s47, v24'); A('v_max_u32 v11, v11, v24')
    A('v_cmp_eq_u32 vcc, -1, v11')
    K.poll_end(L)
    K.stamp('xsel')
    AFG, DG = 28, 76
    def gu(nst):
        for i in range(nst):
            for ch in range(4):
                mat, ft = ch >> 1, ch & 1
                for h in range(2):
                    r = AFG + (i*4+ch)*4 + 2*h
                    A(f'ds_read_b64_tr_b16 v[{r}:{r+1}], v{9+mat} offset:{i*2048 + h*256 + ft*32}', ('gu', i))
            A.wait_lg(('gu', i))
            for ch in range(4):
                r = AFG + (i*4+ch)*4; d = DG + 4*ch
                c = '0' if i == 0 else f'v[{d}:{d+3}]'
                A(f'v_mfma_f32_16x16x32_bf16 v[{d}:{d+3}], v[{r}:{r+3}], v[{XB+4*i}:{XB+4*i+3}], {c}')
    G2 = A.newlabel('GU2'); GJ = A.newlabel('GUJ')
    A('s_cmp_ge_u32 s3, 2'); A(f's_cbranch_scc1 {G2}')
    gu(3); A('s_nop 7'); A(f's_branch {GJ}')
    A.label(G2); A.hist = []
    gu(2); A('s_nop 7')
    A.label(GJ); A.hist = []
    A('s_lshl_b32 s46, s3, 12'); A(f's_add_u32 s46, s46, {L_R2}'); A('v_add_u32 v11, s46, v1')
    for ch in range(4): A(f'ds_write_b128 v11, v[{DG+4*ch}:{DG+4*ch+3}] offset:{ch*1024}', 'r2')
    K.barrier()
    AS = A.newlabel('ASKIP')
    A('s_cmp_ge_u32 s3, 4'); A(f's_cbranch_scc1 {AS}')
    A('v_and_b32 v12, 31, v4'); A('v_lshrrev_b32 v13, 5, v4')
    A('v_lshrrev_b32 v14, 4, v12'); A('v_lshlrev_b32 v14, 10, v14')
    A('v_bfe_u32 v15, v12, 2, 2'); A('v_lshl_add_u32 v15, v15, 4, v13'); A('v_lshl_add_u32 v14, v15, 4, v14')
    A('v_and_b32 v15, 3, v12'); A('v_lshl_add_u32 v14, v15, 2, v14'); A(f'v_add_u32 v14, {L_R2}, v14')
    for w in range(8):
        A(f'ds_read_b32 v{16+w}, v14 offset:{w*4096}', 'g')
    A.wait_lg()
    for w in range(8):
        A(f'ds_read_b32 v{24+w}, v14 offset:{w*4096 + 2048}', 'u')
    for base in (16,):
        A('v_add_f32 v16, v16, v17'); A('v_add_f32 v18, v18, v19'); A('v_add_f32 v20, v20, v21'); A('v_add_f32 v22, v22, v23')
        A('v_add_f32 v16, v16, v18'); A('v_add_f32 v20, v20, v22'); A('v_add_f32 v16, v16, v20')
    A('v_mul_f32 v17, 0xbfb8aa3b, v16'); A('v_exp_f32 v17, v17'); A('v_add_f32 v17, 1.0, v17'); A('v_rcp_f32 v17, v17'); A('v_mul_f32 v16, v16, v17')
    A.wait_lg()
    A('v_add_f32 v24, v24, v25'); A('v_add_f32 v26, v26, v27'); A('v_add_f32 v28, v28, v29'); A('v_add_f32 v30, v30, v31')
    A('v_add_f32 v24, v24, v26'); A('v_add_f32 v28, v28, v30'); A('v_add_f32 v24, v24, v28')
    A('v_mul_f32 v16, v16, v24'); A('v_cvt_pk_bf16_f32 v16, v16, v16')
    A('v_lshlrev_b32 v14, 6, v13'); A('v_lshl_add_u32 v14, v12, 1, v14'); A(f'v_add_u32 v14, {L_AIMG}, v14')
    A('ds_write_b16 v14, v16', 'a'); A.wait_lg()
    A.label(AS); A.hist = []
    K.barrier()
    A('s_mul_i32 s46, s3, 5'); A('s_lshl_b32 s47, s3, 2'); A('s_add_u32 s47, s47, 4'); A('s_cmp_lt_u32 s3, 4'); A('s_cselect_b32 s46, s46, s47')
    A('v_and_b32 v8, 7, v2'); A('v_lshlrev_b32 v8, 6, v8'); A('v_lshl_add_u32 v8, v3, 4, v8'); A(f'v_add_u32 v8, {L_AIMG}, v8')
    A('ds_read_b128 v[12:15], v8', 'ab')
    A('v_lshrrev_b32 v9, 2, v2'); A('v_lshl_add_u32 v9, v3, 3, v9'); A('v_mul_u32_u24 v9, 1152, v9')
    A('v_and_b32 v10, 3, v2'); A('v_lshl_add_u32 v9, v10, 3, v9')
    A('s_lshl_b32 s47, s46, 5'); A(f's_add_u32 s47, s47, {L_DN}'); A('v_add_u32 v9, s47, v9')
    A('v_mul_u32_u24 v10, %d, v2' % (18*144*64)); A('v_lshl_add_u32 v10, v3, 3, v10')
    A('s_lshl_b32 s47, s61, 6'); A(f's_add_u32 s47, s47, {YP_OFF}'); A('v_add_u32 v10, s47, v10')
    A(f'v_mov_b32 v11, {BIG}'); A('v_cmp_gt_u32 vcc, 8, v2'); A('v_cndmask_b32 v10, v11, v10, vcc')
    def dn(n):
        for i in range(n):
            for h in range(2):
                r = 16 + 4*i + 2*h
                A(f'ds_read_b64_tr_b16 v[{r}:{r+1}], v9 offset:{i*32 + h*4*1152}', ('dn', i))
        for i in range(n):
            A.wait_lg([('dn', i), 'ab'])
            A(f'v_mfma_f32_16x16x32_bf16 v[{40+4*i}:{43+4*i}], v[{16+4*i}:{19+4*i}], v[12:15], 0')
        for i in range(n):
            d = 40 + 4*i
            A(f's_add_u32 s47, s46, {i}'); A('s_lshr_b32 s48, s47, 1'); A(f's_mul_i32 s48, s48, {144*64}')
            A('s_and_b32 s47, s47, 1'); A('s_lshl_b32 s47, s47, 5'); A('s_add_u32 s48, s48, s47')
            A(f'v_cvt_pk_bf16_f32 v{d}, v{d}, v{d+1}'); A(f'v_cvt_pk_bf16_f32 v{d+1}, v{d+2}, v{d+3}')
            A(f'buffer_store_dwordx2 v[{d}:{d+1}], v10, s[16:19], s48 offen sc1')
    D4 = A.newlabel('DN4'); DJ = A.newlabel('DNJ')
    A('s_cmp_ge_u32 s3, 4'); A(f's_cbranch_scc1 {D4}')
    lg0 = list(A.lg)
    dn(5); A(f's_branch {DJ}')
    A.label(D4); A.hist = []; A.lg = lg0
    dn(4)
    A.label(DJ); A.hist = []
    K.bar()
    K.stamp('ypub')
    A.label(FIN); A.hist = []; A.vm = []; A.lg = []
    A('s_cmp_lt_u32 s2, 112'); A('s_cbranch_scc1 K1_FIN')
    A('s_sub_u32 s46, s2, 112')
    A('s_mul_hi_u32 s47, s46, 0x%x' % ((1 << 32)//18 + 1))
    A('s_mul_i32 s48, s47, 18'); A('s_sub_u32 s48, s46, s48')
    A('v_and_b32 v8, 15, v4'); A('v_lshrrev_b32 v9, 4, v4')
    A(f's_mul_i32 s49, s46, {144*64}'); A(f's_add_u32 s49, s49, {YP_OFF}')
    A('v_lshlrev_b32 v10, 6, v9'); A('v_lshl_add_u32 v10, v8, 2, v10'); A('v_add_u32 v10, s49, v10')
    A(f'v_add_u32 v11, {4*2048}, v10'); A(f'v_mov_b32 v12, {BIG}'); A('v_cmp_gt_u32 vcc, 16, v9'); A('v_cndmask_b32 v11, v12, v11, vcc')
    A('s_mul_i32 s49, s47, 2304'); A('s_lshl_b32 s50, s48, 7'); A('s_add_u32 s49, s49, s50'); A(f's_add_u32 s49, s49, {BASE_OFF}')
    A('v_lshlrev_b32 v13, 3, v8'); A('v_add_u32 v13, s49, v13')
    A('s_lshl_b32 s49, s47, 3'); A(f's_add_u32 s49, s49, {META_OFF}'); A('v_mov_b32 v14, s49')
    L = K.poll_begin()
    A('s_mov_b32 s49, 4096')
    for i in range(4):
        A(f'buffer_load_dword v{16+i}, v10, s[16:19], {"s49" if i >= 2 else "0"} offen offset:{(i&1)*2048} sc1')
    A('buffer_load_dword v20, v11, s[16:19], 0 offen sc1')
    A('buffer_load_dwordx2 v[22:23], v13, s[16:19], 0 offen sc1')
    A('buffer_load_dwordx2 v[24:25], v14, s[16:19], 0 offen sc1')
    K.waitall_vm()
    A('v_max3_u32 v15, v16, v17, v18'); A('v_max3_u32 v15, v15, v19, v20'); A('v_max3_u32 v15, v15, v22, v23'); A('v_max_u32 v15, v15, v24')
    A('v_cmp_eq_u32 vcc, -1, v15')
    K.poll_end(L)
    K.stamp('h6')
    A('v_mov_b32 v26, 0'); A('v_mov_b32 v27, 0')
    for i in range(5):
        A(f'v_lshlrev_b32 v28, 16, v{16+i}'); A(f'v_and_b32 v29, 0xffff0000, v{16+i}')
        A('v_pk_add_f32 v[26:27], v[26:27], v[28:29]')
    K.xsum_g([26, 27], 28)
    A('s_lshl_b32 s49, s3, 7'); A(f's_add_u32 s49, s49, {L_FIN}')
    A('v_lshlrev_b32 v28, 3, v8'); A('v_add_u32 v28, s49, v28')
    A('s_mov_b64 exec, 0xffff'); A('ds_write_b64 v28, v[26:27]', 'f'); A('s_mov_b64 exec, -1')
    K.barrier()
    A('s_cmp_lg_u32 s3, 0'); A('s_cbranch_scc1 K1_FIN')
    A('v_lshlrev_b32 v28, 3, v8'); A(f'v_add_u32 v28, {L_FIN}, v28')
    for w in range(8): A(f'ds_read_b64 v[{32+2*w}:{33+2*w}], v28 offset:{w*128}', 'f')
    A.wait_lg()
    for st in (1, 2, 4):
        for w in range(0, 8, 2*st): A(f'v_pk_add_f32 v[{32+2*w}:{33+2*w}], v[{32+2*w}:{33+2*w}], v[{32+2*(w+st)}:{33+2*(w+st)}]')
    A('v_mul_f32 v26, 0xbfb8aa3b, v25'); A('v_exp_f32 v26, v26'); A('v_add_f32 v26, 1.0, v26'); A('v_rcp_f32 v26, v26')
    A('v_fma_f32 v22, v32, v26, v22'); A('v_fma_f32 v23, v33, v26, v23')
    A('v_cvt_pk_bf16_f32 v22, v22, v23')
    A('v_mul_u32_u24 v28, 1152, v24'); A('v_lshl_add_u32 v28, v8, 2, v28'); A('s_lshl_b32 s49, s48, 6'); A('v_add_u32 v28, s49, v28')
    A('s_mov_b64 exec, 0xffff')
    A('buffer_store_dword v22, v28, s[24:27], 0 offen')
    A('s_mov_b64 exec, -1')
```

```python
import os
from asmlib import *
from layout import *
BIG = 0x40000000
FILLAT = os.environ.get('FILLAT', 'late')
RAWF = os.environ.get('RAWF', '')
LOG2E = 0x3FB8AA3B

def srd(A, d, lo, hi, size):
    A(f's_mov_b32 s{d}, s{lo}'); A(f's_mov_b32 s{d+1}, s{hi}')
    A(f's_mov_b32 s{d+2}, {size}'); A(f's_mov_b32 s{d+3}, 0x20000')

def group_flag_addr(A, r, base):
    a, b, c, d = r-4, r-3, r-2, r-1
    A(f'v_and_b32 v{a}, 15, v0'); A(f'v_bfe_u32 v{b}, v0, 4, 1')
    A(f'v_mov_b32 v{c}, s40'); A(f'v_mov_b32 v{d}, s41')
    A(f'v_cmp_eq_u32 vcc, 0, v{b}')
    A(f'v_cndmask_b32 v{c}, v{a}, v{c}, vcc')
    A(f'v_cndmask_b32 v{d}, v{d}, v{a}, vcc')
    A(f'v_and_b32 v{r}, 3, v{c}'); A(f'v_lshlrev_b32 v{r}, 3, v{r}'); A(f'v_and_b32 v{r+1}, 7, v{d}'); A(f'v_or_b32 v{r}, v{r}, v{r+1}'); A(f'v_lshlrev_b32 v{r}, 3, v{r}')
    A(f'v_lshrrev_b32 v{r+1}, 2, v{c}'); A(f'v_lshl_or_b32 v{r}, v{r+1}, 1, v{r}'); A(f'v_lshrrev_b32 v{r+1}, 3, v{d}'); A(f'v_or_b32 v{r}, v{r}, v{r+1}')
    A(f'v_lshlrev_b32 v{r}, 7, v{r}'); A(f'v_add_u32 v{r}, {base}, v{r}')

def moe_prefetch_wave(K, pol):
    A = K.A
    srd(A, 20, 8, 9, 576*9216); srd(A, 24, 10, 11, 576*9216); srd(A, 28, 12, 13, 4608*1152)
    A('s_mul_i32 s46, s45, 162')
    for i in range(3):
        t = 20 + 4*i
        A(f'v_add_u32 v{t}, {64*i}, v0'); A(f'v_cmp_gt_u32 vcc, 162, v{t}'); A(f'v_add_u32 v{t}, s46, v{t}')
        A(f'v_mul_u32_u24 v{t+1}, 7282, v{t}'); A(f'v_lshrrev_b32 v{t+1}, 16, v{t+1}')
        A(f'v_mul_u32_u24 v{t+2}, 9, v{t+1}'); A(f'v_sub_u32 v{t+2}, v{t}, v{t+2}')
        A(f'v_mul_u32_u24 v{t+1}, 9216, v{t+1}'); A(f'v_lshl_add_u32 v{t+1}, v{t+2}, 7, v{t+1}')
        A('s_mul_i32 s47, s44, 1152'); A(f'v_add_u32 v{t+1}, s47, v{t+1}')
        A(f'v_lshlrev_b32 v{t+2}, 7, v{t}'); A(f's_mul_i32 s47, s44, {18*36864}'); A(f'v_add_u32 v{t+2}, s47, v{t+2}')
        A(f'v_mov_b32 v{t+3}, {BIG}')
        A(f'v_cndmask_b32 v{t+1}, v{t+3}, v{t+1}, vcc'); A(f'v_cndmask_b32 v{t+2}, v{t+3}, v{t+2}, vcc')
        A(f'buffer_load_dword a143, v{t+1}, s[20:23], 0 offen {pol}')
        A(f'buffer_load_dword a143, v{t+1}, s[24:27], 0 offen {pol}')
        A(f'buffer_load_dword a143, v{t+2}, s[28:31], 0 offen {pol}')

def s0(K, code_sym, code_kb):
    A = K.A
    JOIN = 'S0_JOIN'
    def fills():
        srd(A, 28, 6, 7, FILL_END)
        A('s_lshl_b32 s46, s2, 3'); A('s_add_u32 s46, s46, s3'); A('s_lshl_b32 s46, s46, 11'); A(f's_add_u32 s46, s46, {FILL_OFF}')
        for r in range(8, 12): A(f'v_mov_b32 v{r}, -1')
        A('v_add_u32 v12, s46, v1')
        A('buffer_store_dwordx4 v[8:11], v12, s[28:31], 0 offen sc1', 'fill')
        A('buffer_store_dwordx4 v[8:11], v12, s[28:31], 0 offen offset:1024 sc1', 'fill')
        A('s_lshl_b32 s46, s41, 4'); A('s_add_u32 s46, s46, s40'); A(f's_mul_i32 s46, s46, {KVP_ONE}')
        A('s_mul_i32 s47, s3, 960'); A('s_add_u32 s46, s46, s47'); A(f's_add_u32 s46, s46, {KVP_OFF}')
        A('v_add_u32 v12, s46, v1'); A(f'v_mov_b32 v13, {BIG}'); A('v_cmp_gt_u32 vcc, 60, v0'); A('v_cndmask_b32 v12, v13, v12, vcc')
        A('buffer_store_dwordx4 v[8:11], v12, s[28:31], 0 offen sc1', 'fill')
    if FILLAT == 'pre': fills()
    A('s_cmp_eq_u32 s3, 7'); A('s_cbranch_scc1 S0_E')
    A('s_cmp_eq_u32 s3, 5'); A('s_cbranch_scc1 S0_M')
    A('s_cmp_eq_u32 s3, 4'); A('s_cbranch_scc1 S0_O')
    A('s_sub_u32 s46, s3, 1'); A('s_cmp_lt_u32 s46, 3'); A('s_cbranch_scc1 S0_W')

    A.label('S0_X'); A.vm = []; A.hist = []
    srd(A, 20, 4, 5, 2048*1152)
    A('s_lshl_b32 s46, s40, 7'); A('s_lshl_b32 s47, s41, 3'); A('s_add_u32 s46, s46, s47')
    A('s_cmp_eq_u32 s3, 6'); A('s_cselect_b32 s47, 4, 0'); A('s_add_u32 s46, s46, s47')
    A('v_add_u32 v14, s46, v3')
    A('v_mul_u32_u24 v15, 1152, v14'); A('v_lshl_add_u32 v15, v2, 4, v15')
    A(f'v_mov_b32 v13, {BIG}'); A('v_cmp_gt_u32 vcc, 8, v2'); A('v_cndmask_b32 v36, v13, v15, vcc')
    X = 16
    for i in range(4):
        A(f'buffer_load_dwordx4 v[{X+4*i}:{X+4*i+3}], v15, s[20:23], 0 offen offset:{i*256} {RAWF}', 'x')
    A(f'buffer_load_dwordx4 v[{X+16}:{X+19}], v36, s[20:23], 0 offen offset:1024 {RAWF}', 'x')
    if FILLAT == 'mid': fills()
    A('v_lshrrev_b32 v37, 4, v14'); A('v_mul_u32_u24 v37, 18432, v37')
    A('v_and_b32 v14, 15, v14'); A('v_lshl_add_u32 v37, v14, 4, v37')
    A('v_lshrrev_b32 v14, 2, v2'); A('v_lshl_add_u32 v37, v14, 10, v37')
    A('v_and_b32 v14, 3, v2'); A('v_lshl_add_u32 v37, v14, 8, v37')
    A('v_add_u32 v38, 16384, v37'); A('v_cmp_gt_u32 vcc, 8, v2'); A('v_cndmask_b32 v38, v13, v38, vcc')
    A('s_mov_b32 s46, 0x3f803f80')
    for r in range(40, 48): A(f'v_mov_b32 v{r}, 0')
    K.stamp('s0iss')
    A.wait_vm('x')
    K.stamp('s0ld')
    for k in range(20):
        A(f'v_dot2c_f32_bf16 v{40+(k&3)}, s46, v{X+k}')
        A(f'v_dot2c_f32_bf16 v{44+(k&3)}, v{X+k}, v{X+k}')
    A('v_add_f32 v40, v40, v41'); A('v_add_f32 v42, v42, v43'); A('v_add_f32 v44, v44, v45'); A('v_add_f32 v46, v46, v47')
    A('v_add_f32 v40, v40, v42'); A('v_add_f32 v44, v44, v46')
    for mod in ('quad_perm:[1,0,3,2]', 'quad_perm:[2,3,0,1]', 'row_half_mirror', 'row_mirror'):
        A(f'v_add_f32_dpp v40, v40, v40 {mod} row_mask:0xf bank_mask:0xf')
        A(f'v_add_f32_dpp v44, v44, v44 {mod} row_mask:0xf bank_mask:0xf')
    A('s_mov_b32 s46, 0x3AE38E39')
    A('v_mul_f32 v40, s46, v40'); A('v_mul_f32 v44, s46, v44')
    A('v_fma_f32 v44, -v40, v40, v44'); A('v_add_f32 v44, 0x3727c5ac, v44'); A('v_rsq_f32 v44, v44')
    A('v_mul_f32 v40, v40, v44'); A('v_sub_f32 v40, 0, v40')
    A('v_mov_b32 v45, v44'); A('v_mov_b32 v41, v40')
    for i in range(5):
        for k in range(4):
            r = X + 4*i + k
            A(f'v_lshlrev_b32 v48, 16, v{r}'); A(f'v_and_b32 v49, 0xffff0000, v{r}')
            A('v_pk_fma_f32 v[48:49], v[48:49], v[44:45], v[40:41]')
            A(f'v_cvt_pk_bf16_f32 v{r}, v48, v49')
        if i < 4:
            A(f's_mov_b32 s46, {i*4096}')
            A(f'buffer_store_dwordx4 v[{X+4*i}:{X+4*i+3}], v37, s[16:19], s46 offen sc1', 'st')
        else:
            A(f'buffer_store_dwordx4 v[{X+16}:{X+19}], v38, s[16:19], 0 offen sc1', 'st')
    A(f's_branch {JOIN}')

    A.label('S0_W'); A.vm = []; A.hist = []
    A('s_sub_u32 s48, s3, 1'); A('s_lshl_b32 s48, s48, 4'); A('s_add_u32 s48, s48, s40')
    A('s_cmp_ge_u32 s48, 36'); A('s_cbranch_scc1 S0_M')
    srd(A, 24, 34, 35, 32*648)
    srd(A, 20, 32, 33, 576*3456)
    PH = 16
    A('v_lshrrev_b32 v14, 2, v2'); A('v_lshlrev_b32 v14, 3, v14'); A('v_and_b32 v15, 3, v2'); A('v_add_u32 v14, v14, v15')
    A(f'v_mov_b32 v13, {BIG}')
    A('v_cmp_gt_u32 vcc, 18, v14'); A('v_add_u32 v12, 4, v14'); A('v_cmp_gt_u32 s[50:51], 18, v12')
    A('v_mul_u32_u24 v14, 36, v14'); A('v_lshl_add_u32 v14, v3, 4, v14')
    A('s_mul_i32 s46, s41, 1296'); A('v_add_u32 v14, s46, v14'); A('v_add_u32 v15, 144, v14')
    A('v_cndmask_b32 v14, v13, v14, vcc'); A('v_cndmask_b32 v15, v13, v15, s[50:51]')
    for hd in range(2):
        A(f'buffer_load_dwordx4 v[{PH+8*hd}:{PH+8*hd+3}], v14, s[24:27], 0 offen offset:{hd*648} {RAWF}', 'b')
        A(f'buffer_load_dwordx4 v[{PH+8*hd+4}:{PH+8*hd+7}], v15, s[24:27], 0 offen offset:{hd*648} {RAWF}', 'b')
    A('s_lshl_b32 s46, s48, 4')
    A('v_add_u32 v14, s46, v2'); A('v_mul_u32_u24 v14, 3456, v14')
    A('s_mul_i32 s46, s41, 72'); A('v_add_u32 v14, s46, v14')
    A('v_lshl_add_u32 v14, v3, 4, v14')
    AF = 32
    for sec in (1, 2, 0):
        for hd in range(2):
            r = AF + (sec*2+hd)*4
            A(f'buffer_load_dwordx4 v[{r}:{r+3}], v14, s[20:23], 0 offen offset:{sec*1152+hd*36} {RAWF}', 'a')
    K.stamp('s0iss')
    if FILLAT == 'mid': fills()
    ID, BF = 56, 64
    A('v_lshlrev_b32 v97, 3, v3'); A('v_sub_u32 v97, v2, v97')
    A('v_mov_b32 v98, 100'); A('v_cmp_gt_u32 vcc, 9, v2'); A('v_cndmask_b32 v97, v98, v97, vcc')
    A('v_mov_b32 v98, 0x3f80'); A('v_mov_b32 v99, 0x3f800000'); A('v_mov_b32 v100, 0')
    for p in range(2):
        if p == 1: A('v_add_u32 v97, 9, v97')
        for m in range(4):
            r = ID + p*4 + m
            A(f'v_cmp_eq_u32 vcc, {2*m}, v97'); A(f'v_cndmask_b32 v{r}, v100, v98, vcc')
            A(f'v_cmp_eq_u32 vcc, {2*m+1}, v97'); A(f'v_cndmask_b32 v{r}, v{r}, v99, vcc')
    A('s_lshr_b32 s46, s48, 1'); A('s_mul_i32 s47, s46, 5120')
    A('s_lshl_b32 s49, s46, 11'); A('s_add_u32 s49, s49, %d' % (92160 - 5*1024))
    A(f's_mul_i32 s50, s41, {WP_J}'); A(f's_add_u32 s50, s50, {WP_OFF}')
    A('s_and_b32 s51, s48, 1'); A('s_lshl_b32 s51, s51, 9'); A('s_add_u32 s50, s50, s51')
    A('v_lshrrev_b32 v104, 1, v3'); A('v_lshlrev_b32 v104, 8, v104'); A('v_and_b32 v105, 1, v3'); A('v_lshl_add_u32 v104, v105, 3, v104')
    A('v_add_u32 v104, s50, v104')
    for base, r in ((0, 101), (9, 102), (18, 103)):
        A(f'v_add_u32 v105, {base}, v2'); A('v_lshrrev_b32 v106, 2, v105'); A('v_and_b32 v105, 3, v105')
        A('v_lshlrev_b32 v105, 4, v105'); A('v_lshl_add_u32 v105, v106, 10, v105')
        A('v_mov_b32 v107, s47'); A('v_mov_b32 v108, s49')
        A('v_cmp_gt_u32 vcc, 5, v106'); A('v_cndmask_b32 v107, v108, v107, vcc')
        A('v_add3_u32 v105, v105, v107, v104')
        A('v_cmp_gt_u32 vcc, 9, v2'); A(f'v_cndmask_b32 v{r}, v13, v105, vcc')
    A('s_mov_b32 s46, 0x%08x' % LOG2E); A('v_mov_b32 v110, s46')
    A.wait_vm('b')
    T0 = 80
    for hd in range(2):
        for p in range(2):
            for t in range(2):
                d = T0 + (p*2+t)*4
                A(f'v_mfma_f32_16x16x32_bf16 v[{d}:{d+3}], v[{PH+8*hd+4*t}:{PH+8*hd+4*t+3}], v[{ID+4*p}:{ID+4*p+3}], 0')
        for p in range(2):
            b = BF + (hd*2+p)*4
            for t in range(2):
                d = T0 + (p*2+t)*4
                A(f'v_cvt_pk_bf16_f32 v{b+2*t}, v{d}, v{d+1}'); A(f'v_cvt_pk_bf16_f32 v{b+2*t+1}, v{d+2}, v{d+3}')
    A.wait_vm('a')
    K.stamp('s0ld')
    order = [(sec, hd, p) for sec in (1, 2, 0) for hd in range(2) for p in range(2)]
    for grp in range(3):
        part = order[4*grp:4*grp+4]
        for t, (sec, hd, p) in enumerate(part):
            d = T0 + 4*t if grp != 1 else 16 + 4*t
            af = AF + (sec*2+hd)*4
            bf = (ID + p*4) if sec == 2 else BF + (hd*2+p)*4
            A(f'v_mfma_f32_16x16x32_bf16 v[{d}:{d+3}], v[{af}:{af+3}], v[{bf}:{bf+3}], 0')
        for t, (sec, hd, p) in enumerate(part):
            d = T0 + 4*t if grp != 1 else 16 + 4*t
            ar = {1: 101, 2: 102, 0: 103}[sec]
            if sec != 2:
                A(f'v_pk_mul_f32 v[{d}:{d+1}], v[{d}:{d+1}], v[110:111] op_sel_hi:[1,0]')
                A(f'v_pk_mul_f32 v[{d+2}:{d+3}], v[{d+2}:{d+3}], v[110:111] op_sel_hi:[1,0]')
            A(f'v_cvt_pk_bf16_f32 v{d}, v{d}, v{d+1}'); A(f'v_cvt_pk_bf16_f32 v{d+1}, v{d+2}, v{d+3}')
            A(f'buffer_store_dwordx2 v[{d}:{d+1}], v{ar}, s[16:19], 0 offen offset:{64*(2*hd+p)} sc1', 'st')
    A(f's_branch {JOIN}')

    A.label('S0_O'); A.vm = []; A.hist = []
    A('s_cmp_ge_u32 s2, 72'); A('s_cbranch_scc1 S0_M')
    srd(A, 20, 36, 37, 576*1152)
    A('s_and_b32 s48, s2, 3'); A('s_lshr_b32 s49, s2, 2')
    A('v_lshrrev_b32 v14, 3, v2'); A('s_lshl_b32 s46, s48, 3'); A('v_add_u32 v14, s46, v14'); A('v_mul_u32_u24 v14, 18, v14')
    A('v_bfe_u32 v15, v2, 2, 1'); A('v_mad_u32_u24 v14, v15, 9, v14')
    A('v_and_b32 v15, 3, v2')
    A('v_mad_u32_u24 v12, v15, 36, v14'); A('v_add_u32 v12, 8, v12')
    A('v_add_u32 v14, v14, v15')
    A('v_mul_u32_u24 v14, 1152, v14'); A('v_mul_u32_u24 v12, 1152, v12')
    A('s_lshl_b32 s46, s49, 6'); A('v_lshl_add_u32 v15, v3, 4, s46')
    A('v_add_u32 v14, v14, v15'); A('v_add_u32 v12, v12, v15')
    OA = 16
    for u in range(4):
        for h in range(2):
            A(f's_mov_b32 s{50+h}, {(36*u+4*h)*1152}')
            r = OA + (u*2+h)*4
            A(f'buffer_load_dwordx4 v[{r}:{r+3}], v14, s[20:23], s{50+h} offen {RAWF}', 'o')
    A(f'buffer_load_dwordx4 v[{OA+32}:{OA+35}], v12, s[20:23], 0 offen {RAWF}', 'o')
    K.stamp('s0iss')
    if FILLAT == 'mid': fills()
    OI = 52
    A('v_lshlrev_b32 v97, 3, v3'); A('v_sub_u32 v97, v2, v97')
    A('v_mov_b32 v98, 0x3f80'); A('v_mov_b32 v99, 0x3f800000'); A('v_mov_b32 v100, 0')
    for t in range(2):
        if t == 1: A('v_add_u32 v97, 16, v97')
        for m in range(4):
            r = OI + t*4 + m
            A(f'v_cmp_eq_u32 vcc, {2*m}, v97'); A(f'v_cndmask_b32 v{r}, v100, v98, vcc')
            A(f'v_cmp_eq_u32 vcc, {2*m+1}, v97'); A(f'v_cndmask_b32 v{r}, v{r}, v99, vcc')
    for t in range(2):
        A('s_lshl_b32 s46, s49, 1'); A(f's_add_u32 s46, s46, {t}')
        A('s_mul_hi_u32 s47, s46, 0x%x' % ((1 << 32)//9 + 1)); A('s_mul_i32 s50, s47, 9'); A('s_sub_u32 s50, s46, s50')
        A('s_lshl_b32 s47, s47, 2'); A('s_add_u32 s47, s47, s48'); A('s_mul_i32 s47, s47, 9'); A('s_add_u32 s47, s47, s50')
        A('s_mul_i32 s47, s47, 5120'); A(f's_add_u32 s47, s47, {WOP_OFF}')
        A(f'v_add_u32 v{10+t}, s47, v1')
    A.wait_vm('o')
    K.stamp('s0ld')
    for t in range(2):
        D = 60
        for q in range(9):
            A(f'v_mfma_f32_16x16x32_bf16 v[{D+4*q}:{D+4*q+3}], v[{OA+4*q}:{OA+4*q+3}], v[{OI+4*t}:{OI+4*t+3}], 0')
        for u in range(4):
            x_, y_ = D + 8*u, D + 8*u + 4
            A(f'v_cvt_pk_bf16_f32 v{x_}, v{x_}, v{x_+1}'); A(f'v_cvt_pk_bf16_f32 v{x_+1}, v{x_+2}, v{x_+3}')
            A(f'v_cvt_pk_bf16_f32 v{x_+2}, v{y_}, v{y_+1}'); A(f'v_cvt_pk_bf16_f32 v{x_+3}, v{y_+2}, v{y_+3}')
            A(f'buffer_store_dwordx4 v[{x_}:{x_+3}], v{10+t}, s[16:19], 0 offen offset:{u*1024} sc1', 'st')
        z = D + 32
        for i in range(4): A(f'v_cvt_pk_bf16_f32 v{z+i}, v{z+i}, 0')
        A('s_mov_b32 s46, 4096')
        A(f'buffer_store_dwordx4 v[{z}:{z+3}], v{10+t}, s[16:19], s46 offen sc1', 'st')
        A('s_nop 1')
    A(f's_branch {JOIN}')

    A.label('S0_E'); A.vm = []; A.hist = []
    A(f'v_mov_b32 v14, {EPOCH_OFF}')
    A('buffer_load_dword v20, v14, s[16:19], 0 offen sc1', 'ep')
    if FILLAT == 'mid': fills()
    A.wait_vm('ep')
    A('v_add_u32 v20, 1, v20')
    A('v_readfirstlane_b32 s63, v20')
    A(f's_branch {JOIN}')


    A.label('S0_M'); A.vm = []; A.hist = []
    if FILLAT == 'mid': fills()
    if os.environ.get('PFSTART'):
        NP5 = A.newlabel('S0_NP5')
        A('s_cmp_lg_u32 s3, 5'); A(f's_cbranch_scc1 {NP5}')
        A('s_cmp_eq_u32 s2, 200'); A(f's_cbranch_scc1 {NP5}')
        moe_prefetch_wave(K, os.environ.get('PFPOL', ''))
        A('s_branch S0_BAR')
        A.label(NP5); A.hist = []
    A('s_cmp_lg_u32 s2, 200'); A(f's_cbranch_scc1 {JOIN}')
    A('s_cmp_lg_u32 s3, 5'); A(f's_cbranch_scc1 {JOIN}')
    srd(A, 20, 38, 39, 1152)
    A('v_lshlrev_b32 v14, 2, v0')
    for i in range(5): A(f'buffer_load_dword v{16+i}, v14, s[20:23], 0 offen offset:{i*256}', 'm')
    A('s_mov_b32 s46, 0x3f803f80'); A('v_mov_b32 v24, 0')
    A.wait_vm('m')
    for i in range(5): A(f'v_dot2c_f32_bf16 v24, s46, v{16+i}')
    for mod in ('quad_perm:[1,0,3,2]', 'quad_perm:[2,3,0,1]', 'row_half_mirror', 'row_mirror'):
        A(f'v_add_f32_dpp v24, v24, v24 {mod} row_mask:0xf bank_mask:0xf')
    A('v_mov_b32 v25, v24'); A('v_permlane16_swap_b32 v24, v25'); A('v_add_f32 v24, v24, v25')
    A('v_mov_b32 v25, v24'); A('v_permlane32_swap_b32 v24, v25'); A('v_add_f32 v24, v24, v25')
    A('s_mov_b32 s46, 0x3AE38E39'); A('v_mul_f32 v24, s46, v24')
    A('v_lshlrev_b32 v14, 3, v0'); A(f'v_add_u32 v14, {WRC_OFF}, v14')
    for i in range(5):
        A(f'v_lshlrev_b32 v26, 16, v{16+i}'); A(f'v_and_b32 v27, 0xffff0000, v{16+i}')
        A('v_sub_f32 v26, v26, v24'); A('v_sub_f32 v27, v27, v24')
        A(f'buffer_store_dwordx2 v[26:27], v14, s[16:19], 0 offen offset:{i*512} sc1', 'st')
        A('s_nop 1')

    A.label(JOIN); A.hist = []
    K.stamp('s0work')
    if FILLAT == 'join': fills()
    K.waitall_vm()
    K.stamp('s0ack')
    if os.environ.get('PFS0'):
        NOP5 = A.newlabel('S0_NOPF')
        A('s_cmp_lg_u32 s3, 5'); A(f's_cbranch_scc1 {NOP5}')
        moe_prefetch_wave(K, os.environ.get('PFPOL', ''))
        A.label(NOP5); A.hist = []
    A.label('S0_BAR')
    A('s_barrier')
    NPOLL = A.newlabel('S0_NP')
    A('s_cmp_lg_u32 s3, 7'); A(f's_cbranch_scc1 {NPOLL}')
    A('s_lshl_b32 s46, s2, 7'); A(f's_add_u32 s46, s46, {FLAG_OFF}')
    A('v_mov_b32 v14, s46'); A('v_mov_b32 v15, s63')
    A('s_mov_b64 exec, 1')
    A('buffer_store_dword v15, v14, s[16:19], 0 offen sc1')
    A('s_mov_b64 exec, -1')
    group_flag_addr(A, 20, FLAG_OFF)
    L = K.poll_begin()
    A('buffer_load_dword v21, v20, s[16:19], 0 offen sc1')
    K.waitall_vm()
    A('v_cmp_ne_u32 vcc, s63, v21')
    K.poll_end(L)
    A.label(NPOLL); A.hist = []
    A('s_barrier')
    K.stamp('s0flag')
```

```python
import os
from asmlib import *
from layout import *
from s0 import BIG
from k1 import *

DMAPOL = os.environ.get('DMAPOL', 'nt')

GU_SPLIT = int(os.environ.get('GUSPLIT', 6))
GU_SPLIT2 = int(os.environ.get('GUSPLIT2', 18))
DN_AT = os.environ.get('DNAT', 'b6')

def gu_dma(K, i0, i1):
    A = K.A
    if i0 >= i1 or os.environ.get('NOGU'): return
    NOGU = A.newlabel('NOGU')
    A('s_cmp_lt_u32 s3, 4'); A(f's_cbranch_scc1 {NOGU}')
    A('s_cmp_ge_u32 s61, 144'); A(f's_cbranch_scc1 {NOGU}')
    A('v_lshrrev_b32 v9, 2, v0'); A('v_mul_u32_u24 v9, 9216, v9')
    A('v_and_b32 v10, 3, v0'); A('v_lshl_add_u32 v9, v10, 4, v9')
    A('s_lshl_b32 s46, s61, 6'); A('v_add_u32 v9, s46, v9')
    A('s_lshr_b32 s46, s55, 1'); A('s_and_b32 s47, s55, 1')
    A('s_mul_i32 s48, s46, 36864'); A('s_mul_i32 s49, s47, 18432'); A('s_add_u32 s48, s48, s49'); A(f's_add_u32 s48, s48, {L_GU}')
    A(f's_mul_i32 s49, s47, {18*147456}')
    G2 = A.newlabel('GUUP'); G3 = A.newlabel('GUDONE')
    A('s_cmp_eq_u32 s46, 1'); A(f's_cbranch_scc1 {G2}')
    for srd_, lab in ((28, None), (32, G2)):
        if lab: A.label(lab)
        for i in range(i0, i1):
            A(f's_add_u32 m0, s48, {i*1024}')
            A(f's_add_u32 s50, s49, {i*147456}')
            A(f'buffer_load_dwordx4 v9, s[{srd_}:{srd_+3}], s50 offen {DMAPOL} lds')
        if lab is None: A(f's_branch {G3}')
    A.label(G3)
    A.label(NOGU)

def dn_dma(K):
    A = K.A
    if os.environ.get('NOGU'): return
    ND = A.newlabel('NODN')
    A('s_cmp_lt_u32 s3, 4'); A(f's_cbranch_scc1 {ND}')
    A('s_cmp_ge_u32 s61, 144'); A(f's_cbranch_scc1 {ND}')
    A('s_mul_i32 s46, s61, 36864'); A('s_mul_i32 s47, s55, 9216'); A('s_add_u32 s46, s46, s47')
    A('v_add_u32 v9, s46, v1')
    for i in range(9):
        if i % 4 == 0:
            A(f's_add_u32 m0, s47, {L_DN + (i//4)*4096}'); A(f's_mov_b32 s48, {(i//4)*4096}')
        A(f'buffer_load_dwordx4 v9, s[36:39], s48 offen offset:{(i%4)*1024} {DMAPOL} lds')
    A.label(ND)

def rest(K):
    A = K.A
    stop = K.stop
    NH, NC = NCT_H, 9 - NCT_H
    A('s_lshr_b32 s46, s45, 2'); A('s_sub_u32 s47, s45, s46'); A('s_sub_u32 s47, s47, 1')
    A('s_mul_i32 s61, s44, 18'); A('s_add_u32 s61, s61, s47')
    A('s_cmp_lt_u32 s47, 18'); A('s_cselect_b32 s61, s61, -1')
    A('s_cmp_eq_u32 s43, 0'); A('s_cselect_b32 s61, -1, s61')
    A('s_sub_u32 s48, s47, 10')
    A('s_cmp_eq_u32 s43, 0'); A('s_cselect_b32 s48, s46, s48')
    A('s_mul_i32 s54, s44, 14'); A('s_add_u32 s54, s54, s48')
    A('s_lshl_b32 s48, s44, 2'); A('s_add_u32 s48, s48, s47'); A('s_add_u32 s48, s48, 112')
    A('s_cmp_lt_u32 s47, 4'); A('s_cselect_b32 s48, s48, -1')
    A('s_cmp_lt_u32 s61, 144'); A('s_cselect_b32 s54, s48, s54')
    A('s_and_b32 s56, s3, 1'); A('s_lshr_b32 s57, s3, 1')
    A('s_lshl_b32 s58, s57, 1'); A('s_add_u32 s58, s58, 1'); A('s_cmp_eq_u32 s57, 0'); A('s_cselect_b32 s58, 0, s58')
    A('s_mul_i32 s59, s43, 144'); A('s_lshl_b32 s46, s58, 4'); A('s_add_u32 s59, s59, s46')
    A('s_lshl_b32 s46, s42, 5'); A('s_lshl_b32 s47, s56, 4'); A('s_add_u32 s46, s46, s47')
    A('v_add_u32 v5, s46, v2')
    A('v_mul_u32_u24 v6, 1152, v5')
    A('v_lshlrev_b32 v7, 2, v3'); A('v_add_u32 v7, s59, v7')
    A('v_lshl_add_u32 v6, v7, 1, v6')
    A(f'v_lshlrev_b32 v8, 2, v7'); A(f'v_add_u32 v8, {WRC_OFF}, v8')
    for i in range(3):
        A(f'buffer_load_dwordx2 a[{120+2*i}:{121+2*i}], v6, s[20:23], 0 offen offset:{32*i}', 'xr')
        A(f'buffer_load_dwordx4 a[{128+4*i}:{131+4*i}], v8, s[16:19], 0 offen offset:{64*i}', 'xr')
    if os.environ.get('PFTEST'):
        from s0 import moe_prefetch_wave
        NT_ = A.newlabel('PFT')
        A('s_cmp_lg_u32 s3, 5'); A(f's_cbranch_scc1 {NT_}')
        moe_prefetch_wave(K, os.environ.get('PFPOL', ''))
        K.other_srds()
        A.label(NT_)
        K.waitall_vm()
        K.stamp('pft0')
        K.bar()
        for _ in range(int(os.environ['PFTEST'])): A('s_sleep 100')
        K.bar()
        K.stamp('pft1')
    A.vm = []
    if os.environ.get('PFAT') == 'BC':
        NPF = A.newlabel('NPFC')
        A('s_cmp_lt_u32 s3, 4'); A(f's_cbranch_scc1 {NPF}')
        A('v_subrev_u32 v104, 256, v4')
        K.moe_prefetch('v104', 4, 100, ('a142', 'a143'))
        A.label(NPF)
    BQ, AC = 12, 52
    A('s_lshl_b32 s46, s42, 5'); A('s_lshl_b32 s47, s55, 2'); A('s_add_u32 s46, s46, s47')
    A('s_lshl_b32 s47, s46, 10'); A(f's_add_u32 s47, s47, {OPM_OFF}'); A('v_add_u32 v9, s47, v1')
    A('s_lshl_b32 s47, s46, 8'); A(f's_add_u32 s47, s47, {OPT_OFF}'); A('v_lshlrev_b32 v10, 2, v0'); A('v_add_u32 v10, s47, v10')
    K.stamp('s3pre')
    if os.environ.get('BARPOLL'): K.bar()
    L = K.poll_begin()
    A('s_mov_b32 s46, 16384'); A('s_mov_b32 s47, 4096')
    for tt in range(2):
        for u in range(4):
            r = BQ + (tt*5+u)*4
            A(f'buffer_load_dwordx4 v[{r}:{r+3}], v9, s[16:19], {"s46" if tt else "0"} offen offset:{u*1024} sc1')
        for i in range(4):
            r = BQ + (tt*5+4)*4 + i
            A(f'buffer_load_dword v{r}, v10, s[16:19], {"s47" if tt else "0"} offen offset:{i*256} sc1')
    K.waitall_vm()
    A(f'v_max3_u32 v11, v{BQ}, v{BQ+1}, v{BQ+2}')
    for r in range(BQ+3, BQ+39, 2): A(f'v_max3_u32 v11, v11, v{r}, v{r+1}')
    A(f'v_max_u32 v11, v11, v{BQ+39}')
    A('v_cmp_eq_u32 vcc, -1, v11')
    K.poll_end(L)
    K.stamp('opoll')
    def mm(n):
        for u in range(5):
            for i in range(n):
                for tt in range(2):
                    d = AC + (i*2+tt)*4; a_ = (i*5+u)*4; b = BQ + (tt*5+u)*4
                    c = '0' if u == 0 else f'v[{d}:{d+3}]'
                    A(f'v_mfma_f32_16x16x32_bf16 v[{d}:{d+3}], a[{a_}:{a_+3}], v[{b}:{b+3}], {c}')
    A('s_mul_i32 s46, s55, 18432')
    A('v_add_u32 v11, s46, v1')
    CM = A.newlabel('S3C'); JM = A.newlabel('S3J')
    A('s_cmp_lt_u32 s3, 4'); A(f's_cbranch_scc1 {CM}')
    mm(NH)
    for i in range(NH):
        for tt in range(2):
            d = AC + (i*2+tt)*4
            A(f'ds_write_b128 v11, v[{d}:{d+3}] offset:{L_RED + (i*2+tt)*1024}', 'red')
    A.wait_lg()
    A(f's_branch {JM}')
    A.label(CM); A.hist = []
    mm(NC)
    for i in range(NC):
        for tt in range(2):
            d = AC + (i*2+tt)*4
            A(f'ds_write_b128 v11, v[{d}:{d+3}] offset:{L_RED + ((NH+i)*2+tt)*1024}', 'red')
    A.wait_lg()
    A.label(JM); A('s_nop 1')
    gu_dma(K, 0, GU_SPLIT)
    if os.environ.get('PFAT') == 'B5':
        NPF = A.newlabel('NPF5')
        A('s_cmp_ge_u32 s3, 4'); A(f's_cbranch_scc1 {NPF}')
        K.moe_prefetch('v4', 0, 100, ('v110', 'v111'))
        A.label(NPF)
    K.bar()
    K.stamp('s3mm')
    A('s_lshl_b32 s46, s58, 1'); A('s_add_u32 s46, s46, s56'); A('s_lshl_b32 s46, s46, 10')
    A('v_add_u32 v11, s46, v1')
    PR, HR = 12, 60
    S1, S2_, S3_ = 72, 73, 74
    def tile(i):
        for kq in range(4):
            r = PR + (i*4+kq)*4
            A(f'ds_read_b128 v[{r}:{r+3}], v11 offset:{L_RED + kq*18432 + i*2048}', ('pr', i))
    def proc(i):
        r = PR + i*16
        A.wait_lg(('pr', i))
        for b in (0, 2):
            A(f'v_pk_add_f32 v[{r+b}:{r+b+1}], v[{r+b}:{r+b+1}], v[{r+4+b}:{r+5+b}]')
            A(f'v_pk_add_f32 v[{r+8+b}:{r+9+b}], v[{r+8+b}:{r+9+b}], v[{r+12+b}:{r+13+b}]')
        A(f'v_accvgpr_read_b32 v76, a{120+2*i}'); A(f'v_accvgpr_read_b32 v77, a{121+2*i}')
        for b in (0, 2):
            A(f'v_pk_add_f32 v[{r+b}:{r+b+1}], v[{r+b}:{r+b+1}], v[{r+8+b}:{r+9+b}]')
        for b in range(4): A(f'v_accvgpr_read_b32 v{r+4+b}, a{128+4*i+b}')
        A('v_lshlrev_b32 v78, 16, v76'); A('v_and_b32 v79, 0xffff0000, v76')
        A('v_lshlrev_b32 v80, 16, v77'); A('v_and_b32 v81, 0xffff0000, v77')
        A(f'v_pk_add_f32 v[{r}:{r+1}], v[{r}:{r+1}], v[78:79]'); A(f'v_pk_add_f32 v[{r+2}:{r+3}], v[{r+2}:{r+3}], v[80:81]')
        A(f'v_cvt_pk_bf16_f32 v76, v{r}, v{r+1}'); A(f'v_cvt_pk_bf16_f32 v77, v{r+2}, v{r+3}')
        h = HR + 4*i
        A(f'v_lshlrev_b32 v{h}, 16, v76'); A(f'v_and_b32 v{h+1}, 0xffff0000, v76')
        A(f'v_lshlrev_b32 v{h+2}, 16, v77'); A(f'v_and_b32 v{h+3}, 0xffff0000, v77')
        for b in range(4):
            A(f'v_add_f32 v{S1}, v{S1}, v{h+b}')
            A(f'v_fmac_f32 v{S2_}, v{h+b}, v{h+b}')
            A(f'v_fmac_f32 v{S3_}, v{h+b}, v{r+4+b}')
    for r in (S1, S2_, S3_, 75): A(f'v_mov_b32 v{r}, 0')
    tile(0); tile(1)
    T2 = A.newlabel('NOT2')
    proc(0); proc(1)
    A('s_cmp_lg_u32 s57, 0'); A(f's_cbranch_scc1 {T2}')
    tile(2); proc(2)
    A.label(T2); A.hist = []; A('s_nop 1')
    K.xsum_g([S1, S2_, S3_], 76)
    A('s_lshl_b32 s46, s56, 2'); A('s_add_u32 s46, s46, s57'); A('s_lshl_b32 s46, s46, 8'); A(f's_add_u32 s46, s46, {L_STAT}')
    A('v_lshlrev_b32 v8, 4, v2'); A('v_add_u32 v8, s46, v8')
    A('s_mov_b64 exec, 0xffff')
    A(f'ds_write_b128 v8, v[{S1}:{S1+3}]', 'st')
    A('s_mov_b64 exec, -1')
    K.barrier()
    K.stamp('stat')
    NP = A.newlabel('NOPUB')
    A('s_cmp_lg_u32 s57, 0'); A(f's_cbranch_scc1 {NP}')
    A('s_lshl_b32 s46, s56, 10'); A(f's_add_u32 s46, s46, {L_STAT}')
    A('v_lshlrev_b32 v8, 8, v3'); A('v_lshl_add_u32 v8, v2, 4, v8'); A('v_add_u32 v8, s46, v8')
    A('ds_read_b128 v[76:79], v8', 'sr'); A.wait_lg()
    K.xsum_g([76, 77, 78], 80)
    A('s_lshl_b32 s46, s42, 1'); A('s_add_u32 s46, s46, s56'); A('s_lshl_b32 s46, s46, 2'); A('s_add_u32 s46, s46, s43')
    A('s_lshl_b32 s46, s46, 8'); A(f's_add_u32 s46, s46, {STP_OFF}')
    A('v_lshlrev_b32 v8, 4, v2'); A('v_add_u32 v8, s46, v8')
    A('v_mov_b32 v79, 0')
    A('s_mov_b64 exec, 0xffff')
    A('buffer_store_dwordx4 v[76:79], v8, s[16:19], 0 offen sc1')
    A('s_mov_b64 exec, -1')
    A.label(NP); A.hist = []
    GATE = os.environ.get('GATE', '0') == '1'
    if not GATE:
        gu_dma(K, GU_SPLIT, GU_SPLIT2)
        if DN_AT == 'b6': dn_dma(K)
    A.vm = []
    MEAN, RSTD, RV, KEY = 72, 73, 74, 75
    NH3 = A.newlabel('NOH3')
    A('s_cmp_lg_u32 s57, 0'); A(f's_cbranch_scc1 {NH3}')
    A('s_lshl_b32 s46, s42, 1'); A('s_add_u32 s46, s46, s56'); A('s_lshl_b32 s46, s46, 10'); A(f's_add_u32 s46, s46, {STP_OFF}')
    A('v_lshlrev_b32 v8, 8, v3'); A('v_lshl_add_u32 v8, v2, 4, v8'); A('v_add_u32 v8, s46, v8')
    L = K.poll_begin()
    A('buffer_load_dwordx4 v[76:79], v8, s[16:19], 0 offen sc1')
    K.waitall_vm()
    A('v_add_f32 v80, v76, v77'); A('v_add_f32 v80, v80, v78')
    A('v_cmp_u_f32 vcc, v80, v80')
    K.poll_end(L)
    K.stamp('h3')
    K.xsum_g([76, 77, 78], 80)
    A('s_mov_b32 s46, 0x3AE38E39')
    A(f'v_mul_f32 v{MEAN}, s46, v76'); A('v_mul_f32 v77, s46, v77')
    A(f'v_fma_f32 v77, -v{MEAN}, v{MEAN}, v77'); A('v_add_f32 v77, 0x3727c5ac, v77')
    A(f'v_rsq_f32 v{RSTD}, v77')
    A(f'v_mul_f32 v{RV}, v78, v{RSTD}')
    A(f'v_ashrrev_i32 v76, 31, v{RV}'); A('v_or_b32 v76, 0x80000000, v76'); A(f'v_xor_b32 v76, v76, v{RV}')
    A('s_mov_b32 s46, 0xfffff800')
    A(f'v_and_or_b32 v{KEY}, v76, s46, v5')
    A('v_lshlrev_b32 v8, 2, v5'); A(f'v_add_u32 v8, {RR_OFF}, v8')
    A(f'v_mov_b32 v9, {BIG}'); A('s_cmp_eq_u32 s43, 0'); A('s_cselect_b64 vcc, -1, 0'); A('v_cndmask_b32 v8, v9, v8, vcc')
    A('s_lshl_b32 s46, s56, 8'); A(f's_add_u32 s46, s46, {L_TOK}'); A('v_lshlrev_b32 v9, 4, v2'); A('v_add_u32 v9, s46, v9')
    A('s_mov_b64 exec, 0xffff')
    A(f'buffer_store_dword v{KEY}, v8, s[16:19], 0 offen sc1')
    A(f'ds_write_b128 v9, v[{MEAN}:{MEAN+3}]', 'tok')
    A('s_mov_b64 exec, -1')
    A('s_lshl_b32 s46, s56, 2'); A(f's_add_u32 s46, s46, {L_WMAX + 32}'); A('v_mov_b32 v9, s46'); A('v_mov_b32 v8, 1')
    A('ds_write_b32 v9, v8', 'gate')
    A.wait_lg()
    A.label(NH3); A.hist = []
    if GATE:
        NG = A.newlabel('NOGATE')
        A('s_cmp_lt_u32 s3, 4'); A(f's_cbranch_scc1 {NG}')
        A('s_cmp_ge_u32 s61, 144'); A(f's_cbranch_scc1 {NG}')
        A(f'v_mov_b32 v9, {L_WMAX + 32}')
        LG = K.poll_begin()
        A('ds_read_b64 v[10:11], v9'); A('s_waitcnt lgkmcnt(0)'); A.lg = []
        A('v_and_b32 v10, v10, v11'); A('v_cmp_eq_u32 vcc, 0, v10')
        K.poll_end(LG)
        A.label(NG); A.hist = []
        gu_dma(K, GU_SPLIT, GU_SPLIT2)
        if DN_AT == 'b6': dn_dma(K)
        A.vm = []
    KQ, OWN = 80, 84
    A('v_lshlrev_b32 v8, 4, v4'); A(f'v_add_u32 v8, {RR_OFF}, v8')
    A('s_lshl_b32 s46, s42, 7'); A(f's_add_u32 s46, s46, {RR_OFF}')
    A('v_lshlrev_b32 v9, 2, v0'); A('v_add_u32 v9, s46, v9')
    A(f'v_mov_b32 v10, {BIG}'); A('v_cmp_gt_u32 vcc, 32, v0'); A('v_cndmask_b32 v9, v10, v9, vcc')
    A.vm = []
    L = K.poll_begin()
    A(f'buffer_load_dwordx4 v[{KQ}:{KQ+3}], v8, s[16:19], 0 offen sc1')
    A(f'buffer_load_dword v{OWN}, v9, s[16:19], 0 offen sc1')
    K.waitall_vm()
    A(f'v_max3_u32 v85, v{KQ}, v{KQ+1}, v{KQ+2}'); A(f'v_max_u32 v85, v85, v{KQ+3}')
    A(f'v_max_u32 v86, v85, v{OWN}')
    A('v_cmp_eq_u32 vcc, -1, v86')
    K.poll_end(L)
    K.stamp('h4')
    for mod in ('quad_perm:[1,0,3,2]', 'quad_perm:[2,3,0,1]', 'row_half_mirror', 'row_mirror'):
        A(f'v_max_u32_dpp v85, v85, v85 {mod} row_mask:0xf bank_mask:0xf')
    A('v_mov_b32 v86, v85'); A('v_permlane16_swap_b32 v85, v86'); A('v_max_u32 v85, v85, v86')
    A('v_mov_b32 v86, v85'); A('v_permlane32_swap_b32 v85, v86'); A('v_max_u32 v85, v85, v86')
    A('s_lshl_b32 s46, s3, 2'); A(f's_add_u32 s46, s46, {L_WMAX}'); A('v_mov_b32 v86, s46')
    A('s_mov_b64 exec, 1'); A('ds_write_b32 v86, v85', 'wm'); A('s_mov_b64 exec, -1')
    K.barrier()
    gu_dma(K, GU_SPLIT2, 18)
    if DN_AT == 'b7': dn_dma(K)
    A(f'v_mov_b32 v86, {L_WMAX}')
    A('ds_read_b128 v[88:91], v86', 'wm'); A('ds_read_b128 v[92:95], v86 offset:16', 'wm'); A.wait_lg()
    A('v_min3_u32 v88, v88, v89, v90'); A('v_min3_u32 v91, v91, v92, v93'); A('v_min3_u32 v88, v88, v94, v95'); A('v_min_u32 v88, v88, v91')
    TAU = 88
    LN = 12
    A('s_lshl_b32 s46, s56, 8'); A(f's_add_u32 s46, s46, {L_TOK}'); A('v_lshlrev_b32 v86, 4, v2'); A('v_add_u32 v86, s46, v86')
    A(f'ds_read_b128 v[{MEAN}:{MEAN+3}], v86', 'tok')
    A(f'v_cmp_ge_u32 vcc, v{OWN}, v{TAU}')
    A('s_mov_b64 s[50:51], vcc')
    CL = A.newlabel('CAND'); CD = A.newlabel('CANDD')
    A.label(CL)
    A('s_cmp_eq_u32 s50, 0'); A(f's_cbranch_scc1 {CD}')
    A('s_ff1_i32_b32 s46, s50')
    A('s_bitset0_b32 s50, s46')
    A(f'v_readlane_b32 s47, v{OWN}, s46')
    A('s_nop 3')
    A('s_mov_b32 s48, 0')
    for q in range(4):
        A(f'v_cmp_lt_u32 vcc, s47, v{KQ+q}')
        A('s_bcnt1_i32_b64 s49, vcc'); A('s_add_u32 s48, s48, s49')
    A('s_lshl_b32 s46, s46, 2'); A(f's_add_u32 s46, s46, {L_RANK}')
    A('v_mov_b32 v86, s46'); A('v_mov_b32 v87, s48')
    A('s_mov_b64 exec, 1'); A('ds_add_u32 v86, v87', 'rk'); A('s_mov_b64 exec, -1')
    A(f's_branch {CL}')
    A.label(CD); A.hist = []
    A.wait_lg()
    A(f'v_mul_f32 v76, v{MEAN}, v{RSTD}'); A('v_sub_f32 v76, 0, v76'); A('v_mov_b32 v77, v76')
    A(f'v_mov_b32 v78, v{RSTD}'); A(f'v_mov_b32 v79, v{RSTD}')
    for q in range(0, 12, 2): A(f'v_pk_fma_f32 v[{LN+q}:{LN+q+1}], v[{HR+q}:{HR+q+1}], v[78:79], v[76:77]')
    K.barrier()
    K.stamp('rank')
    A('s_lshl_b32 s46, s56, 6'); A(f's_add_u32 s46, s46, {L_RANK}')
    A('v_lshlrev_b32 v86, 2, v2'); A('v_add_u32 v86, s46, v86')
    A('ds_read_b32 v87, v86', 'rk'); A.wait_lg()
    RK = 87
    A(f'v_cmp_ge_u32 s[50:51], v{KEY}, v{TAU}'); A(f'v_cmp_gt_u32 vcc, 8, v{RK}'); A('s_and_b64 s[50:51], s[50:51], vcc')
    BS, PK = 24, 36
    for q in range(0, 12, 2): A(f'v_pk_add_f32 v[{BS+q}:{BS+q+1}], v[{HR+q}:{HR+q+1}], v[{LN+q}:{LN+q+1}]')
    for q in range(6): A(f'v_cvt_pk_bf16_f32 v{PK+q}, v{BS+2*q}, v{BS+2*q+1}')
    for q in range(6): A(f'v_cvt_pk_bf16_f32 v{PK+6+q}, v{LN+2*q}, v{LN+2*q+1}')
    A(f'v_mul_u32_u24 v8, 1152, v{RK}'); A('v_lshl_add_u32 v8, v7, 1, v8'); A(f'v_add_u32 v8, {XSEL_OFF}, v8')
    A(f'v_mul_u32_u24 v9, 2304, v{RK}'); A('v_lshl_add_u32 v9, v7, 2, v9'); A(f'v_add_u32 v9, {BASE_OFF}, v9')
    A(f'v_lshlrev_b32 v10, 3, v{RK}'); A(f'v_add_u32 v10, {META_OFF}, v10')
    A('v_mov_b32 v48, v5'); A(f'v_mov_b32 v49, v{RV}')
    def sel_stores(ntile):
        SK = A.newlabel('NOSEL')
        A('s_and_saveexec_b64 s[52:53], s[50:51]'); A(f's_cbranch_execz {SK}')
        for i in range(ntile):
            A(f'buffer_store_dwordx2 v[{PK+6+2*i}:{PK+7+2*i}], v8, s[16:19], 0 offen offset:{32*i} sc1')
            A(f'buffer_store_dwordx4 v[{BS+4*i}:{BS+4*i+3}], v9, s[16:19], 0 offen offset:{64*i} sc1')
        A.label(SK)
        A('s_mov_b64 exec, s[52:53]')
    def out_stores(ntile):
        A('s_andn2_b64 exec, exec, s[50:51]')
        SK2 = A.newlabel('NOOUT')
        A(f's_cbranch_execz {SK2}')
        for i in range(ntile):
            A(f'buffer_store_dwordx2 v[{PK+2*i}:{PK+2*i+1}], v6, s[24:27], 0 offen offset:{32*i}')
        A.label(SK2)
        A('s_mov_b64 exec, -1')
    S3T = A.newlabel('ST3'); SJ = A.newlabel('STJ')
    A('s_cmp_eq_u32 s57, 0'); A(f's_cbranch_scc1 {S3T}')
    sel_stores(2)
    A(f's_branch {SJ}')
    A.label(S3T)
    sel_stores(3)
    NM = A.newlabel('NOMETA')
    A('s_cmp_lg_u32 s43, 0'); A(f's_cbranch_scc1 {NM}')
    A('s_and_b64 s[52:53], s[50:51], 0xffff')
    A('s_and_saveexec_b64 s[48:49], s[52:53]'); A(f's_cbranch_execz {NM}_R')
    A('buffer_store_dwordx2 v[48:49], v10, s[16:19], 0 offen sc1')
    A.label(NM + '_R')
    A('s_mov_b64 exec, -1')
    A.label(NM)
    A.label(SJ); A.hist = []
    A('s_mov_b64 exec, -1')
    K.bar()
    if DN_AT == 'b8': dn_dma(K)
    O3 = A.newlabel('OUT3'); OJ = A.newlabel('OUTJ')
    A('s_cmp_eq_u32 s57, 0'); A(f's_cbranch_scc1 {O3}')
    out_stores(2)
    A(f's_branch {OJ}')
    A.label(O3)
    out_stores(3)
    A.label(OJ); A.hist = []
    K.stamp('sel')
    if stop == 'sel': return
    s5(K)

def s5(K):
    A = K.A
    A.vm = []; A.lg = []
    FIN = A.newlabel('FINAL')
    A('s_cmp_ge_u32 s61, 144'); A(f's_cbranch_scc1 {FIN}')
    XB, AFG, DNA, DG = 12, 28, 76, 96
    A('s_mul_i32 s46, s3, 3'); A('s_lshl_b32 s47, s3, 1'); A('s_add_u32 s47, s47, 2'); A('s_cmp_lt_u32 s3, 2'); A('s_cselect_b32 s46, s46, s47')
    A('v_and_b32 v26, 7, v2'); A('v_mul_u32_u24 v8, 1152, v26'); A('v_lshl_add_u32 v8, v3, 4, v8')
    A('s_lshl_b32 s47, s46, 6'); A(f's_add_u32 s47, s47, {XSEL_OFF}'); A('v_add_u32 v8, s47, v8')
    A('v_lshrrev_b32 v24, 2, v2'); A('v_lshl_add_u32 v24, v3, 3, v24')
    A('v_and_b32 v25, 3, v2'); A('v_lshlrev_b32 v25, 3, v25')
    A('v_lshl_add_u32 v9, v24, 6, v25')
    A('s_lshl_b32 s47, s46, 11'); A(f's_add_u32 s47, s47, {L_GU}'); A('v_add_u32 v9, s47, v9'); A('v_add_u32 v10, 36864, v9')
    first = True
    def xsel_loads():
        for i in range(3): A(f'buffer_load_dwordx4 v[{XB+4*i}:{XB+4*i+3}], v8, s[16:19], 0 offen offset:{64*i} sc1')
    def gu_reads(i):
        for ch in range(4):
            mat, ft = ch >> 1, ch & 1
            for h in range(2):
                r = AFG + (i*4+ch)*4 + 2*h
                A(f'ds_read_b64_tr_b16 v[{r}:{r+1}], v{9+mat} offset:{i*2048 + h*256 + ft*32}', ('gu', i))
    gu_reads(0)
    A('v_mul_u32_u24 v11, 1152, v24'); A('v_add_u32 v11, v11, v25')
    A('s_lshl_b32 s47, s3, 7'); A(f's_add_u32 s47, s47, {L_DN}'); A('v_add_u32 v11, s47, v11')
    A.wait_lg(('gu', 0)); gu_reads(1)
    A('v_lshlrev_b32 v26, 6, v26'); A('v_lshl_add_u32 v26, v3, 4, v26'); A(f'v_add_u32 v26, {L_AIMG}, v26')
    A('v_and_b32 v27, 7, v2'); A('v_mul_u32_u24 v27, %d, v27' % (9*144*128))
    A('v_lshrrev_b32 v92, 3, v2'); A('v_lshl_add_u32 v27, v92, 6, v27')
    A('v_and_b32 v92, 1, v3'); A('v_lshl_add_u32 v27, v92, 5, v27')
    A('v_lshrrev_b32 v92, 1, v3'); A('v_lshl_add_u32 v27, v92, 4, v27')
    A('s_lshl_b32 s47, s61, 7'); A(f's_add_u32 s47, s47, {YP_OFF}'); A('v_add_u32 v27, s47, v27')
    A(f's_mul_i32 s49, s3, {144*128}')
    A.wait_lg(('gu', 1)); gu_reads(2)
    A.wait_lg(('gu', 2))
    for i in range(4):
        for h in range(2):
            r = DNA + 4*i + 2*h
            A(f'ds_read_b64_tr_b16 v[{r}:{r+1}], v11 offset:{i*32 + h*4*1152}', 'dn')
    A('v_mov_b32 v93, v11')
    A('v_and_b32 v24, 31, v4'); A('v_lshrrev_b32 v25, 5, v4')
    A('v_lshrrev_b32 v9, 4, v24'); A('v_lshlrev_b32 v9, 10, v9')
    A('v_bfe_u32 v10, v24, 2, 2'); A('v_and_b32 v11, 7, v25'); A('v_lshl_add_u32 v10, v10, 4, v11'); A('v_lshl_add_u32 v9, v10, 4, v9')
    A('v_and_b32 v10, 3, v24'); A('v_lshl_add_u32 v9, v10, 2, v9'); A(f'v_add_u32 v9, {L_R2}, v9')
    A('v_lshlrev_b32 v10, 6, v11'); A('v_lshl_add_u32 v10, v24, 1, v10'); A(f'v_add_u32 v10, {L_AIMG}, v10')
    A('s_lshl_b32 s47, s3, 12'); A(f's_add_u32 s47, s47, {L_R2}'); A('v_add_u32 v11, s47, v1')
    A('s_cmp_lt_u32 s3, 2'); A('s_cselect_b32 s47, -1, 0')
    A.wait_lg()
    L = K.poll_begin()
    xsel_loads()
    K.waitall_vm()
    A(f'v_max3_u32 v24, v{XB}, v{XB+1}, v{XB+2}')
    for r in range(XB+3, XB+7, 2): A(f'v_max3_u32 v24, v24, v{r}, v{r+1}')
    A(f'v_max3_u32 v25, v{XB+8}, v{XB+9}, v{XB+10}'); A(f'v_max_u32 v25, v25, v{XB+11}')
    A('v_and_b32 v25, s47, v25'); A(f'v_max3_u32 v24, v24, v25, v{XB+7}')
    A('v_cmp_eq_u32 vcc, -1, v24')
    K.poll_end(L)
    K.stamp('xsel')
    def gu_mm(i):
        for ch in range(4):
            r = AFG + (i*4+ch)*4; d = DG + 4*ch
            c = '0' if i == 0 else f'v[{d}:{d+3}]'
            A(f'v_mfma_f32_16x16x32_bf16 v[{d}:{d+3}], v[{r}:{r+3}], v[{XB+4*i}:{XB+4*i+3}], {c}')
    gu_mm(0); gu_mm(1)
    G2 = A.newlabel('GU2')
    A('s_cmp_ge_u32 s3, 2'); A(f's_cbranch_scc1 {G2}')
    gu_mm(2)
    A.label(G2); A('s_nop 7'); A.hist = []
    for ch in range(4): A(f'ds_write_b128 v11, v[{DG+4*ch}:{DG+4*ch+3}] offset:{ch*1024}', 'r2')
    K.barrier()
    AS = A.newlabel('ASKIP')
    A('s_cmp_ge_u32 s3, 4'); A(f's_cbranch_scc1 {AS}')
    for w in range(8): A(f'ds_read_b32 v{28+w}, v9 offset:{w*4096}', 'g')
    for w in range(7): A(f'ds_read_b32 v{36+w}, v9 offset:{w*4096 + 2048}', 'u')
    A.wait_lg('g')
    A(f'ds_read_b32 v43, v9 offset:{7*4096 + 2048}', 'u')
    A('v_add_f32 v28, v28, v29'); A('v_add_f32 v30, v30, v31'); A('v_add_f32 v32, v32, v33'); A('v_add_f32 v34, v34, v35')
    A('v_add_f32 v28, v28, v30'); A('v_add_f32 v32, v32, v34'); A('v_add_f32 v28, v28, v32')
    A('v_mul_f32 v29, 0xbfb8aa3b, v28'); A('v_exp_f32 v29, v29'); A('v_add_f32 v29, 1.0, v29'); A('v_rcp_f32 v29, v29')
    A.wait_lg()
    A('v_add_f32 v36, v36, v37'); A('v_add_f32 v38, v38, v39'); A('v_add_f32 v40, v40, v41'); A('v_add_f32 v42, v42, v43')
    A('v_add_f32 v36, v36, v38'); A('v_add_f32 v40, v40, v42'); A('v_mul_f32 v28, v28, v29'); A('v_add_f32 v36, v36, v40')
    A('v_mul_f32 v28, v28, v36'); A('v_cvt_pk_bf16_f32 v28, v28, v28')
    A('ds_write_b16 v10, v28', 'a'); A.wait_lg()
    A.label(AS); A.hist = []
    K.bar()
    A('ds_read_b128 v[12:15], v26', 'ab'); A.wait_lg()
    def dn(soff):
        for i in range(4):
            A(f'v_mfma_f32_16x16x32_bf16 v[{28+4*i}:{31+4*i}], v[{DNA+4*i}:{DNA+4*i+3}], v[12:15], 0')
        for i in range(4):
            d = 28 + 4*i; q = 44 + 2*i
            A(f'v_cvt_pk_bf16_f32 v{q}, v{d}, v{d+1}'); A(f'v_cvt_pk_bf16_f32 v{q+1}, v{d+2}, v{d+3}')
        for pr in (44, 48):
            A(f'v_permlane16_swap_b32 v{pr}, v{pr+2}'); A(f'v_permlane16_swap_b32 v{pr+1}, v{pr+3}')
        A('v_cmp_lt_u32 vcc, 7, v2')
        for k in range(4): A(f'v_cndmask_b32 v{52+k}, v{44+k}, v{48+k}, vcc')
        A(f'buffer_store_dwordx4 v[52:55], v27, s[16:19], {soff} offen sc1')
    dn('s49')
    DJ = A.newlabel('DNJ')
    A('s_cmp_lg_u32 s3, 4'); A(f's_cbranch_scc1 {DJ}')
    for i in range(4):
        for h in range(2):
            r = DNA + 4*i + 2*h
            A(f'ds_read_b64_tr_b16 v[{r}:{r+1}], v93 offset:{512 + i*32 + h*4*1152}', 'dn')
    A.wait_lg()
    A(f's_mov_b32 s49, {8*144*128}')
    dn('s49')
    A.label(DJ); A.hist = []
    K.bar()
    K.stamp('ypub')
    A.label(FIN); A.hist = []; A.vm = []; A.lg = []
    A('s_cmp_ge_u32 s54, 144'); A('s_cbranch_scc1 K1_FIN')
    A('s_mov_b32 s46, s54')
    A('s_mul_hi_u32 s47, s46, 0x%x' % ((1 << 32)//18 + 1))
    A('s_mul_i32 s48, s47, 18'); A('s_sub_u32 s48, s46, s48')
    A('v_and_b32 v8, 15, v4'); A('v_lshrrev_b32 v9, 4, v4')
    A('s_mul_i32 s49, s47, 9'); A('s_lshr_b32 s50, s48, 1'); A('s_add_u32 s49, s49, s50'); A(f's_mul_i32 s49, s49, {144*128}')
    A('s_and_b32 s50, s48, 1'); A('s_lshl_b32 s50, s50, 6'); A('s_add_u32 s49, s49, s50'); A(f's_add_u32 s49, s49, {YP_OFF}')
    A('v_lshlrev_b32 v10, 7, v9'); A('v_lshl_add_u32 v10, v8, 2, v10'); A('v_add_u32 v10, s49, v10')
    A(f'v_add_u32 v11, {4*4096}, v10'); A(f'v_mov_b32 v12, {BIG}'); A('v_cmp_gt_u32 vcc, 16, v9'); A('v_cndmask_b32 v11, v12, v11, vcc')
    A('s_mul_i32 s49, s47, 2304'); A('s_lshl_b32 s50, s48, 7'); A('s_add_u32 s49, s49, s50'); A(f's_add_u32 s49, s49, {BASE_OFF}')
    A('v_lshlrev_b32 v13, 3, v8'); A('v_add_u32 v13, s49, v13')
    A('s_lshl_b32 s49, s47, 3'); A(f's_add_u32 s49, s49, {META_OFF}'); A('v_mov_b32 v14, s49')
    L = K.poll_begin()
    for i in range(4):
        A(f's_mov_b32 s{49+(i&1)}, {i*4096}')
        A(f'buffer_load_dword v{16+i}, v10, s[16:19], s{49+(i&1)} offen sc1')
    A('buffer_load_dword v20, v11, s[16:19], 0 offen sc1')
    A('buffer_load_dwordx2 v[22:23], v13, s[16:19], 0 offen sc1')
    A('buffer_load_dwordx2 v[24:25], v14, s[16:19], 0 offen sc1')
    K.waitall_vm()
    A('v_max3_u32 v15, v16, v17, v18'); A('v_max3_u32 v15, v15, v19, v20'); A('v_max3_u32 v15, v15, v22, v23'); A('v_max_u32 v15, v15, v24')
    A('v_cmp_eq_u32 vcc, -1, v15')
    K.poll_end(L)
    K.stamp('h6')
    A('v_mov_b32 v26, 0'); A('v_mov_b32 v27, 0')
    for i in range(5):
        A(f'v_lshlrev_b32 v28, 16, v{16+i}'); A(f'v_and_b32 v29, 0xffff0000, v{16+i}')
        A('v_pk_add_f32 v[26:27], v[26:27], v[28:29]')
    K.xsum_g([26, 27], 28)
    A('s_lshl_b32 s49, s3, 7'); A(f's_add_u32 s49, s49, {L_FIN}')
    A('v_lshlrev_b32 v28, 3, v8'); A('v_add_u32 v28, s49, v28')
    A('s_mov_b64 exec, 0xffff'); A('ds_write_b64 v28, v[26:27]', 'f'); A('s_mov_b64 exec, -1')
    K.barrier()
    A('s_cmp_lg_u32 s3, 0'); A('s_cbranch_scc1 K1_FIN')
    A('v_lshlrev_b32 v28, 3, v8'); A(f'v_add_u32 v28, {L_FIN}, v28')
    for w in range(8): A(f'ds_read_b64 v[{32+2*w}:{33+2*w}], v28 offset:{w*128}', 'f')
    A.wait_lg()
    for st in (1, 2, 4):
        for w in range(0, 8, 2*st): A(f'v_pk_add_f32 v[{32+2*w}:{33+2*w}], v[{32+2*w}:{33+2*w}], v[{32+2*(w+st)}:{33+2*(w+st)}]')
    A('v_mul_f32 v26, 0xbfb8aa3b, v25'); A('v_exp_f32 v26, v26'); A('v_add_f32 v26, 1.0, v26'); A('v_rcp_f32 v26, v26')
    A('v_fma_f32 v22, v32, v26, v22'); A('v_fma_f32 v23, v33, v26, v23')
    A('v_cvt_pk_bf16_f32 v22, v22, v23')
    A('v_mul_u32_u24 v28, 1152, v24'); A('v_lshl_add_u32 v28, v8, 2, v28'); A('s_lshl_b32 s49, s48, 6'); A('v_add_u32 v28, s49, v28')
    A('s_mov_b64 exec, 0xffff')
    A('buffer_store_dword v22, v28, s[24:27], 0 offen')
    A('s_mov_b64 exec, -1')
```

```python
import os
from asmlib import *
from layout import *
BIG = 0x40000000
FILLAT = os.environ.get('FILLAT', 'late')
RAWF = os.environ.get('RAWF', '')
LOG2E = 0x3FB8AA3B

def srd(A, d, lo, hi, size):
    A(f's_mov_b32 s{d}, s{lo}'); A(f's_mov_b32 s{d+1}, s{hi}')
    A(f's_mov_b32 s{d+2}, {size}'); A(f's_mov_b32 s{d+3}, 0x20000')

def group_flag_addr(A, r, base):
    a, b, c, d = r-4, r-3, r-2, r-1
    A(f'v_and_b32 v{a}, 15, v0'); A(f'v_bfe_u32 v{b}, v0, 4, 1')
    A(f'v_mov_b32 v{c}, s40'); A(f'v_mov_b32 v{d}, s41')
    A(f'v_cmp_eq_u32 vcc, 0, v{b}')
    A(f'v_cndmask_b32 v{c}, v{a}, v{c}, vcc')
    A(f'v_cndmask_b32 v{d}, v{d}, v{a}, vcc')
    A(f'v_and_b32 v{r}, 3, v{c}'); A(f'v_lshlrev_b32 v{r}, 3, v{r}'); A(f'v_and_b32 v{r+1}, 7, v{d}'); A(f'v_or_b32 v{r}, v{r}, v{r+1}'); A(f'v_lshlrev_b32 v{r}, 3, v{r}')
    A(f'v_lshrrev_b32 v{r+1}, 2, v{c}'); A(f'v_lshl_or_b32 v{r}, v{r+1}, 1, v{r}'); A(f'v_lshrrev_b32 v{r+1}, 3, v{d}'); A(f'v_or_b32 v{r}, v{r}, v{r+1}')
    A(f'v_lshlrev_b32 v{r}, 7, v{r}'); A(f'v_add_u32 v{r}, {base}, v{r}')

def moe_prefetch_wave(K, pol):
    A = K.A
    srd(A, 20, 8, 9, 576*9216); srd(A, 24, 10, 11, 576*9216); srd(A, 28, 12, 13, 4608*1152)
    A('s_mul_i32 s46, s45, 162')
    for i in range(3):
        t = 20 + 4*i
        A(f'v_add_u32 v{t}, {64*i}, v0'); A(f'v_cmp_gt_u32 vcc, 162, v{t}'); A(f'v_add_u32 v{t}, s46, v{t}')
        A(f'v_mul_u32_u24 v{t+1}, 7282, v{t}'); A(f'v_lshrrev_b32 v{t+1}, 16, v{t+1}')
        A(f'v_mul_u32_u24 v{t+2}, 9, v{t+1}'); A(f'v_sub_u32 v{t+2}, v{t}, v{t+2}')
        A(f'v_mul_u32_u24 v{t+1}, 9216, v{t+1}'); A(f'v_lshl_add_u32 v{t+1}, v{t+2}, 7, v{t+1}')
        A('s_mul_i32 s47, s44, 1152'); A(f'v_add_u32 v{t+1}, s47, v{t+1}')
        A(f'v_lshlrev_b32 v{t+2}, 7, v{t}'); A(f's_mul_i32 s47, s44, {18*36864}'); A(f'v_add_u32 v{t+2}, s47, v{t+2}')
        A(f'v_mov_b32 v{t+3}, {BIG}')
        A(f'v_cndmask_b32 v{t+1}, v{t+3}, v{t+1}, vcc'); A(f'v_cndmask_b32 v{t+2}, v{t+3}, v{t+2}, vcc')
        A(f'buffer_load_dword a143, v{t+1}, s[20:23], 0 offen {pol}')
        A(f'buffer_load_dword a143, v{t+1}, s[24:27], 0 offen {pol}')
        A(f'buffer_load_dword a143, v{t+2}, s[28:31], 0 offen {pol}')

def s0(K, code_sym, code_kb):
    A = K.A
    JOIN = 'S0_JOIN'
    def fills():
        srd(A, 28, 6, 7, FILL_END)
        A('s_lshl_b32 s46, s2, 3'); A('s_add_u32 s46, s46, s3'); A('s_lshl_b32 s46, s46, 11'); A(f's_add_u32 s46, s46, {FILL_OFF}')
        for r in range(8, 12): A(f'v_mov_b32 v{r}, -1')
        A('v_add_u32 v12, s46, v1')
        A('buffer_store_dwordx4 v[8:11], v12, s[28:31], 0 offen sc1', 'fill')
        A('buffer_store_dwordx4 v[8:11], v12, s[28:31], 0 offen offset:1024 sc1', 'fill')
        A('s_lshl_b32 s46, s41, 4'); A('s_add_u32 s46, s46, s40'); A(f's_mul_i32 s46, s46, {KVP_ONE}')
        A('s_mul_i32 s47, s3, 960'); A('s_add_u32 s46, s46, s47'); A(f's_add_u32 s46, s46, {KVP_OFF}')
        A('v_add_u32 v12, s46, v1'); A(f'v_mov_b32 v13, {BIG}'); A('v_cmp_gt_u32 vcc, 60, v0'); A('v_cndmask_b32 v12, v13, v12, vcc')
        A('buffer_store_dwordx4 v[8:11], v12, s[28:31], 0 offen sc1', 'fill')
    if FILLAT == 'pre': fills()
    A('s_cmp_eq_u32 s3, 7'); A('s_cbranch_scc1 S0_E')
    A('s_cmp_eq_u32 s3, 5'); A('s_cbranch_scc1 S0_M')
    A('s_cmp_eq_u32 s3, 4'); A('s_cbranch_scc1 S0_M')
    A('s_sub_u32 s46, s3, 1'); A('s_cmp_lt_u32 s46, 3'); A('s_cbranch_scc1 S0_W')

    A.label('S0_X'); A.vm = []; A.hist = []
    srd(A, 20, 4, 5, 2048*1152)
    A('s_lshl_b32 s46, s40, 7'); A('s_lshl_b32 s47, s41, 3'); A('s_add_u32 s46, s46, s47')
    A('v_lshrrev_b32 v14, 3, v0'); A('v_add_u32 v14, s46, v14')
    A('v_and_b32 v13, 7, v0')
    A('v_mul_u32_u24 v15, 1152, v14'); A('v_lshl_add_u32 v15, v13, 4, v15')
    X = 16
    for i in range(9):
        A(f'buffer_load_dwordx4 v[{X+4*i}:{X+4*i+3}], v15, s[20:23], 0 offen offset:{i*128} {RAWF}', 'x')
    if FILLAT == 'mid': fills()
    A('v_lshrrev_b32 v56, 4, v14'); A('v_mul_u32_u24 v56, 18432, v56')
    A('v_and_b32 v14, 15, v14'); A('v_lshl_add_u32 v56, v14, 4, v56')
    A('v_lshrrev_b32 v14, 2, v13'); A('v_lshl_add_u32 v56, v14, 10, v56')
    A('v_and_b32 v14, 3, v13'); A('v_lshl_add_u32 v56, v14, 8, v56')
    A('s_mov_b32 s46, 0x3f803f80')
    for r in range(60, 68): A(f'v_mov_b32 v{r}, 0')
    K.stamp('s0iss')
    A.wait_vm('x')
    K.stamp('s0ld')
    for k in range(36):
        A(f'v_dot2c_f32_bf16 v{60+(k&3)}, s46, v{X+k}')
        A(f'v_dot2c_f32_bf16 v{64+(k&3)}, v{X+k}, v{X+k}')
    A('v_add_f32 v60, v60, v61'); A('v_add_f32 v62, v62, v63'); A('v_add_f32 v64, v64, v65'); A('v_add_f32 v66, v66, v67')
    A('v_add_f32 v60, v60, v62'); A('v_add_f32 v64, v64, v66')
    for mod in ('quad_perm:[1,0,3,2]', 'quad_perm:[2,3,0,1]', 'row_half_mirror'):
        A(f'v_add_f32_dpp v60, v60, v60 {mod} row_mask:0xf bank_mask:0xf')
        A(f'v_add_f32_dpp v64, v64, v64 {mod} row_mask:0xf bank_mask:0xf')
    A('s_mov_b32 s46, 0x3AE38E39')
    A('v_mul_f32 v60, s46, v60'); A('v_mul_f32 v64, s46, v64')
    A('v_fma_f32 v64, -v60, v60, v64'); A('v_add_f32 v64, 0x3727c5ac, v64'); A('v_rsq_f32 v64, v64')
    A('v_mul_f32 v60, v60, v64'); A('v_sub_f32 v60, 0, v60')
    A('v_mov_b32 v65, v64'); A('v_mov_b32 v61, v60')
    def norm(i):
        for k in range(4):
            r = X + 4*i + k
            A(f'v_lshlrev_b32 v68, 16, v{r}'); A(f'v_and_b32 v69, 0xffff0000, v{r}')
            A('v_pk_fma_f32 v[68:69], v[68:69], v[64:65], v[60:61]')
            A(f'v_cvt_pk_bf16_f32 v{r}, v68, v69')
        A(f's_mov_b32 s46, {i*2048}')
        A(f'buffer_store_dwordx4 v[{X+4*i}:{X+4*i+3}], v56, s[16:19], s46 offen sc1', 'st')
    X6 = A.newlabel('S0_X6')
    A('s_cmp_eq_u32 s3, 6'); A(f's_cbranch_scc1 {X6}')
    for i in range(0, 5): norm(i)
    A(f's_branch {JOIN}')
    A.label(X6); A.hist = []
    for i in range(5, 9): norm(i)
    A(f's_branch {JOIN}')

    A.label('S0_W'); A.vm = []; A.hist = []
    A('s_sub_u32 s48, s3, 1'); A('s_lshl_b32 s48, s48, 4'); A('s_add_u32 s48, s48, s40')
    A('s_cmp_ge_u32 s48, 36'); A('s_cbranch_scc1 S0_O')
    srd(A, 24, 34, 35, 32*648)
    srd(A, 20, 32, 33, 576*3456)
    PH = 16
    A('v_lshrrev_b32 v14, 2, v2'); A('v_lshlrev_b32 v14, 3, v14'); A('v_and_b32 v15, 3, v2'); A('v_add_u32 v14, v14, v15')
    A(f'v_mov_b32 v13, {BIG}')
    A('v_cmp_gt_u32 vcc, 18, v14'); A('v_add_u32 v12, 4, v14'); A('v_cmp_gt_u32 s[50:51], 18, v12')
    A('v_mul_u32_u24 v14, 36, v14'); A('v_lshl_add_u32 v14, v3, 4, v14')
    A('s_mul_i32 s46, s41, 1296'); A('v_add_u32 v14, s46, v14'); A('v_add_u32 v15, 144, v14')
    A('v_cndmask_b32 v14, v13, v14, vcc'); A('v_cndmask_b32 v15, v13, v15, s[50:51]')
    for hd in range(2):
        A(f'buffer_load_dwordx4 v[{PH+8*hd}:{PH+8*hd+3}], v14, s[24:27], 0 offen offset:{hd*648} {RAWF}', 'b')
        A(f'buffer_load_dwordx4 v[{PH+8*hd+4}:{PH+8*hd+7}], v15, s[24:27], 0 offen offset:{hd*648} {RAWF}', 'b')
    A('s_lshl_b32 s46, s48, 4')
    A('v_add_u32 v14, s46, v2'); A('v_mul_u32_u24 v14, 3456, v14')
    A('s_mul_i32 s46, s41, 72'); A('v_add_u32 v14, s46, v14')
    A('v_lshl_add_u32 v14, v3, 4, v14')
    AF = 32
    for sec in (1, 2, 0):
        for hd in range(2):
            r = AF + (sec*2+hd)*4
            A(f'buffer_load_dwordx4 v[{r}:{r+3}], v14, s[20:23], 0 offen offset:{sec*1152+hd*36} {RAWF}', 'a')
    K.stamp('s0iss')
    if FILLAT == 'mid': fills()
    ID, BF = 56, 64
    A('v_lshlrev_b32 v97, 3, v3'); A('v_sub_u32 v97, v2, v97')
    A('v_mov_b32 v98, 100'); A('v_cmp_gt_u32 vcc, 9, v2'); A('v_cndmask_b32 v97, v98, v97, vcc')
    A('v_mov_b32 v98, 0x3f80'); A('v_mov_b32 v99, 0x3f800000'); A('v_mov_b32 v100, 0')
    for p in range(2):
        if p == 1: A('v_add_u32 v97, 9, v97')
        for m in range(4):
            r = ID + p*4 + m
            A(f'v_cmp_eq_u32 vcc, {2*m}, v97'); A(f'v_cndmask_b32 v{r}, v100, v98, vcc')
            A(f'v_cmp_eq_u32 vcc, {2*m+1}, v97'); A(f'v_cndmask_b32 v{r}, v{r}, v99, vcc')
    L_S0W = 0
    A('s_sub_u32 s46, s3, 1'); A('s_lshl_b32 s52, s46, 12')
    A('v_lshrrev_b32 v104, 1, v3'); A('v_lshlrev_b32 v104, 8, v104'); A('v_and_b32 v105, 1, v3'); A('v_lshl_add_u32 v104, v105, 3, v104')
    A('v_add_u32 v104, s52, v104')
    A('s_add_u32 s53, s52, 3584'); A('v_mov_b32 v109, s53')
    for base, r in ((0, 101), (9, 102), (18, 103)):
        A(f'v_add_u32 v105, {base}, v2'); A('v_lshrrev_b32 v106, 2, v105'); A('v_and_b32 v105, 3, v105')
        A('v_lshlrev_b32 v105, 4, v105'); A('v_lshl_add_u32 v105, v106, 9, v105'); A('v_add_u32 v105, v105, v104')
        A('v_cmp_gt_u32 vcc, 9, v2'); A(f'v_cndmask_b32 v{r}, v109, v105, vcc')
    A('s_lshr_b32 s46, s48, 1'); A('s_mul_i32 s47, s46, 5120')
    A('s_lshl_b32 s49, s46, 11'); A('s_add_u32 s49, s49, %d' % (92160 - 5*1024))
    A(f's_mul_i32 s50, s41, {WP_J}'); A(f's_add_u32 s50, s50, {WP_OFF}')
    A('s_and_b32 s51, s48, 1'); A('s_lshl_b32 s51, s51, 9'); A('s_add_u32 s50, s50, s51')
    A('v_and_b32 v105, 31, v0'); A('v_lshlrev_b32 v105, 4, v105'); A('v_add_u32 v105, s50, v105')
    A('v_lshrrev_b32 v106, 5, v0')
    for i in range(4):
        A(f'v_add_u32 v107, {2*i}, v106'); A('v_mov_b32 v108, s47'); A('v_mov_b32 v100, s49')
        A('v_cmp_gt_u32 vcc, 5, v107'); A('v_cndmask_b32 v108, v100, v108, vcc')
        A('v_lshl_add_u32 v108, v107, 10, v108'); A('v_add_u32 v108, v108, v105')
        A('v_cmp_gt_u32 vcc, 7, v107'); A(f'v_cndmask_b32 v{8+i}, v13, v108, vcc')
    A('v_add_u32 v12, s52, v1')
    A('v_mov_b32 v100, 0')
    A('s_mov_b32 s46, 0x%08x' % LOG2E); A('v_mov_b32 v110, s46')
    A.wait_vm('b')
    T0 = 80
    for hd in range(2):
        for p in range(2):
            for t in range(2):
                d = T0 + (p*2+t)*4
                A(f'v_mfma_f32_16x16x32_bf16 v[{d}:{d+3}], v[{PH+8*hd+4*t}:{PH+8*hd+4*t+3}], v[{ID+4*p}:{ID+4*p+3}], 0')
        for p in range(2):
            b = BF + (hd*2+p)*4
            for t in range(2):
                d = T0 + (p*2+t)*4
                A(f'v_cvt_pk_bf16_f32 v{b+2*t}, v{d}, v{d+1}'); A(f'v_cvt_pk_bf16_f32 v{b+2*t+1}, v{d+2}, v{d+3}')
    A.wait_vm('a')
    K.stamp('s0ld')
    order = [(sec, hd, p) for sec in (1, 2, 0) for hd in range(2) for p in range(2)]
    for grp in range(3):
        part = order[4*grp:4*grp+4]
        for t, (sec, hd, p) in enumerate(part):
            d = T0 + 4*t if grp != 1 else 16 + 4*t
            af = AF + (sec*2+hd)*4
            bf = (ID + p*4) if sec == 2 else BF + (hd*2+p)*4
            A(f'v_mfma_f32_16x16x32_bf16 v[{d}:{d+3}], v[{af}:{af+3}], v[{bf}:{bf+3}], 0')
        for t, (sec, hd, p) in enumerate(part):
            d = T0 + 4*t if grp != 1 else 16 + 4*t
            ar = {1: 101, 2: 102, 0: 103}[sec]
            if sec != 2:
                A(f'v_pk_mul_f32 v[{d}:{d+1}], v[{d}:{d+1}], v[110:111] op_sel_hi:[1,0]')
                A(f'v_pk_mul_f32 v[{d+2}:{d+3}], v[{d+2}:{d+3}], v[110:111] op_sel_hi:[1,0]')
            A(f'v_cvt_pk_bf16_f32 v{d}, v{d}, v{d+1}'); A(f'v_cvt_pk_bf16_f32 v{d+1}, v{d+2}, v{d+3}')
            A(f'ds_write_b64 v{ar}, v[{d}:{d+1}] offset:{64*(2*hd+p)}', 'wa')
        A.wait_lg()
    for i in range(4): A(f'ds_read_b128 v[{16+4*i}:{19+4*i}], v12 offset:{1024*i}', ('wr', i))
    for i in range(4):
        A.wait_lg(('wr', i))
        A(f'buffer_store_dwordx4 v[{16+4*i}:{19+4*i}], v{8+i}, s[16:19], 0 offen sc1', 'st')
    A(f's_branch {JOIN}')

    A.label('S0_O'); A.vm = []; A.hist = []
    A('s_cmp_ge_u32 s45, 12'); A('s_cbranch_scc1 S0_M')
    srd(A, 20, 36, 37, 576*1152)
    A('s_sub_u32 s46, s44, 2'); A('s_mul_i32 s46, s46, 12'); A('s_add_u32 s46, s46, s45')
    A('s_and_b32 s48, s46, 3'); A('s_lshr_b32 s49, s46, 2')
    A('v_lshrrev_b32 v14, 3, v2'); A('s_lshl_b32 s46, s48, 3'); A('v_add_u32 v14, s46, v14'); A('v_mul_u32_u24 v14, 18, v14')
    A('v_bfe_u32 v15, v2, 2, 1'); A('v_mad_u32_u24 v14, v15, 9, v14')
    A('v_and_b32 v15, 3, v2')
    A('v_mad_u32_u24 v12, v15, 36, v14'); A('v_add_u32 v12, 8, v12')
    A('v_add_u32 v14, v14, v15')
    A('v_mul_u32_u24 v14, 1152, v14'); A('v_mul_u32_u24 v12, 1152, v12')
    A('s_lshl_b32 s46, s49, 6'); A('v_lshl_add_u32 v15, v3, 4, s46')
    A('v_add_u32 v14, v14, v15'); A('v_add_u32 v12, v12, v15')
    OA = 16
    for u in range(4):
        for h in range(2):
            A(f's_mov_b32 s{50+h}, {(36*u+4*h)*1152}')
            r = OA + (u*2+h)*4
            A(f'buffer_load_dwordx4 v[{r}:{r+3}], v14, s[20:23], s{50+h} offen {RAWF}', 'o')
    A(f'buffer_load_dwordx4 v[{OA+32}:{OA+35}], v12, s[20:23], 0 offen {RAWF}', 'o')
    K.stamp('s0iss')
    if FILLAT == 'mid': fills()
    OI = 52
    A('v_lshlrev_b32 v97, 3, v3'); A('v_sub_u32 v97, v2, v97')
    A('v_mov_b32 v98, 0x3f80'); A('v_mov_b32 v99, 0x3f800000'); A('v_mov_b32 v100, 0')
    for t in range(2):
        if t == 1: A('v_add_u32 v97, 16, v97')
        for m in range(4):
            r = OI + t*4 + m
            A(f'v_cmp_eq_u32 vcc, {2*m}, v97'); A(f'v_cndmask_b32 v{r}, v100, v98, vcc')
            A(f'v_cmp_eq_u32 vcc, {2*m+1}, v97'); A(f'v_cndmask_b32 v{r}, v{r}, v99, vcc')
    for t in range(2):
        A('s_lshl_b32 s46, s49, 1'); A(f's_add_u32 s46, s46, {t}')
        A('s_mul_hi_u32 s47, s46, 0x%x' % ((1 << 32)//9 + 1)); A('s_mul_i32 s50, s47, 9'); A('s_sub_u32 s50, s46, s50')
        A('s_lshl_b32 s47, s47, 2'); A('s_add_u32 s47, s47, s48'); A('s_mul_i32 s47, s47, 9'); A('s_add_u32 s47, s47, s50')
        A('s_mul_i32 s47, s47, 5120'); A(f's_add_u32 s47, s47, {WOP_OFF}')
        A(f'v_add_u32 v{10+t}, s47, v1')
    A.wait_vm('o')
    K.stamp('s0ld')
    for t in range(2):
        D = 60
        for q in range(9):
            A(f'v_mfma_f32_16x16x32_bf16 v[{D+4*q}:{D+4*q+3}], v[{OA+4*q}:{OA+4*q+3}], v[{OI+4*t}:{OI+4*t+3}], 0')
        for u in range(4):
            x_, y_ = D + 8*u, D + 8*u + 4
            A(f'v_cvt_pk_bf16_f32 v{x_}, v{x_}, v{x_+1}'); A(f'v_cvt_pk_bf16_f32 v{x_+1}, v{x_+2}, v{x_+3}')
            A(f'v_cvt_pk_bf16_f32 v{x_+2}, v{y_}, v{y_+1}'); A(f'v_cvt_pk_bf16_f32 v{x_+3}, v{y_+2}, v{y_+3}')
            A(f'buffer_store_dwordx4 v[{x_}:{x_+3}], v{10+t}, s[16:19], 0 offen offset:{u*1024} sc1', 'st')
        z = D + 32
        for i in range(4): A(f'v_cvt_pk_bf16_f32 v{z+i}, v{z+i}, 0')
        A('s_mov_b32 s46, 4096')
        A(f'buffer_store_dwordx4 v[{z}:{z+3}], v{10+t}, s[16:19], s46 offen sc1', 'st')
        A('s_nop 1')
    A(f's_branch {JOIN}')

    A.label('S0_E'); A.vm = []; A.hist = []
    A(f'v_mov_b32 v14, {EPOCH_OFF}')
    A('buffer_load_dword v20, v14, s[16:19], 0 offen sc1', 'ep')
    if FILLAT == 'mid': fills()
    A.wait_vm('ep')
    A('v_add_u32 v20, 1, v20')
    A('v_readfirstlane_b32 s63, v20')
    A(f's_branch {JOIN}')


    A.label('S0_M'); A.vm = []; A.hist = []
    if FILLAT == 'mid': fills()
    if os.environ.get('TLBW', '0') == '1':
        NT5 = A.newlabel('S0_NT5')
        A('s_cmp_lg_u32 s3, 5'); A(f's_cbranch_scc1 {NT5}')
        step = int(os.environ.get('TLBSTEP', 21))
        A(f'v_lshlrev_b32 v30, {step}, v0')
        srd(A, 20, 6, 7, FILL_END);            A('buffer_load_dword v32, v30, s[20:23], 0 offen')
        srd(A, 24, 14, 15, 2048*1152);         A('buffer_load_dword v33, v30, s[24:27], 0 offen')
        srd(A, 28, 8, 9, 576*9216);            A('buffer_load_dword v34, v30, s[28:31], 0 offen')
        srd(A, 20, 10, 11, 576*9216);          A('buffer_load_dword v35, v30, s[20:23], 0 offen')
        srd(A, 24, 12, 13, 4608*1152);         A('buffer_load_dword v36, v30, s[24:27], 0 offen')
        srd(A, 28, 4, 5, 2048*1152);           A('buffer_load_dword v37, v30, s[28:31], 0 offen')
        A.label(NT5); A.hist = []
    if os.environ.get('PFSTART'):
        NP5 = A.newlabel('S0_NP5')
        A('s_cmp_lg_u32 s3, 5'); A(f's_cbranch_scc1 {NP5}')
        A('s_cmp_eq_u32 s2, 200'); A(f's_cbranch_scc1 {NP5}')
        moe_prefetch_wave(K, os.environ.get('PFPOL', ''))
        A('s_branch S0_BAR')
        A.label(NP5); A.hist = []
    A('s_cmp_lg_u32 s2, 200'); A(f's_cbranch_scc1 {JOIN}')
    A('s_cmp_lg_u32 s3, 5'); A(f's_cbranch_scc1 {JOIN}')
    srd(A, 20, 38, 39, 1152)
    A('v_lshlrev_b32 v14, 2, v0')
    for i in range(5): A(f'buffer_load_dword v{16+i}, v14, s[20:23], 0 offen offset:{i*256}', 'm')
    A('s_mov_b32 s46, 0x3f803f80'); A('v_mov_b32 v24, 0')
    A.wait_vm('m')
    for i in range(5): A(f'v_dot2c_f32_bf16 v24, s46, v{16+i}')
    for mod in ('quad_perm:[1,0,3,2]', 'quad_perm:[2,3,0,1]', 'row_half_mirror', 'row_mirror'):
        A(f'v_add_f32_dpp v24, v24, v24 {mod} row_mask:0xf bank_mask:0xf')
    A('v_mov_b32 v25, v24'); A('v_permlane16_swap_b32 v24, v25'); A('v_add_f32 v24, v24, v25')
    A('v_mov_b32 v25, v24'); A('v_permlane32_swap_b32 v24, v25'); A('v_add_f32 v24, v24, v25')
    A('s_mov_b32 s46, 0x3AE38E39'); A('v_mul_f32 v24, s46, v24')
    A('v_lshlrev_b32 v14, 3, v0'); A(f'v_add_u32 v14, {WRC_OFF}, v14')
    for i in range(5):
        A(f'v_lshlrev_b32 v26, 16, v{16+i}'); A(f'v_and_b32 v27, 0xffff0000, v{16+i}')
        A('v_sub_f32 v26, v26, v24'); A('v_sub_f32 v27, v27, v24')
        A(f'buffer_store_dwordx2 v[26:27], v14, s[16:19], 0 offen offset:{i*512} sc1', 'st')
        A('s_nop 1')

    A.label(JOIN); A.hist = []
    K.stamp('s0work')
    if FILLAT == 'join': fills()
    K.waitall_vm()
    K.stamp('s0ack')
    if os.environ.get('PFS0'):
        NOP5 = A.newlabel('S0_NOPF')
        A('s_cmp_lg_u32 s3, 5'); A(f's_cbranch_scc1 {NOP5}')
        moe_prefetch_wave(K, os.environ.get('PFPOL', ''))
        A.label(NOP5); A.hist = []
    A.label('S0_BAR')
    A('s_barrier')
    NPOLL = A.newlabel('S0_NP')
    A('s_cmp_lg_u32 s3, 7'); A(f's_cbranch_scc1 {NPOLL}')
    A('s_lshl_b32 s46, s2, 7'); A(f's_add_u32 s46, s46, {FLAG_OFF}')
    A('v_mov_b32 v14, s46'); A('v_mov_b32 v15, s63')
    A('s_mov_b64 exec, 1')
    A('buffer_store_dword v15, v14, s[16:19], 0 offen sc1')
    A('s_mov_b64 exec, -1')
    group_flag_addr(A, 20, FLAG_OFF)
    L = K.poll_begin()
    A('buffer_load_dword v21, v20, s[16:19], 0 offen sc1')
    K.waitall_vm()
    A('v_cmp_ne_u32 vcc, s63, v21')
    K.poll_end(L)
    A.label(NPOLL); A.hist = []
    A('s_barrier')
    K.stamp('s0flag')
```
